```python
import torch

def _softmax(x, axis=-1):
    return torch.softmax(x, dim=axis)

def _gelu(x):
    return torch.nn.functional.gelu(x, approximate='tanh')

def _silu(x):
    return torch.nn.functional.silu(x)

def _sigmoid(x):
    return torch.sigmoid(x)

def _layernorm(x, axis=-1, eps=1e-05):
    m = x.mean(dim=axis, keepdim=True)
    v = x.var(dim=axis, keepdim=True, unbiased=False)
    return (x - m) / torch.sqrt(v + eps)

def _scatter_add(tgt, idx, src, axis=0):
    return tgt.clone().index_add_(axis, idx, src)

def _segment_sum(src, seg, n):
    out = torch.zeros((n,) + src.shape[1:], dtype=src.dtype)
    return out.index_add_(0, seg, src)

def _pad(x, pw):
    flat = tuple((v for pair in reversed(pw) for v in pair))
    return torch.nn.functional.pad(x, flat)
kernel_name = 'adaLN_cond__spectral_fnet__dense_activation_relu__prompt'

def setup_inputs():

    _w = lambda a: (lambda t: t.to(torch.bfloat16) if t.is_floating_point() else t)(torch.as_tensor(a))

    def _A_setup():
        B, S, D = (1, 2048, 576)
        ns = torch.arange(S)[:, None] * torch.arange(S)[None, :]
        nd = torch.arange(D)[:, None] * torch.arange(D)[None, :]
        Ws_re = torch.cos(-2.0 * torch.pi * ns / S).to(float)
        Ws_im = torch.sin(-2.0 * torch.pi * ns / S).to(float)
        Wd_re = torch.cos(-2.0 * torch.pi * nd / D).to(float)
        Wd_im = torch.sin(-2.0 * torch.pi * nd / D).to(float)
        return {'x': _w((lambda *s: torch.randn(*s, dtype=torch.bfloat16) * 0.05)(B, S, D)), 'dft_seq_re': _w(Ws_re), 'dft_seq_im': _w(Ws_im), 'dft_hid_re': _w(Wd_re), 'dft_hid_im': _w(Wd_im)}
    _A_in = _A_setup()

    def _B_setup():
        B, S, D, Dff = (1, 2048, 576, 4608)
        return {'x': _w((lambda *s: torch.randn(*s, dtype=torch.bfloat16) * 0.05)(B, S, D)), 'w1': _w((lambda *s: torch.randn(*s, dtype=torch.bfloat16) * 1.6)(D, Dff)), 'w2': _w((lambda *s: torch.randn(*s, dtype=torch.bfloat16) * 1.6)(Dff, D))}
    _B_in = _B_setup()
    return {'A_x': _A_in['x'], 'A_dft_seq_re': _A_in['dft_seq_re'], 'A_dft_seq_im': _A_in['dft_seq_im'], 'A_dft_hid_re': _A_in['dft_hid_re'], 'A_dft_hid_im': _A_in['dft_hid_im'], 'B_x': _B_in['x'], 'B_w1': _B_in['w1'], 'B_w2': _B_in['w2'], 'c': _w((lambda *s: torch.randn(*s, dtype=torch.bfloat16) * 0.1)(1, 576) * 8.0), 'w_mod': _w((lambda *s: torch.randn(*s, dtype=torch.bfloat16) * 0.1)(576, 6 * 576) * 576 ** (-0.5) * 8.0)}

def reference(A_x, A_dft_seq_re, A_dft_seq_im, A_dft_hid_re, A_dft_hid_im, B_x, B_w1, B_w2, c, w_mod):

    def _A_ref(x, dft_seq_re, dft_seq_im, dft_hid_re, dft_hid_im):
        a = torch.einsum('bsd,ed->bse', x, dft_hid_re)
        b = torch.einsum('bsd,ed->bse', x, dft_hid_im)
        y = torch.einsum('ts,bse->bte', dft_seq_re, a) - torch.einsum('ts,bse->bte', dft_seq_im, b)
        return y

    def _B_ref(x, w1, w2):
        h = torch.einsum('bsd,df->bsf', x, w1)
        zero = torch.zeros_like(h)
        h = torch.maximum(h, zero)
        return torch.einsum('bsf,fd->bsd', h, w2)
    x = A_x
    mod = (_silu(c) @ w_mod).reshape(c.shape[0], 6, 1, -1)
    sa, ca, ga, sb, cb, gb = (mod[:, 0].clone(), mod[:, 1].clone(), mod[:, 2].clone(), mod[:, 3].clone(), mod[:, 4].clone(), mod[:, 5].clone())
    h = _layernorm(x, axis=-1) * (1 + ca) + sa
    x = x + ga * _A_ref(h, A_dft_seq_re, A_dft_seq_im, A_dft_hid_re, A_dft_hid_im)
    h = _layernorm(x, axis=-1) * (1 + cb) + sb
    x = x + gb * _B_ref(h, B_w1, B_w2)
    return x
```

```python
import re

TRANS = ("v_exp_f32", "v_log_f32", "v_rcp_f32", "v_rsq_f32", "v_sqrt_f32", "v_sin_f32", "v_cos_f32", "v_rcp_iflag_f32")

def _regs(tok):
    tok = tok.strip()
    neg = tok.startswith("-")
    if neg: tok = tok[1:]
    m = re.fullmatch(r"abs\((.*)\)", tok)
    if m: tok = m.group(1)
    m = re.fullmatch(r"\|(.*)\|", tok)
    if m: tok = m.group(1)
    m = re.fullmatch(r"([vas])(\d+)", tok)
    if m: return [(m.group(1), int(m.group(2)))]
    m = re.fullmatch(r"([vas])\[(\d+):(\d+)\]", tok)
    if m: return [(m.group(1), i) for i in range(int(m.group(2)), int(m.group(3)) + 1)]
    if tok == "vcc": return [("s", 106), ("s", 107)]
    if tok == "vcc_lo": return [("s", 106)]
    if tok == "vcc_hi": return [("s", 107)]
    if tok == "m0": return [("s", 124)]
    if tok == "exec": return [("s", 126), ("s", 127)]
    return []

class Ins:
    __slots__ = ("text", "op", "dst", "src", "cls", "passes", "srcC", "srcAB", "dpp", "storedata", "ldsdma", "nop")
    def __init__(self, text):
        self.text = text
        t = text.split(";")[0].strip()
        parts = t.split(None, 1)
        self.op = op = parts[0]
        rest = parts[1] if len(parts) > 1 else ""
        ops, cur, depth = [], "", 0
        for ch in rest:
            if ch == "[": depth += 1
            if ch == "]": depth -= 1
            if ch == "," and depth == 0:
                ops.append(cur.strip()); cur = ""
            else: cur += ch
        if cur.strip(): ops.append(cur.strip())
        mods = ""
        if ops:
            last = ops[-1].split(None, 1)
            ops[-1] = last[0]
            if len(last) > 1: mods = last[1]
        self.dst, self.src = [], []
        self.passes = 0; self.srcC = []; self.srcAB = []; self.dpp = False; self.storedata = []; self.ldsdma = False
        self.nop = 1
        if op == "s_nop":
            self.cls = "nop"; self.nop = int(ops[0], 0) + 1; return
        if op.startswith("v_mfma"):
            self.cls = "mfma"
            self.passes = 8 if "32x32x16" in op else 4 if "16x16x32" in op else None
            assert self.passes, op
            self.dst = _regs(ops[0]); self.srcAB = _regs(ops[1]) + _regs(ops[2]); self.srcC = _regs(ops[3])
            self.src = self.srcAB + self.srcC; return
        if op.startswith("buffer_") or op.startswith("global_"):
            self.cls = "vmem"
            islds = re.search(r"\blds\b", mods) is not None or op.startswith("global_load_lds")
            if "load" in op and not islds:
                self.dst = _regs(ops[0]); rs = ops[1:]
            elif "atomic" in op and re.search(r"\bsc0\b", mods) and op.startswith("buffer_"):
                self.dst = _regs(ops[0]); rs = ops
            else:
                rs = ops
            for o in rs: self.src += _regs(o)
            if islds:
                self.ldsdma = True; self.src += [("s", 124)]
            if "store" in op and ("x4" in op or "x3" in op):
                self.storedata = _regs(ops[0]) if op.startswith("buffer_") else _regs(ops[1])
            return
        if op.startswith("ds_"):
            self.cls = "ds"
            if op.startswith("ds_read") or op.startswith("ds_bpermute") or op.startswith("ds_permute") or op.startswith("ds_swizzle") or "_rtn" in op:
                self.dst = _regs(ops[0]); rs = ops[1:]
            else: rs = ops
            for o in rs: self.src += _regs(o)
            return
        if op.startswith("s_"):
            self.cls = "salu"
            if op in ("s_waitcnt", "s_barrier", "s_endpgm", "s_branch", "s_setprio", "s_sleep") or op.startswith("s_cbranch"):
                return
            if op.startswith("s_cmp") or op.startswith("s_bitcmp"):
                for o in ops: self.src += _regs(o)
                return
            if op.startswith("s_load") or op.startswith("s_buffer_load") or op.startswith("s_mem"):
                self.cls = "smem"
            self.dst = _regs(ops[0])
            for o in ops[1:]: self.src += _regs(o)
            if "saveexec" in op: self.dst += [("s", 126), ("s", 127)]
            return
        assert op.startswith("v_"), text
        self.cls = "valu"
        self.dpp = any(k in mods for k in ("quad_perm", "row_", "wave_")) or op.endswith("_dpp")
        if op.startswith("v_cmp"):
            self.dst = _regs(ops[0])
            for o in ops[1:]: self.src += _regs(o)
            return
        if op.startswith("v_permlane") and "swap" in op:
            self.dst = _regs(ops[0]) + _regs(ops[1]); self.src = list(self.dst); return
        self.dst = _regs(ops[0]); rs = ops[1:]
        if re.match(r"v_(add|sub|subrev|addc|subb)_co", op):
            self.dst += _regs(ops[1]); rs = ops[2:]
        for o in rs: self.src += _regs(o)
        if op.startswith("v_fmac") or op.startswith("v_dot2c") or op.startswith("v_pk_fmac"):
            self.src += self.dst
        if op.startswith("v_cndmask") and len(ops) == 3:
            self.src += [("s", 106), ("s", 107)]

def need(p, c):
    n = 0
    pd, ps, cd, cs = set(p.dst), set(p.src), set(c.dst), set(c.src)
    vec = lambda S: {r for r in S if r[0] in "va"}
    sc = lambda S: {r for r in S if r[0] == "s"}
    if p.cls == "valu":
        if c.cls == "mfma" and vec(pd) & cs: n = max(n, 2)
        if c.cls == "valu":
            if c.dpp and vec(pd) & cs: n = max(n, 2)
            if c.op.startswith("v_permlane") and vec(pd) & cs: n = max(n, 2)
            if c.op.startswith("v_readfirstlane") or c.op.startswith("v_readlane"):
                if vec(pd) & cs: n = max(n, 1)
            if p.op in TRANS and c.op not in TRANS and vec(pd) & cs: n = max(n, 1)
            if sc(pd) & cs: n = max(n, 4 if c.op.startswith(("v_readlane", "v_writelane")) else 2)
        if p.op in TRANS and c.cls in ("vmem", "ds", "mfma") and vec(pd) & cs: n = max(n, 2)
        if c.cls == "vmem" and sc(pd) & cs: n = max(n, 5)
        if c.cls in ("salu", "smem") and sc(pd) & cs: n = max(n, 1)
    if p.cls == "valu" and p.op.startswith("v_dot"):
        if c.op == p.op:
            if vec(pd) & set(c.src[:2]): n = max(n, 3)
        elif vec(pd) & (cs | cd): n = max(n, 3)
    if p.cls == "mfma":
        big = 12 if p.passes == 8 else 8
        if c.cls == "mfma":
            if pd & set(c.srcAB): n = max(n, big)
            if pd & set(c.srcC):
                if not (p.dst == c.srcC and p.passes == c.passes): n = max(n, big - 2)
            elif pd & cd: n = max(n, big)
        elif c.cls in ("valu", "vmem", "ds"):
            if pd & (cs | cd): n = max(n, big)
            if set(p.srcC) & cd: n = max(n, 7 if p.passes == 8 else 3)
    if p.cls == "salu" and ("s", 124) in pd and c.ldsdma: n = max(n, 1)
    if p.storedata and set(p.storedata) & cd: n = max(n, 2)
    return n

class Asm:
    def __init__(self):
        self.items = []
    def __call__(self, s):
        for line in s.strip().split("\n"):
            line = line.strip()
            if not line or line.startswith(";"): continue
            if line.endswith(":") or line.startswith("."):
                self.items.append(line)
            else:
                self.items.append(Ins(line))
    def label(self, name): self.items.append(name + ":")
    def raw(self, s): self.items.append(s)

    def _fix_linear(self, items):
        out = []; window = []
        nins = 0
        for it in items:
            if isinstance(it, str):
                out.append(it); continue
            req = 0; dist = 0
            for p in reversed(window):
                r = need(p, it) - dist
                if r > req: req = r
                dist += p.nop
                if dist > 20: break
            while req > 0:
                k = min(req, 16)
                nop = Ins(f"s_nop {k-1}")
                out.append(nop); window.append(nop); req -= k; nins += 1
            out.append(it); window.append(it)
            if len(window) > 40: window = window[-40:]
        return out, nins

    def finish(self):
        out, n = self._fix_linear(self.items)
        labels = {it[:-1]: i for i, it in enumerate(out) if isinstance(it, str) and it.endswith(":")}
        for i, it in enumerate(out):
            if isinstance(it, Ins) and (it.op.startswith("s_cbranch") or it.op == "s_branch"):
                tgt = it.text.split()[1]
                if tgt not in labels: continue
                before = [x for x in out[max(0, i - 30):i + 1] if isinstance(x, Ins)]
                after = [x for x in out[labels[tgt]:labels[tgt] + 30] if isinstance(x, Ins)]
                seq = before + after
                for ci in range(len(before), len(seq)):
                    dist = 0
                    for pi in range(ci - 1, -1, -1):
                        if pi < len(before) and need(seq[pi], seq[ci]) > dist:
                            raise RuntimeError(f"hazard across branch {it.text}: {seq[pi].text} -> {seq[ci].text} dist {dist}")
                        dist += seq[pi].nop
                        if dist > 20: break
        lines = []
        for it in out:
            if isinstance(it, str): lines.append(it)
            else: lines.append("    " + it.text)
        return "\n".join(lines) + "\n"

def kernel_header(name):
    return f".globl {name}\n.p2align 8\n.type {name},@function\n{name}:"

def descriptor(name, vgpr, sgpr, accum):
    return f""".p2align 6
.amdhsa_kernel {name}
  .amdhsa_next_free_vgpr {vgpr}
  .amdhsa_next_free_sgpr {sgpr}
  .amdhsa_accum_offset {accum}
  .amdhsa_group_segment_fixed_size 0
  .amdhsa_kernarg_size 104
  .amdhsa_user_sgpr_count 2
  .amdhsa_user_sgpr_kernarg_segment_ptr 1
  .amdhsa_system_sgpr_workgroup_id_x 1
.end_amdhsa_kernel
"""
```

```python
from asmlib import *
S, D, F = 2048, 576, 4608
KA_X, KA_SRE, KA_SIM, KA_HRE, KA_HIM, KA_BX, KA_W1, KA_W2, KA_C, KA_WMOD, KA_OUT, KA_DBG, KA_WS = [8 * i for i in range(13)]
WS_MOD = 0
WS_CS = 0x4000
WS_Z = 0x10000
SZ_ACT = S * D * 2
WS_X1 = WS_Z + SZ_ACT
WS_X1S = WS_X1 + SZ_ACT
WS_STAT = WS_X1S + SZ_ACT
SZ_STAT = 2048 * 64
WS_G = WS_STAT + SZ_STAT
SZ_G = 3 * 2 * F * 4
WS_H1 = WS_G + 0x20000
SZ_H1 = S * F * 2
WS_PART = WS_H1 + SZ_H1
SZ_PART = 4 * S * D * 4

def srd(A, d, base, size, off=0):
    if off:
        A(f"s_add_u32 s{d}, s{base}, {off}")
        A(f"s_addc_u32 s{d+1}, s{base+1}, 0")
        A(f"s_and_b32 s{d+1}, s{d+1}, 0xffff")
    else:
        A(f"s_mov_b32 s{d}, s{base}")
        A(f"s_and_b32 s{d+1}, s{base+1}, 0xffff")
    A(f"s_mov_b32 s{d+2}, {size}")
    A(f"s_mov_b32 s{d+3}, 0x20000")

def vr(a, n=1, t="v"):
    return f"{t}{a}" if n == 1 else f"{t}[{a}:{a+n-1}]"
```

```python
from common import *
import struct
f2h = lambda f: hex(struct.unpack("<I", struct.pack("<f", f))[0])
STG = 36864
NSLOT = 4
G6_GL = NSLOT * STG
G6_LDS = G6_GL + 2304

def stats_to_ms(A, vst, vm, vsig, tmp):
    A(f"v_pk_add_f32 {vr(vst,2)}, {vr(vst,2)}, {vr(vst+2,2)}")
    A(f"v_pk_add_f32 {vr(vst+4,2)}, {vr(vst+4,2)}, {vr(vst+6,2)}")
    A(f"v_pk_add_f32 {vr(vst+8,2)}, {vr(vst+8,2)}, {vr(vst+10,2)}")
    A(f"v_pk_add_f32 {vr(vst,2)}, {vr(vst,2)}, {vr(vst+4,2)}")
    A(f"v_pk_add_f32 {vr(vst,2)}, {vr(vst,2)}, {vr(vst+8,2)}")
    A(f"v_mul_f32 v{vm}, {f2h(1.0/576)}, v{vst}")
    A(f"v_mul_f32 v{tmp}, {f2h(1.0/576)}, v{vst+1}")
    A(f"v_fma_f32 v{tmp}, -v{vm}, v{vm}, v{tmp}")
    A(f"v_max_f32 v{tmp}, 0, v{tmp}")
    A(f"v_add_f32 v{tmp}, {f2h(1e-5)}, v{tmp}")
    A(f"v_sqrt_f32 v{vsig}, v{tmp}")

def gen_g6(A, name="g6_kernel"):
    A.raw(kernel_header(name))
    A(f"""
    s_cmp_ge_u32 s2, 256
    s_cbranch_scc1 g6_done
    s_load_dwordx2 s[4:5], s[0:1], {KA_W1}
    s_load_dwordx2 s[6:7], s[0:1], {KA_WS}
    s_and_b32 s20, s2, 7                 ; xcd
    s_lshr_b32 s21, s2, 3                ; idx
    s_and_b32 s22, s20, 1
    s_lshl_b32 s22, s22, 3
    s_lshr_b32 s23, s21, 2
    s_add_u32 s22, s22, s23              ; taub
    s_lshr_b32 s23, s20, 1
    s_lshl_b32 s23, s23, 2
    s_and_b32 s24, s21, 3
    s_add_u32 s23, s23, s24              ; fb
    v_and_b32 v1, 63, v0
    v_lshrrev_b32 v2, 6, v0
    s_nop 0
    v_readfirstlane_b32 s24, v2          ; wave
    """)
    for n in range(9):
        A(f"""
        v_add_u32 v3, {64*n}, v1
        v_mul_u32_u24 v4, 1821, v3
        v_lshrrev_b32 v4, 16, v4
        v_mul_u32_u24 v5, 36, v4
        v_sub_u32 v3, v3, v5
        v_mul_u32_u24 v4, 9216, v4
        v_lshl_add_u32 v{8+n}, v3, 4, v4
        """)
    A(f"""
    s_mul_i32 s25, s24, {16*9216}
    s_mul_i32 s26, s23, 576
    s_add_u32 s25, s25, s26
    s_mul_i32 s26, s24, 9216
    s_lshl_b32 s27, s22, 2
    s_add_u32 s27, s27, s24              ; beta
    s_mul_i32 s28, s27, 36864            ; X1S soffset
    v_lshlrev_b32 v17, 4, v1
    s_waitcnt lgkmcnt(0)
    """)
    srd(A, 8, 4, D*F*2)
    srd(A, 12, 6, SZ_ACT, WS_X1S)
    srd(A, 16, 6, SZ_H1, WS_H1)
    srd(A, 32, 6, SZ_STAT, WS_STAT)
    srd(A, 36, 6, SZ_G, WS_G)
    BF = 0
    def issue_group(st):
        out = []
        for ks in range(4):
            k = 4*st + ks
            out.append(f"buffer_load_dwordx4 {vr(BF+4*k,4,'a')}, v17, s[12:15], s28 offen offset:{1024*ks}")
        out.append("s_add_u32 s28, s28, 4096")
        for n in range(9):
            out.append(f"s_add_u32 m0, s26, {(st % NSLOT)*STG + 1024*n}")
            out.append(f"buffer_load_dwordx4 v{8+n}, s[8:11], s25 offen lds")
        out.append(f"s_add_u32 s25, s25, {64*9216}")
        return out
    for st in range(4):
        for x in issue_group(st): A(x)
    ST = 200
    A(f"""
    v_and_b32 v3, 31, v1
    s_lshl_b32 s29, s27, 5
    v_add_u32 v3, s29, v3
    v_lshlrev_b32 v3, 6, v3
    buffer_load_dwordx4 {vr(ST,4)}, v3, s[32:35], 0 offen
    buffer_load_dwordx4 {vr(ST+4,4)}, v3, s[32:35], 0 offen offset:16
    buffer_load_dwordx4 {vr(ST+8,4)}, v3, s[32:35], 0 offen offset:32
    ; g partials: thread t<144: vec = t/72, f4 = t%72
    v_cmp_lt_u32 vcc, 71, v0
    v_lshlrev_b32 v4, 4, v0
    v_add_u32 v5, {F*4 - 72*16}, v4
    v_cndmask_b32 v5, v4, v5, vcc
    v_cmp_lt_u32 vcc, 143, v0
    v_mov_b32 v6, 0x7ffffff0
    v_cndmask_b32 v5, v5, v6, vcc
    s_mul_i32 s29, s23, 1152
    s_add_u32 s30, s29, {2*F*4}
    s_add_u32 s31, s29, {4*F*4}
    buffer_load_dwordx4 {vr(ST+12,4)}, v5, s[36:39], s29 offen
    buffer_load_dwordx4 {vr(ST+16,4)}, v5, s[36:39], s30 offen
    buffer_load_dwordx4 {vr(ST+20,4)}, v5, s[36:39], s31 offen
    """)
    NEX = 6
    A(f"""
    v_lshrrev_b32 v3, 5, v1
    v_bfe_u32 v5, v1, 2, 2
    v_lshl_add_u32 v3, v3, 3, v5
    v_mul_u32_u24 v3, 576, v3
    v_and_b32 v5, 3, v1
    v_lshl_add_u32 v3, v5, 4, v3
    v_bfe_u32 v5, v1, 4, 1
    v_lshl_add_u32 v18, v5, 3, v3
    v_add_u32 v19, {STG}, v18
    v_add_u32 v20, {2*STG}, v18
    v_add_u32 v21, {3*STG}, v18
    """)
    ACC = 24
    AFB = 168
    def afr(set_, T): return vr(144 + 36*set_ + 4*T, 4, 'a')
    def afr2(set_, T, h): return vr(144 + 36*set_ + 4*T + 2*h, 2, 'a')
    def read_ops(k):
        st, ks = divmod(k, 4)
        base = 18 + (st % NSLOT)
        out = []
        for T in range(9):
            for h in range(2):
                off = (16*ks + 4*h)*576 + 64*T
                out.append(f"ds_read_b64_tr_b16 {afr2(k & 1, T, h)}, v{base} offset:{off}")
        return out
    A(f"s_waitcnt vmcnt({3*13 + NEX})")
    A("s_barrier")
    for x in read_ops(0): A(x)
    for k in range(36):
        st, ks = divmod(k, 4)
        extra = []
        pre = []
        if ks == 3 and st < 8:
            outstanding_after = max(0, min(8, st + 3) - (st + 1)) * 13
            n = outstanding_after + (NEX if st + 1 < 3 else 0) if st + 1 <= 3 else outstanding_after
            if st + 1 == 3: n = outstanding_after + 0
            order = []
            for g in range(4): order += [("g", g)] * 13
            order += [("x", 0)] * NEX
            for g in range(4, min(8, st + 3) + 1): order += [("g", g)] * 13
            last = max(i for i, o in enumerate(order) if o == ("g", st + 1))
            n = len(order) - 1 - last
            pre = ["s_waitcnt lgkmcnt(0)", f"s_waitcnt vmcnt({n})", "s_barrier"]
            if st + 4 <= 8: extra = issue_group(st + 4)
        else:
            pre = ["s_waitcnt lgkmcnt(0)"]
        for x in pre: A(x)
        rd = read_ops(k+1) if k + 1 < 36 else []
        for T in range(9):
            d = vr(ACC+16*T, 16)
            c = "0" if k == 0 else d
            A(f"v_mfma_f32_32x32x16_bf16 {d}, {afr(k & 1, T)}, {vr(BF+4*k,4,'a')}, {c}")
            for x in rd[3*T:3*T+3]: A(x)
            ne = (len(extra) + 8 - T - 1) // (9 - T) if T < 9 else 0
            ne = -(-len(extra) // (9 - T))
            for x in extra[:ne]: A(x)
            extra = extra[ne:]
        if k == 17:
            A(f"v_pk_add_f32 {vr(ST+12,2)}, {vr(ST+12,2)}, {vr(ST+16,2)}")
            A(f"v_pk_add_f32 {vr(ST+14,2)}, {vr(ST+14,2)}, {vr(ST+18,2)}")
            A(f"v_pk_add_f32 {vr(ST+12,2)}, {vr(ST+12,2)}, {vr(ST+20,2)}")
            A(f"v_pk_add_f32 {vr(ST+14,2)}, {vr(ST+14,2)}, {vr(ST+22,2)}")
            A(f"v_add_u32 v4, {G6_GL}, v4")
            A("v_cmp_gt_u32 vcc, 144, v0")
            A("s_and_saveexec_b64 s[40:41], vcc")
            A(f"ds_write_b128 v4, {vr(ST+12,4)}")
            A("s_mov_b64 exec, s[40:41]")
            stats_to_ms(A, ST, 226, 224, 228)
            A("v_sub_f32 v226, 0, v226")
    A(f"""
    v_lshrrev_b32 v3, 5, v1
    v_lshlrev_b32 v3, 5, v3
    v_add_u32 v3, {G6_GL}, v3
    ; H1 store offset: ((tau16*144 + kstep)*64 + g*16 + tau%16)*16 ; tau16 = 2beta + ((l>>4)&1), g = 2h+p
    v_bfe_u32 v4, v1, 4, 1
    v_mul_u32_u24 v4, {144*1024}, v4
    v_lshrrev_b32 v5, 5, v1
    v_lshl_add_u32 v4, v5, 9, v4
    v_and_b32 v5, 15, v1
    v_lshl_add_u32 v4, v5, 4, v4
    s_mul_i32 s29, s27, {2*144*1024}
    s_mul_i32 s30, s23, {9*1024}
    s_add_u32 s29, s29, s30
    """)
    GV = 168
    qoff = [0, 64, 16, 80]
    def gread(T, base):
        for q in range(4):
            A(f"ds_read_b128 {vr(base+4*q,4)}, v3 offset:{128*T+qoff[q]}")
            A(f"ds_read_b128 {vr(base+16+4*q,4)}, v3 offset:{1152+128*T+qoff[q]}")
    sets = [160+8, 0]
    SETS = [168, 230 - 30]
    A("v_mov_b32 v8, v224")
    A("v_mov_b32 v10, v226")
    SETS = [168, 200]
    gread(0, SETS[0])
    for T in range(9):
        if T + 1 < 9:
            gread(T+1, SETS[(T+1) & 1])
            A("s_waitcnt lgkmcnt(8)")
        else:
            A("s_waitcnt lgkmcnt(0)")
        b = SETS[T & 1]
        O = 232 + 8*(T & 1)
        for k in range(8):
            r = ACC + 16*T + 2*k
            A(f"v_pk_fma_f32 {vr(r,2)}, {vr(b+2*k,2)}, v[10:11], {vr(r,2)} op_sel_hi:[1,0,1]")
            A(f"v_pk_fma_f32 {vr(r,2)}, {vr(b+16+2*k,2)}, v[8:9], {vr(r,2)} op_sel_hi:[1,0,1]")
            A(f"v_cvt_pk_bf16_f32 v{O+k}, v{r}, v{r+1}")
            A(f"v_pk_max_i16 v{O+k}, v{O+k}, 0")
        A(f"buffer_store_dwordx4 {vr(O,4)}, v4, s[16:19], s29 offen")
        A(f"buffer_store_dwordx4 {vr(O+4,4)}, v4, s[16:19], s29 offen offset:256")
        if T < 8: A("s_add_u32 s29, s29, 1024")
    A("g6_done:\ns_endpgm")
    return dict(name=name, vgpr=256+216, sgpr=48, accum=256, grid=256, block=256, lds=G6_LDS)
```

```python
from common import *
from g6 import stats_to_ms, STG, NSLOT, f2h
G7_LDS = NSLOT * STG

def gen_g7(A, name="g7_kernel"):
    A.raw(kernel_header(name))
    A(f"""
    s_cmp_ge_u32 s2, 256
    s_cbranch_scc1 g7_done
    s_load_dwordx2 s[4:5], s[0:1], {KA_W2}
    s_load_dwordx2 s[6:7], s[0:1], {KA_WS}
    s_and_b32 s20, s2, 7                 ; xcd
    s_lshr_b32 s21, s2, 3                ; idx
    s_and_b32 s22, s20, 1
    s_lshl_b32 s22, s22, 3
    s_lshr_b32 s23, s21, 2
    s_add_u32 s22, s22, s23              ; taub
    s_lshr_b32 s23, s20, 1               ; q
    s_and_b32 s21, s21, 3                ; eb
    v_and_b32 v1, 63, v0
    v_lshrrev_b32 v2, 6, v0
    s_nop 0
    v_readfirstlane_b32 s24, v2          ; wave
    """)
    for n in range(9):
        A(f"""
        v_add_u32 v3, {64*n}, v1
        v_mul_u32_u24 v4, 3641, v3
        v_lshrrev_b32 v4, 16, v4
        v_mul_u32_u24 v5, 18, v4
        v_sub_u32 v3, v3, v5
        v_mul_u32_u24 v4, 1152, v4
        v_lshl_add_u32 v{8+n}, v3, 4, v4
        """)
    A(f"""
    s_mul_i32 s25, s23, {1152*1152}
    s_mul_i32 s26, s24, {32*1152}
    s_add_u32 s25, s25, s26
    s_mul_i32 s26, s21, 288
    s_add_u32 s25, s25, s26
    s_mul_i32 s26, s24, 9216
    s_lshl_b32 s27, s22, 2
    s_add_u32 s27, s27, s24              ; beta
    s_mul_i32 s28, s27, {2*144*1024}
    s_mul_i32 s29, s23, {36*1024}
    s_add_u32 s28, s28, s29
    s_add_u32 s29, s28, {144*1024}       ; tt=1
    v_lshlrev_b32 v17, 4, v1
    s_waitcnt lgkmcnt(0)
    """)
    srd(A, 8, 4, D*F*2)
    srd(A, 12, 6, SZ_H1, WS_H1)
    srd(A, 16, 6, SZ_PART, WS_PART)
    NB = 5
    def bfr(st, ks, tt): return vr(32*(st % NB) + 8*ks + 4*tt, 4, 'a')
    GN = 17
    def issue_group(st):
        out = []
        for ks in range(4):
            for tt in range(2):
                out.append(f"buffer_load_dwordx4 {bfr(st,ks,tt)}, v17, s[12:15], s{28+tt} offen offset:{1024*ks}")
        out.append("s_add_u32 s28, s28, 4096")
        out.append("s_add_u32 s29, s29, 4096")
        for n in range(9):
            out.append(f"s_add_u32 m0, s26, {(st % NSLOT)*STG + 1024*n}")
            out.append(f"buffer_load_dwordx4 v{8+n}, s[8:11], s25 offen lds")
        out.append(f"s_add_u32 s25, s25, {128*1152}")
        return out
    for st in range(4):
        for x in issue_group(st): A(x)
    A(f"""
    v_lshrrev_b32 v3, 2, v1
    v_mul_u32_u24 v3, 288, v3
    v_and_b32 v5, 3, v1
    v_lshl_add_u32 v18, v5, 3, v3
    v_add_u32 v19, {STG}, v18
    v_add_u32 v20, {2*STG}, v18
    v_add_u32 v21, {3*STG}, v18
    """)
    ACC = 24
    AFB = 96
    def afr(set_, T): return vr(AFB + 36*set_ + 4*T, 4)
    def afr2(set_, T, h): return vr(AFB + 36*set_ + 4*T + 2*h, 2)
    def read_ops(k):
        st, ks = divmod(k, 4)
        base = 18 + (st % NSLOT)
        out = []
        for T in range(9):
            for h in range(2):
                off = (32*ks + 16*h)*288 + 32*T
                out.append(f"ds_read_b64_tr_b16 {afr2(k & 1, T, h)}, v{base} offset:{off}")
        return out
    A(f"s_waitcnt vmcnt({3*GN})")
    A("s_barrier")
    for x in read_ops(0): A(x)
    for k in range(36):
        st, ks = divmod(k, 4)
        extra = []
        if ks == 3 and st < 8:
            n = (min(8, st + 3) - (st + 1)) * GN
            pre = ["s_waitcnt lgkmcnt(0)", f"s_waitcnt vmcnt({n})", "s_barrier"]
            if st + 4 <= 8: extra = issue_group(st + 4)
        else:
            pre = ["s_waitcnt lgkmcnt(0)"]
        for x in pre: A(x)
        rd = read_ops(k+1) if k + 1 < 36 else []
        i = 0
        for T in range(9):
            for tt in range(2):
                d = vr(ACC+4*(2*T+tt), 4)
                c = "0" if k == 0 else d
                A(f"v_mfma_f32_16x16x32_bf16 {d}, {afr(k & 1, T)}, {bfr(st,ks,tt)}, {c}")
                nr = 2 if i % 2 == 0 else 1
                for x in rd[:nr]: A(x)
                rd = rd[nr:]
                ne = -(-len(extra) // (18 - i))
                for x in extra[:ne]: A(x)
                extra = extra[ne:]
                i += 1
    A(f"""
    s_lshl_b32 s30, s23, 6
    s_lshl_b32 s31, s22, 2
    s_add_u32 s30, s30, s31
    s_add_u32 s30, s30, s21
    s_lshl_b32 s30, s30, 2
    s_add_u32 s30, s30, s24
    s_mul_i32 s30, s30, {18*1024}
    """)
    for i in range(18):
        A(f"buffer_store_dwordx4 {vr(ACC+4*i,4)}, v17, s[16:19], s30 offen offset:{1024*(i%4)}")
        if i % 4 == 3: A("s_add_u32 s30, s30, 4096")
    A("g7_done:\ns_endpgm")
    return dict(name=name, vgpr=168+160, sgpr=48, accum=168, grid=256, block=256, lds=G7_LDS)

def gen_r(A, name="r_kernel"):
    A.raw(kernel_header(name))
    A(f"""
    s_cmp_ge_u32 s2, 384
    s_cbranch_scc1 r_done
    s_load_dwordx2 s[4:5], s[0:1], {KA_OUT}
    s_load_dwordx2 s[6:7], s[0:1], {KA_WS}
    v_and_b32 v1, 63, v0
    v_lshrrev_b32 v2, 6, v0
    s_nop 0
    v_readfirstlane_b32 s24, v2
    s_mul_i32 s20, s2, 171
    s_lshr_b32 s20, s20, 10
    s_mul_i32 s21, s20, 6
    s_sub_u32 s21, s2, s21               ; sub = wg%6
    s_and_b32 s22, s21, 1                ; tt
    s_lshr_b32 s21, s21, 1               ; Eg
    s_lshr_b32 s25, s20, 2               ; taub
    s_and_b32 s26, s20, 3                ; eb
    s_lshl_b32 s27, s25, 2
    s_add_u32 s27, s27, s24              ; beta
    s_lshl_b32 s28, s20, 2
    s_add_u32 s28, s28, s24
    s_mul_i32 s28, s28, 18
    s_mul_i32 s29, s21, 6
    s_add_u32 s28, s28, s29
    s_add_u32 s28, s28, s22
    s_lshl_b32 s28, s28, 10
    v_lshlrev_b32 v3, 4, v1
    v_and_b32 v4, 15, v1                 ; tok
    v_lshrrev_b32 v5, 4, v1              ; g
    s_lshl_b32 s29, s22, 4
    v_add_u32 v6, s29, v4                ; u = tau%32
    s_lshl_b32 s29, s27, 5
    v_add_u32 v7, s29, v6                ; tau
    v_sub_u32 v8, 31, v6
    s_cmp_gt_u32 s27, 32
    s_cselect_b64 vcc, -1, 0
    v_cndmask_b32 v8, v6, v8, vcc
    v_lshlrev_b32 v8, 6, v8
    v_add_u32 v8, s27, v8                ; t
    v_mul_u32_u24 v8, 1152, v8
    v_lshl_add_u32 v8, v5, 3, v8
    v_mul_u32_u24 v9, 1152, v7
    v_lshl_add_u32 v9, v5, 3, v9         ; x1 offset
    v_lshlrev_b32 v10, 6, v7
    v_lshlrev_b32 v11, 4, v5
    s_mul_i32 s30, s26, 288
    s_mul_i32 s31, s21, 96
    s_add_u32 s30, s30, s31
    s_lshl_b32 s31, s30, 1
    s_add_u32 s31, s31, {2880*4}
    s_waitcnt lgkmcnt(0)
    """)
    srd(A, 8, 4, SZ_ACT)
    srd(A, 12, 6, SZ_PART, WS_PART)
    srd(A, 16, 6, SZ_ACT, WS_X1)
    srd(A, 32, 6, SZ_STAT, WS_STAT)
    srd(A, 36, 6, 13824, WS_MOD)
    P = 16
    A("s_add_u32 s40, s28, 4096")
    for q in range(4):
        for E in range(3):
            if E < 2:
                A(f"buffer_load_dwordx4 {vr(P+12*q+4*E,4)}, v3, s[12:15], s28 offen offset:{2048*E}")
            else:
                A(f"buffer_load_dwordx4 {vr(P+12*q+4*E,4)}, v3, s[12:15], s40 offen")
        if q < 3:
            A(f"s_add_u32 s28, s28, {S*D*4}")
            A(f"s_add_u32 s40, s40, {S*D*4}")
    ST, XR, GB = 64, 76, 84
    for k in range(3):
        A(f"buffer_load_dwordx4 {vr(ST+4*k,4)}, v10, s[32:35], 0 offen offset:{16*k}")
        A(f"buffer_load_dwordx2 {vr(XR+2*k,2)}, v9, s[16:19], s30 offen offset:{32*k}")
        A(f"buffer_load_dwordx4 {vr(GB+4*k,4)}, v11, s[36:39], s31 offen offset:{64*k}")
    A("s_mov_b32 s41, 0xffff0000")
    A("s_waitcnt vmcnt(0)")
    stats_to_ms(A, ST, 12, 13, 14)
    A("v_rcp_f32 v12, v13")
    for k in range(6):
        r = P + 2*k
        A(f"v_pk_add_f32 {vr(r,2)}, {vr(r,2)}, {vr(r+12,2)}")
        A(f"v_pk_add_f32 {vr(r+24,2)}, {vr(r+24,2)}, {vr(r+36,2)}")
        A(f"v_pk_add_f32 {vr(r,2)}, {vr(r,2)}, {vr(r+24,2)}")
        A(f"v_pk_mul_f32 {vr(r,2)}, {vr(r,2)}, v[12:13] op_sel_hi:[1,0]")
        A(f"v_lshlrev_b32 v14, 16, v{XR+k}")
        A(f"v_and_b32 v15, s41, v{XR+k}")
        A(f"v_pk_fma_f32 {vr(r,2)}, {vr(r,2)}, {vr(GB+2*k,2)}, v[14:15]")
        A(f"v_cvt_pk_bf16_f32 v{XR+k}, v{r}, v{r+1}")
    for k in range(3):
        A(f"buffer_store_dwordx2 {vr(XR+2*k,2)}, v8, s[8:11], s30 offen offset:{32*k}")
    A("r_done:\ns_endpgm")
    return dict(name=name, vgpr=96, sgpr=48, accum=96, grid=384, block=256, lds=0)
```

```python
from common import *

KA_NLN = 192
KA_NMOD = 54
KA_GRID = KA_NLN + KA_NMOD
KA_LDS = 64 * 192

def gen_ka(A, name="ka_kernel"):
    A.raw(kernel_header(name))
    A(f"""
    s_cmp_ge_u32 s2, {KA_GRID}
    s_cbranch_scc1 ka_done
    s_cmp_ge_u32 s2, {KA_NLN}
    s_cbranch_scc1 ka_mod
    s_load_dwordx4 s[4:7], s[0:1], {KA_X}
    s_load_dwordx2 s[8:9], s[0:1], {KA_SIM}
    s_load_dwordx2 s[10:11], s[0:1], {KA_WS}
    s_and_b32 s20, s2, 7
    s_lshr_b32 s21, s2, 3
    s_mul_i32 s23, s21, 43
    s_lshr_b32 s23, s23, 8            ; idx/6
    s_lshl_b32 s20, s20, 2
    s_add_u32 s20, s20, s23           ; s2v
    s_mul_i32 s23, s23, 6
    s_sub_u32 s21, s21, s23           ; cg
    s_mov_b32 s22, {8*32*1152}
    v_and_b32 v1, 63, v0              ; lane
    v_lshrrev_b32 v2, 6, v0           ; wave
    v_lshrrev_b32 v3, 3, v1           ; r
    v_and_b32 v4, 7, v1               ; c
    v_lshl_add_u32 v5, v2, 4, v3      ; s1 = 16w + r
    v_lshlrev_b32 v6, 5, v5
    v_add_u32 v6, s20, v6
    v_mul_u32_u24 v6, 1152, v6
    s_mul_i32 s24, s21, 12
    v_add_u32 v7, s24, v4             ; c + 12 cg
    """)
    for i in range(9):
        if i: A(f"v_add_u32 v7, 8, v7")
        A(f"v_subrev_u32 v17, 72, v7")
        A(f"v_min_u32 v17, v17, v7")
        A(f"v_lshl_add_u32 v{8+i}, v17, 4, v6")
    A("s_waitcnt lgkmcnt(0)")
    srd(A, 12, 4, SZ_ACT)
    X0, X1 = 32, 68
    for i in range(9):
        A(f"buffer_load_dwordx4 {vr(X0+4*i,4)}, v{8+i}, s[12:15], 0 offen")
    for i in range(9):
        A(f"buffer_load_dwordx4 {vr(X1+4*i,4)}, v{8+i}, s[12:15], s22 offen")
    A(f"""
    v_and_b32 v18, 15, v1
    v_lshrrev_b32 v19, 4, v1          ; g
    v_lshl_add_u32 v20, v2, 4, v18    ; j
    v_cmp_lt_u32 vcc, 32, v20         ; j > 32 -> imag
    v_subrev_u32 v21, 32, v20
    v_mov_b32 v22, s6
    v_mov_b32 v23, s7
    v_mov_b32 v24, s8
    v_mov_b32 v25, s9
    v_cndmask_b32 v21, v20, v21, vcc
    v_cndmask_b32 v22, v22, v24, vcc
    v_cndmask_b32 v23, v23, v25, vcc
    v_lshlrev_b32 v21, 17, v21        ; *32*4096
    v_lshl_add_u32 v21, v19, 4, v21   ; + 16 g
    v_add_co_u32 v22, vcc, v22, v21
    v_addc_co_u32 v23, vcc, 0, v23, vcc
    global_load_dwordx4 v[104:107], v[22:23], off
    global_load_dwordx4 v[108:111], v[22:23], off offset:64
    """)
    srd(A, 16, 10, SZ_ACT, WS_Z)
    A("s_mov_b32 s25, 0x3f803f80")
    for r in range(4): A(f"v_mov_b32 v{24+r}, 0")
    for p, X in enumerate((X0, X1)):
        for i in range(9):
            A(f"s_waitcnt vmcnt({2 + 17 - (9*p + i)})")
            for k in range(4):
                A(f"v_dot2_f32_bf16 v{24+2*p}, v{X+4*i+k}, s25, v{24+2*p}")
                A(f"v_dot2_f32_bf16 v{25+2*p}, v{X+4*i+k}, v{X+4*i+k}, v{25+2*p}")
    for mode in ("quad_perm:[1,0,3,2]", "quad_perm:[2,3,0,1]", "row_half_mirror"):
        for r in range(4):
            A(f"v_add_f32_dpp v{24+r}, v{24+r}, v{24+r} {mode} row_mask:0xf bank_mask:0xf")
    inv = "0x3ae38e39"
    import struct
    inv = hex(struct.unpack("<I", struct.pack("<f", 1.0/576))[0])
    eps = hex(struct.unpack("<I", struct.pack("<f", 1e-5))[0])
    for p in range(2):
        s_, q_ = 24+2*p, 25+2*p
        rs, nb = 28+2*p, 112+2*p
        A(f"v_mul_f32 v{s_}, {inv}, v{s_}")
        A(f"v_mul_f32 v{q_}, {inv}, v{q_}")
        A(f"v_fma_f32 v{q_}, -v{s_}, v{s_}, v{q_}")
        A(f"v_max_f32 v{q_}, 0, v{q_}")
        A(f"v_add_f32 v{q_}, {eps}, v{q_}")
        A(f"v_rsq_f32 v{rs}, v{q_}")
        A(f"v_mul_f32 v{nb}, v{s_}, v{rs}")
        A(f"v_sub_f32 v{nb}, 0, v{nb}")
    A("v_mul_u32_u24 v8, 192, v5")
    A("v_lshl_add_u32 v8, v4, 4, v8")
    A("s_mov_b32 s26, 0xffff0000")
    for p, X in enumerate((X0, X1)):
        rs, nb = 28+2*p, 112+2*p
        for i in range(2):
            for k in range(4):
                src = X+4*i+k
                A(f"v_lshlrev_b32 v116, 16, v{src}")
                A(f"v_and_b32 v117, s26, v{src}")
                A(f"v_pk_fma_f32 v[116:117], v[116:117], v[{rs}:{rs+1}], v[{nb}:{nb+1}] op_sel_hi:[1,0,0]")
                A(f"v_cvt_pk_bf16_f32 v{src}, v116, v117")
    A(f"ds_write_b128 v8, {vr(X0,4)}")
    A(f"ds_write_b128 v8, {vr(X1,4)} offset:{8*192}")
    A("v_cmp_gt_u32 vcc, 4, v4")
    A("s_and_saveexec_b64 s[28:29], vcc")
    A(f"ds_write_b128 v8, {vr(X0+4,4)} offset:128")
    A(f"ds_write_b128 v8, {vr(X1+4,4)} offset:{8*192+128}")
    A("s_mov_b64 exec, s[28:29]")
    A(f"""
    v_bfe_u32 v9, v1, 2, 2            ; r'
    v_lshl_add_u32 v9, v19, 3, v9
    v_mul_u32_u24 v9, 192, v9
    v_and_b32 v10, 1, v1
    v_lshl_add_u32 v9, v10, 5, v9
    v_bfe_u32 v10, v1, 1, 1
    v_lshl_add_u32 v9, v10, 3, v9
    v_lshlrev_b32 v11, 5, v20
    v_add_u32 v11, s20, v11
    v_mul_u32_u24 v11, 1152, v11
    v_lshl_add_u32 v11, v19, 4, v11
    s_mul_i32 s27, s21, 192
    s_waitcnt lgkmcnt(0)
    s_barrier
    """)
    AF = 32
    ACC = 80
    n = 0
    for ks in range(2):
        for T in range(6):
            for h in range(2):
                off = (32*ks + 4*h) * 192 + 64*(T >> 1) + 16*(T & 1)
                A(f"ds_read_b64_tr_b16 {vr(AF+4*(6*ks+T)+2*h,2)}, v9 offset:{off}")
    A("s_waitcnt vmcnt(0)")
    for ks in range(2):
        for T in range(6):
            idx = 6*ks+T
            A(f"s_waitcnt lgkmcnt({min(15, 2*(11-idx))})")
            c = "0" if ks == 0 else vr(ACC+4*T,4)
            A(f"v_mfma_f32_16x16x32_bf16 {vr(ACC+4*T,4)}, {vr(AF+4*idx,4)}, {vr(104+4*ks,4)}, {c}")
    for b in range(3):
        a0 = ACC + 8*b
        o = 32 + 4*b
        for k in range(4):
            A(f"v_cvt_pk_bf16_f32 v{o+k}, v{a0+2*k}, v{a0+2*k+1}")
        A(f"buffer_store_dwordx4 {vr(o,4)}, v11, s[16:19], s27 offen offset:{64*b}")
    A("s_endpgm")

    A.label("ka_mod")
    A(f"""
    s_load_dwordx4 s[4:7], s[0:1], {KA_C}      ; c, w_mod
    s_load_dwordx2 s[10:11], s[0:1], {KA_WS}
    s_sub_u32 s20, s2, {KA_NLN}                ; m
    v_and_b32 v1, 63, v0
    v_lshrrev_b32 v2, 6, v0
    v_lshrrev_b32 v3, 3, v1                    ; r
    v_and_b32 v4, 7, v1                        ; cc
    v_mul_u32_u24 v5, 144, v2
    v_add_u32 v5, v5, v3                       ; 144w + r
    v_mul_u32_u24 v6, 6912, v5
    v_lshl_add_u32 v6, v4, 4, v6
    v_lshlrev_b32 v7, 1, v0
    s_lshl_b32 s21, s20, 7
    s_waitcnt lgkmcnt(0)
    """)
    srd(A, 12, 4, 1152)
    srd(A, 16, 6, 576*6912)
    for k in range(3):
        A(f"buffer_load_ushort v{8+k}, v7, s[12:15], 0 offen offset:{512*k}")
    W = 32
    for i in range(18):
        A(f"buffer_load_dwordx4 {vr(W+4*i,4)}, v6, s[16:19], s21 offen")
        if i < 17: A(f"s_add_u32 s21, s21, {8*6912}")
    srd(A, 24, 10, 0x8000, WS_MOD)
    A("s_waitcnt vmcnt(18)")
    A("v_lshlrev_b32 v7, 2, v0")
    log2e = "0x3fb8aa3b"
    for k in range(3):
        A(f"""
        v_lshlrev_b32 v{8+k}, 16, v{8+k}
        v_mul_f32 v11, {log2e}, v{8+k}
        v_exp_f32 v11, -v11
        v_add_f32 v11, 1.0, v11
        v_rcp_f32 v11, v11
        v_mul_f32 v11, v11, v{8+k}
        v_cvt_pk_bf16_f32 v11, v11, v11
        v_lshlrev_b32 v11, 16, v11
        ds_write_b32 v7, v11 offset:{1024*k}
        """)
    A("""
    v_lshlrev_b32 v5, 2, v5
    s_waitcnt lgkmcnt(0)
    s_barrier
    """)
    SV = 104
    for i in range(18):
        A(f"ds_read_b32 v{SV+i}, v5 offset:{32*i}")
    for k in range(8): A(f"v_mov_b32 v{16+k}, 0")
    A("s_mov_b32 s22, 0xffff0000")
    A("s_waitcnt lgkmcnt(0)")
    for i in range(18):
        A(f"s_waitcnt vmcnt({17-i})")
        for k in range(4):
            A(f"v_lshlrev_b32 v12, 16, v{W+4*i+k}")
            A(f"v_and_b32 v13, s22, v{W+4*i+k}")
            A(f"v_fmac_f32 v{16+2*k}, v12, v{SV+i}")
            A(f"v_fmac_f32 v{17+2*k}, v13, v{SV+i}")
    A(f"""
    v_lshrrev_b32 v12, 3, v0                   ; w*8 + r
    v_lshlrev_b32 v12, 8, v12
    v_lshl_add_u32 v12, v4, 5, v12
    ds_write_b128 v12, v[16:19] offset:3072
    ds_write_b128 v12, v[20:23] offset:3088
    s_waitcnt lgkmcnt(0)
    s_barrier
    v_cmp_gt_u32 vcc, 64, v0
    s_and_saveexec_b64 s[28:29], vcc
    s_cbranch_execz ka_done
    """)
    for i in range(32):
        A(f"ds_read_b32 v{W+i}, v7 offset:{3072+256*i}")
    A("s_waitcnt lgkmcnt(0)")
    st = 16
    while st >= 1:
        for i in range(st):
            A(f"v_add_f32 v{W+i}, v{W+i}, v{W+i+st}")
        st //= 2
    A(f"""
    v_cvt_pk_bf16_f32 v{W}, v{W}, v{W}
    v_lshlrev_b32 v{W}, 16, v{W}
    s_mul_i32 s23, s20, 57
    s_lshr_b32 s23, s23, 9                     ; chunk = m/9
    s_cmp_eq_u32 s23, 1
    s_cbranch_scc1 ka_mod_plus1
    s_cmp_eq_u32 s23, 4
    s_cbranch_scc0 ka_mod_store
    ka_mod_plus1:
    v_add_f32 v{W}, 1.0, v{W}
    v_cvt_pk_bf16_f32 v{W}, v{W}, v{W}
    v_lshlrev_b32 v{W}, 16, v{W}
    ka_mod_store:
    s_lshl_b32 s21, s20, 8
    buffer_store_dword v{W}, v7, s[24:27], s21 offen
    ; interleaved copy CS[(col%576)*2 + (chunk==3)] for chunks 3 (sb) and 4 (1+cb)
    s_sub_u32 s30, s23, 3
    s_cmp_gt_u32 s30, 1
    s_cbranch_scc1 ka_done
    s_mul_i32 s31, s23, 9
    s_sub_u32 s31, s20, s31                    ; m % 9
    s_lshl_b32 s31, s31, 9                     ; *64*8
    s_xor_b32 s30, s30, 1                      ; sb -> 1, c1b -> 0
    s_lshl_b32 s30, s30, 2
    s_add_u32 s31, s31, s30
    s_add_u32 s31, s31, {WS_CS}
    v_lshlrev_b32 v7, 3, v0
    buffer_store_dword v{W}, v7, s[24:27], s31 offen
    ka_done:
    s_endpgm
    """)
    return dict(name=name, vgpr=128, sgpr=40, accum=128, grid=KA_GRID, block=256, lds=KA_LDS)
```

```python
from common import *
import struct
f2h = lambda f: hex(struct.unpack("<I", struct.pack("<f", f))[0])

KB_GRID = 256
KB_MODL = 73728
KB_LDS = KB_MODL + 14336

def gen_kb(A, name="kb_kernel"):
    A.raw(kernel_header(name))
    A(f"""
    s_cmp_ge_u32 s2, {KB_GRID}
    s_cbranch_scc1 kb_done
    s_load_dwordx8 s[4:11], s[0:1], {KA_X}
    s_load_dwordx2 s[12:13], s[0:1], {KA_HIM}
    s_load_dwordx2 s[14:15], s[0:1], {KA_WS}
    s_load_dwordx2 s[16:17], s[0:1], {KA_W1}
    s_and_b32 s20, s2, 7                          ; xcd
    s_lshr_b32 s21, s2, 3                         ; idx
    s_mul_i32 s22, s21, 43
    s_lshr_b32 s22, s22, 8                        ; idx/6
    s_mul_i32 s23, s22, 6
    s_sub_u32 s23, s21, s23                       ; et
    s_lshl_b32 s22, s22, 3
    s_add_u32 s22, s22, s20                       ; class
    v_and_b32 v1, 63, v0
    v_lshrrev_b32 v2, 6, v0
    s_nop 0
    v_readfirstlane_b32 s24, v2                   ; wave
    s_cmp_gt_u32 s22, 32
    s_cbranch_scc1 kb_side
    s_lshr_b32 s25, s24, 1                        ; p
    s_and_b32 s26, s24, 1                         ; dh
    s_and_b32 s27, s22, 31
    s_cmp_lg_u32 s27, 0
    s_cselect_b32 s27, -1, 0
    s_and_b32 s28, s27, 32
    s_add_u32 s28, s28, s22
    s_cmp_lg_u32 s25, 0
    s_cselect_b32 s29, s28, s22
    s_mul_i32 s29, s29, 36864
    s_mul_i32 s30, s26, 18432
    s_add_u32 s29, s29, s30                       ; Z soffset (a=0)
    s_add_u32 s30, s29, 9216                      ; a=1
    s_mul_i32 s31, s24, 18432
    """)
    for b in range(9):
        A(f"""
        v_add_u32 v3, {64*b}, v1
        v_mul_u32_u24 v4, 911, v3
        v_lshrrev_b32 v4, 16, v4                  ; row
        v_mul_u32_u24 v5, 72, v4
        v_sub_u32 v3, v3, v5                      ; slot
        v_and_b32 v5, 6, v4                       ; 2*((row>>1)&3)
        v_xor_b32 v3, v3, v5
        v_mul_u32_u24 v4, 1152, v4
        v_lshl_add_u32 v{8+b}, v3, 4, v4
        """)
    A("s_waitcnt lgkmcnt(0)")
    srd(A, 32, 14, SZ_ACT, WS_Z)
    srd(A, 36, 14, 13824, WS_MOD)
    A("s_mov_b32 m0, s31")
    for n in range(18):
        a, b = divmod(n, 9)
        A(f"buffer_load_dwordx4 v{8+b}, s[32:35], s{29+a} offen lds")
        if n < 17:
            A("s_add_u32 m0, m0, 1024")
    A(f"""
    v_lshlrev_b32 v3, 4, v1
    s_lshl_b32 s40, s24, 10
    s_add_u32 s41, s40, {KB_MODL}
    s_mov_b32 m0, s41
    """)
    for k in range(4):
        if k == 3:
            A("s_cmp_gt_u32 s24, 1")
            A("s_cbranch_scc1 kb_modskip")
        A(f"buffer_load_dwordx4 v3, s[36:39], s40 offen lds")
        if k < 3:
            A("s_add_u32 m0, m0, 4096")
            A("s_add_u32 s40, s40, 4096")
    A("s_branch kb_moddone")
    A.label("kb_modskip")
    A("s_sub_u32 m0, m0, 4096")
    A("s_sub_u32 s40, s40, 4096")
    A(f"buffer_load_dwordx4 v3, s[36:39], s40 offen lds")
    A.label("kb_moddone")
    A(f"""
    s_cmp_lg_u32 s25, 0
    s_cselect_b32 s44, s8, s6
    s_cselect_b32 s45, s9, s7
    s_cselect_b32 s48, s6, s8
    s_cselect_b32 s49, s7, s9
    s_cselect_b32 s52, s12, s10
    s_cselect_b32 s53, s13, s11
    s_cselect_b32 s42, 0x80008000, 0              ; m1
    s_and_b32 s45, s45, 0xffff
    s_and_b32 s49, s49, 0xffff
    s_and_b32 s53, s53, 0xffff
    s_mov_b32 s46, {S*S*2}
    s_mov_b32 s47, 0x20000
    s_mov_b32 s50, {S*S*2}
    s_mov_b32 s51, 0x20000
    s_mov_b32 s54, {D*D*2}
    s_mov_b32 s55, 0x20000
    v_and_b32 v4, 15, v1                          ; tok / i
    v_lshrrev_b32 v5, 4, v1                       ; g
    v_lshlrev_b32 v6, 6, v4
    v_add_u32 v6, s22, v6                         ; t (tt=0)
    v_lshlrev_b32 v7, 12, v6
    v_lshl_add_u32 v7, v5, 3, v7                  ; t*4096 + 8g
    s_mov_b32 s43, {16*64*4096}
    """)
    B1, B2 = 20, 28
    for tt in range(2):
        so = "s43" if tt else "0"
        for h in range(2):
            A(f"buffer_load_dwordx2 {vr(B1+4*tt+2*h,2)}, v7, s[44:47], {so} offen offset:{32*h}")
            A(f"buffer_load_dwordx2 {vr(B2+4*tt+2*h,2)}, v7, s[48:51], {so} offen offset:{32*h}")
    A(f"""
    v_lshrrev_b32 v8, 2, v4                       ; g'
    v_and_b32 v9, 3, v4                           ; r'
    v_lshl_add_u32 v8, v8, 3, v9
    s_mul_i32 s62, s23, 96
    v_add_u32 v8, s62, v8
    v_mul_u32_u24 v17, 1152, v8
    v_lshl_add_u32 v17, v5, 4, v17
    s_mul_i32 s63, s26, 576
    """)
    for E in range(6):
        A(f"s_add_u32 s{56+E}, s63, {(32*(E>>1) + 4*(E&1))*1152}")
    for a in range(9):
        for E in range(6):
            A(f"buffer_load_dwordx4 {vr(4*(6*a+E),4,'a')}, v17, s[52:55], s{56+E} offen offset:{64*a}")
    NW = 54
    A(f"""
    v_bfe_u32 v12, v1, 2, 2                       ; r'
    v_lshl_add_u32 v12, v5, 2, v12                ; row = 4g + r'
    v_and_b32 v13, 6, v12
    v_lshlrev_b32 v13, 4, v13                     ; F = 32*((row>>1)&3)
    v_mul_u32_u24 v12, 1152, v12
    v_and_b32 v14, 3, v1
    v_lshl_add_u32 v12, v14, 3, v12               ; + 8c'
    s_lshl_b32 s64, s26, 9                        ; 512 dh
    v_add_u32 v12, s64, v12
    s_lshl_b32 s65, s26, 1                        ; 2 dh
    """)
    for k in range(4):
        A(f"""
        s_add_u32 s66, s65, {k}
        s_lshr_b32 s67, s66, 2
        s_lshl_b32 s67, s67, 7
        s_and_b32 s66, s66, 3
        s_lshl_b32 s66, s66, 5
        v_xor_b32 v14, s66, v13
        v_add3_u32 v{8+k}, v12, v14, s67
        """)
    A(f"""
    s_mul_i32 s66, s26, 1152
    s_add_u32 s66, s66, {KB_MODL}
    v_lshlrev_b32 v18, 5, v5
    v_add_u32 v18, s66, v18
    s_or_b32 s67, s22, s25
    s_cmp_eq_u32 s67, 0
    s_cselect_b32 s67, {f2h(2048.0)}, 0
    v_mov_b32 v36, s67
    v_cmp_eq_u32 vcc, 0, v4
    v_cndmask_b32 v36, 0, v36, vcc
    """)
    A(f"s_waitcnt vmcnt({NW})")
    A("s_mov_b32 s66, 0x80008000")
    for k in range(8):
        A(f"v_xor_b32 v{B1+k}, s42, v{B1+k}")
        A(f"v_xor_b32 v{B2+k}, s66, v{B2+k}")
        A(f"v_and_b32 v{B2+k}, s27, v{B2+k}")
    A("s_barrier")
    YACC = 40
    AF = 88
    A2 = 120
    HF = 152
    SC = 168
    XR = 200
    def reads(a):
        s = a & 1
        for Ti in range(2):
            T = 2*a + Ti
            for ks in range(2):
                for h in range(2):
                    off = 128*(T >> 2) + 18432*h + 36864*ks
                    A(f"ds_read_b64_tr_b16 {vr(AF+16*s+4*(2*Ti+ks)+2*h,2)}, v{8+(T&3)} offset:{off}")
        for k in range(2):
            A(f"ds_read_b128 {vr(SC+16*s+4*k,4)}, v18 offset:{2304+128*a+16*k}")
            A(f"ds_read_b128 {vr(SC+16*s+8+4*k,4)}, v18 offset:{128*a+16*k}")
    def s2mfma(a):
        s = a & 1
        for ks in range(2):
            for Ti in range(2):
                for tt in range(2):
                    d = vr(A2+16*s+4*(2*Ti+tt),4)
                    c = "0" if ks == 0 else d
                    B = (B1 if ks == 0 else B2) + 4*tt
                    A(f"v_mfma_f32_16x16x32_bf16 {d}, {vr(AF+16*s+4*(2*Ti+ks),4)}, {vr(B,4)}, {c}")
    def scale(a):
        s = a & 1
        sc = SC + 16*s
        for k in range(4):
            A(f"v_pk_mul_f32 {vr(sc+8+2*k,2)}, {vr(sc+8+2*k,2)}, v[36:37] op_sel_hi:[1,0]")
        for tt in range(2):
            for Ti in range(2):
                for k in range(2):
                    r = A2+16*s+4*(2*Ti+tt)+2*k
                    c = sc + 4*Ti + 2*k
                    if tt == 0:
                        A(f"v_pk_fma_f32 {vr(r,2)}, {vr(r,2)}, {vr(c,2)}, {vr(c+8,2)}")
                    else:
                        A(f"v_pk_mul_f32 {vr(r,2)}, {vr(r,2)}, {vr(c,2)}")
                    A(f"v_cvt_pk_bf16_f32 v{HF+8*s+4*tt+2*Ti+k}, v{r}, v{r+1}")
    def dft(a):
        s = a & 1
        for E in range(6):
            for tt in range(2):
                d = vr(YACC+4*(2*E+tt),4)
                c = "0" if a == 0 else d
                A(f"v_mfma_f32_16x16x32_bf16 {d}, {vr(4*(6*a+E),4,'a')}, {vr(HF+8*s+4*tt,4)}, {c}")
    A(f"""
    s_lshr_b32 s68, s24, 1                        ; dir
    s_and_b32 s69, s24, 1                         ; tt
    s_lshl_b32 s70, s69, 10                       ; 64*16*tt
    v_add_u32 v38, s70, v6                        ; t
    v_sub_u32 v39, 2048, v38
    s_cmp_lg_u32 s68, 0
    s_cselect_b64 vcc, -1, 0
    v_cndmask_b32 v38, v38, v39, vcc
    v_mul_u32_u24 v38, 1152, v38
    v_lshl_add_u32 v38, v5, 4, v38
    s_mul_i32 s71, s23, 192
    """)
    srd(A, 72, 4, SZ_ACT)
    for k in range(3):
        A(f"buffer_load_dwordx4 {vr(XR+4*k,4)}, v38, s[72:75], s71 offen offset:{64*k}")
    NX = 3
    reads(0)
    reads(1)
    A("s_waitcnt lgkmcnt(12)")
    s2mfma(0)
    scale(0)
    for a in range(9):
        if a + 1 < 9:
            A("s_waitcnt lgkmcnt(0)")
            s2mfma(a+1)
        if a + 2 < 9:
            reads(a+2)
        A(f"s_waitcnt vmcnt({NX + 6*(8-a)})")
        dft(a)
        if a + 1 < 9:
            scale(a+1)
    A("s_barrier")
    A(f"""
    s_mul_i32 s76, s24, 12288
    v_lshlrev_b32 v8, 4, v1
    v_add_u32 v9, s76, v8
    """)
    for i in range(12):
        A(f"ds_write_b128 v9, {vr(YACC+4*i,4)} offset:{1024*i}")
    A(f"""
    s_waitcnt lgkmcnt(0)
    s_barrier
    s_and_b32 s76, s68, s27
    s_cmp_lg_u32 s76, s68
    s_cbranch_scc1 kb_done
    s_lshl_b32 s76, s69, 10
    v_add_u32 v9, s76, v8
    """)
    PR = 40
    for w in range(4):
        for E in range(6):
            A(f"ds_read_b128 {vr(PR+24*w+4*E,4)}, v9 offset:{12288*w+2048*E}")
    GA, CB = 136, 160
    A(f"""
    s_mul_i32 s76, s23, 384
    s_add_u32 s76, s76, {KB_MODL}
    v_lshlrev_b32 v10, 5, v5
    v_add_u32 v10, s76, v10
    """)
    for k in range(6):
        A(f"ds_read_b128 {vr(GA+4*k,4)}, v10 offset:{1152*4+128*(k>>1)+16*(k&1)}")
        A(f"ds_read_b128 {vr(CB+4*k,4)}, v10 offset:{2304*4+128*(k>>1)+16*(k&1)}")
    A(f"""
    s_cmp_lg_u32 s68, 0
    s_cselect_b32 s76, -1.0, 1.0
    v_mov_b32 v12, s76
    s_sub_u32 s77, 64, s22
    s_cselect_b32 s77, s77, s22
    """)
    A.items.pop(); A.items.pop()
    A(f"""
    s_sub_u32 s77, 64, s22
    s_cmp_lg_u32 s68, 0
    s_cselect_b32 s77, s77, s22                   ; beta
    s_lshl_b32 s78, s69, 4
    v_add_u32 v13, s78, v4                        ; tau%32
    s_lshl_b32 s79, s77, 5
    v_add_u32 v14, s79, v13                       ; tau
    v_mul_u32_u24 v15, 1152, v14
    v_lshl_add_u32 v15, v5, 4, v15
    ; X1S offset: ((beta*36 + 6et + 2a' + (g>>1))*64 + tau%32 + 32*(g&1))*16
    v_lshrrev_b32 v16, 1, v5
    v_lshlrev_b32 v16, 6, v16
    v_and_b32 v17, 1, v5
    v_lshl_add_u32 v16, v17, 5, v16
    v_add_u32 v16, v16, v13
    v_lshlrev_b32 v16, 4, v16
    s_mul_i32 s79, s77, 36
    s_mul_i32 s80, s23, 6
    s_add_u32 s79, s79, s80
    s_lshl_b32 s79, s79, 10
    v_lshlrev_b32 v17, 6, v14
    s_lshl_b32 s80, s23, 3
    s_mov_b32 s81, 0xffff0000
    """)
    srd(A, 84, 14, SZ_ACT, WS_X1)
    srd(A, 88, 14, SZ_ACT, WS_X1S)
    srd(A, 92, 14, SZ_STAT, WS_STAT)
    A("s_waitcnt vmcnt(0) lgkmcnt(0)")
    A("v_mov_b32 v18, 0")
    A("v_mov_b32 v19, 0")
    A("s_mov_b32 s82, 0x3f803f80")
    for k in range(12):
        r = PR + 2*k
        A(f"v_pk_add_f32 {vr(r,2)}, {vr(r,2)}, {vr(r+24,2)}")
        A(f"v_pk_add_f32 {vr(r+48,2)}, {vr(r+48,2)}, {vr(r+72,2)}")
        A(f"v_pk_fma_f32 {vr(r,2)}, {vr(r+48,2)}, v[12:13], {vr(r,2)} op_sel_hi:[1,0,1]")
        A(f"v_lshlrev_b32 v20, 16, v{XR+k}")
        A(f"v_and_b32 v21, s81, v{XR+k}")
        A(f"v_pk_fma_f32 {vr(r,2)}, {vr(r,2)}, {vr(GA+2*k,2)}, v[20:21]")
        A(f"v_cvt_pk_bf16_f32 v{XR+k}, v{r}, v{r+1}")
        A(f"v_lshlrev_b32 v20, 16, v{XR+k}")
        A(f"v_and_b32 v21, s81, v{XR+k}")
        A(f"v_dot2_f32_bf16 v18, v{XR+k}, s82, v18")
        A(f"v_dot2_f32_bf16 v19, v{XR+k}, v{XR+k}, v19")
        A(f"v_pk_mul_f32 v[20:21], v[20:21], {vr(CB+2*k,2)}")
        A(f"v_cvt_pk_bf16_f32 v{212+k}, v20, v21")
    for k in range(3):
        A(f"buffer_store_dwordx4 {vr(XR+4*k,4)}, v15, s[84:87], s71 offen offset:{64*k}")
        A(f"buffer_store_dwordx4 {vr(212+4*k,4)}, v16, s[88:91], s79 offen")
        if k < 2: A("s_add_u32 s79, s79, 2048")
    for sw in ("v_permlane16_swap_b32", "v_permlane32_swap_b32"):
        A(f"""
        v_mov_b32 v20, v18
        v_mov_b32 v21, v19
        {sw} v18, v20
        {sw} v19, v21
        v_add_f32 v18, v18, v20
        v_add_f32 v19, v19, v21
        """)
    A(f"""
    v_cmp_gt_u32 vcc, 16, v1
    s_and_saveexec_b64 s[96:97], vcc
    buffer_store_dwordx2 v[18:19], v17, s[92:95], s80 offen
    s_endpgm
    """)

    A.label("kb_side")
    A(f"""
    s_sub_u32 s25, s21, 24
    s_mul_i32 s26, s25, 7
    s_add_u32 s26, s26, s20
    s_sub_u32 s26, s26, 1
    s_sub_u32 s27, s21, 30
    s_lshl_b32 s27, s27, 3
    s_add_u32 s27, s27, s20
    s_add_u32 s27, s27, 42
    s_cmp_ge_u32 s21, 30
    s_cselect_b32 s26, s27, s26                   ; sid
    s_cmp_ge_u32 s26, 54
    s_cbranch_scc1 kb_done
    s_mul_i32 s27, s26, 57
    s_lshr_b32 s27, s27, 10
    s_mul_i32 s28, s27, 18
    s_sub_u32 s28, s26, s28                       ; cc
    s_mul_i32 s29, s27, 192
    s_mul_i32 s30, s24, 48
    s_add_u32 s29, s29, s30
    s_mul_i32 s30, s29, 9216
    s_lshl_b32 s31, s28, 9
    s_add_u32 s30, s30, s31                       ; soffset
    v_lshlrev_b32 v3, 3, v1
    s_waitcnt lgkmcnt(0)
    """)
    srd(A, 32, 16, D*F*2)
    W = 32
    for i in range(48):
        A(f"buffer_load_dwordx2 {vr(W+2*i,2)}, v3, s[32:35], s30 offen")
        if i < 47: A(f"s_add_u32 s30, s30, 9216")
    A(f"""
    s_lshl_b32 s29, s29, 3
    s_add_u32 s36, s14, s29
    s_addc_u32 s37, s15, 0
    s_add_u32 s36, s36, {WS_CS}
    s_addc_u32 s37, s37, 0
    s_mov_b32 s38, 0xffff0000
    """)
    for k in range(8): A(f"v_mov_b32 v{8+k}, 0")
    for bt in range(3):
        A(f"s_load_dwordx16 s[48:63], s[36:37], {128*bt}")
        A(f"s_load_dwordx16 s[64:79], s[36:37], {128*bt+64}")
        A("s_waitcnt lgkmcnt(0)")
        for ii in range(16):
            i = 16*bt + ii
            A(f"s_waitcnt vmcnt({47-i})")
            sp = 48 + 2*ii
            for k in range(2):
                A(f"v_lshlrev_b32 v16, 16, v{W+2*i+k}")
                A(f"v_and_b32 v17, s38, v{W+2*i+k}")
                A(f"v_pk_fma_f32 {vr(8+4*k,2)}, v[16:17], s[{sp}:{sp+1}], {vr(8+4*k,2)} op_sel_hi:[0,1,1]")
                A(f"v_pk_fma_f32 {vr(10+4*k,2)}, v[16:17], s[{sp}:{sp+1}], {vr(10+4*k,2)} op_sel:[1,0,0] op_sel_hi:[1,1,1]")
    A(f"""
    v_lshlrev_b32 v4, 5, v0
    ds_write_b128 v4, v[8:11]
    ds_write_b128 v4, v[12:15] offset:16
    s_waitcnt lgkmcnt(0)
    s_barrier
    v_lshlrev_b32 v4, 3, v0
    ds_read_b64 v[8:9], v4
    ds_read_b64 v[10:11], v4 offset:2048
    ds_read_b64 v[12:13], v4 offset:4096
    ds_read_b64 v[14:15], v4 offset:6144
    """)
    srd(A, 40, 14, SZ_G, WS_G)
    A(f"""
    s_mul_i32 s44, s27, {2*F*4}
    s_lshl_b32 s45, s28, 10
    s_add_u32 s44, s44, s45
    s_add_u32 s45, s44, {F*4}
    v_lshlrev_b32 v4, 2, v0
    s_waitcnt lgkmcnt(0)
    v_pk_add_f32 v[8:9], v[8:9], v[10:11]
    v_pk_add_f32 v[12:13], v[12:13], v[14:15]
    v_pk_add_f32 v[8:9], v[8:9], v[12:13]
    buffer_store_dword v8, v4, s[40:43], s44 offen
    buffer_store_dword v9, v4, s[40:43], s45 offen
    kb_done:
    s_endpgm
    """)
    return dict(name=name, vgpr=224+216, sgpr=100, accum=224, grid=KB_GRID, block=256, lds=KB_LDS)
```

```python
import sys
from common import *
from ka2 import gen_ka
from kbf import gen_kbf
def build(path):
    ks = []
    bodies = []
    for g in (gen_ka, gen_kbf):
        A = Asm()
        ks.append(g(A))
        bodies.append(A.finish())
    hdr = open("adaLN_cond__spectral_fnet__dense_activation_relu__prompt.s.ref").read().split("; Override launch")[0]
    out = hdr
    for k in ks:
        out += f"; @launch kernel={k['name']} grid=({k['grid']},1,1) block=({k['block']},1,1) lds={k['lds']}\n"
    out += '.amdgcn_target "amdgcn-amd-amdhsa--gfx950"\n.text\n'
    out += "".join(bodies)
    out += ".p2align 10\ncode_end:\n    s_endpgm\n.p2align 10\n    s_endpgm\n"
    out += '.section .rodata,"a"\n'
    for k in ks:
        out += descriptor(k['name'], k['vgpr'], k['sgpr'], k['accum'])
    open(path, "w").write(out)
if __name__ == "__main__":
    build(sys.argv[1] if len(sys.argv) > 1 else "adaLN_cond__spectral_fnet__dense_activation_relu__prompt.s")
```

```python
from asmlib import *
S, D, F = 2048, 576, 4608
KA_X, KA_SRE, KA_SIM, KA_HRE, KA_HIM, KA_BX, KA_W1, KA_W2, KA_C, KA_WMOD, KA_OUT, KA_DBG, KA_WS = [8 * i for i in range(13)]
WS_MOD = 0
WS_CS = 0x4000
WS_Z = 0x10000
SZ_ACT = S * D * 2
WS_X1 = WS_Z + SZ_ACT
WS_X1S = WS_X1 + SZ_ACT
WS_STAT = WS_X1S + SZ_ACT
SZ_STAT = 2048 * 64
WS_G = WS_STAT + SZ_STAT
SZ_G = 3 * 2 * F * 4
WS_H1 = WS_G + 0x20000
SZ_H1 = S * F * 2
WS_PART = WS_H1 + SZ_H1
SZ_PART = 4 * S * D * 4

def srd(A, d, base, size, off=0):
    if off:
        A(f"s_add_u32 s{d}, s{base}, {off}")
        A(f"s_addc_u32 s{d+1}, s{base+1}, 0")
        A(f"s_and_b32 s{d+1}, s{d+1}, 0xffff")
    else:
        A(f"s_mov_b32 s{d}, s{base}")
        A(f"s_and_b32 s{d+1}, s{base+1}, 0xffff")
    A(f"s_mov_b32 s{d+2}, {size}")
    A(f"s_mov_b32 s{d+3}, 0x20000")

def vr(a, n=1, t="v"):
    return f"{t}{a}" if n == 1 else f"{t}[{a}:{a+n-1}]"

import os
PROF = os.environ.get("PROF", "0") == "1"
WS_PROF = 200 << 20
class Prof:
    def __init__(self, A, base, slot):
        self.A, self.base, self.n, self.slot = A, base, 0, slot
    def stamp(self):
        if not PROF: return
        self.A(f"s_memtime s[{self.base+2*self.n}:{self.base+2*self.n+1}]")
        self.n += 1
    def rt(self):
        if not PROF: return
        self.A(f"s_memrealtime s[{self.base+2*self.n}:{self.base+2*self.n+1}]")
        self.n += 1
    def flush(self, ws_sgpr, wave_sgpr, srd_base, vtmp):
        if not PROF: return
        A = self.A
        A("s_waitcnt lgkmcnt(0)")
        srd(A, srd_base, ws_sgpr, 1 << 24, WS_PROF + self.slot * (1 << 20))
        A(f"s_lshl_b32 s{srd_base+4}, s2, 3")
        A(f"s_add_u32 s{srd_base+4}, s{srd_base+4}, s{wave_sgpr}")
        A(f"s_lshl_b32 s{srd_base+4}, s{srd_base+4}, 7")
        A(f"s_mov_b64 exec, 1")
        A(f"v_mov_b32 v{vtmp+1}, 0")
        for i in range(self.n):
            A(f"v_mov_b32 v{vtmp}, s{self.base+2*i}")
            A(f"buffer_store_dword v{vtmp}, v{vtmp+1}, s[{srd_base}:{srd_base+3}], s{srd_base+4} offen offset:{4*i}")

WS_WDP = WS_PART + SZ_PART + (4 << 20)
SZ_WDP = 2 * 36 * 18 * 1024
WS_FL1 = WS_WDP + SZ_WDP
WS_FL2 = WS_FL1 + 256 * 128
SZ_FL = 2 * 256 * 128
SZ_PART2 = 64 * 4 * 4 * 4 * 5 * 1024
assert SZ_PART2 <= SZ_PART + (4 << 20)
import struct
f2h = lambda f: hex(struct.unpack("<I", struct.pack("<f", f))[0])

class Cnt:
    def __init__(self, maxn):
        self.order = []; self.done = 0; self.maxn = maxn
    def issue(self, tag): self.order.append(tag)
    def need(self, pred):
        idx = [i for i, t in enumerate(self.order) if pred(t)]
        if not idx: return None
        last = idx[-1]
        if last < self.done: return None
        n = len(self.order) - 1 - last
        if n > self.maxn: n = self.maxn; last = len(self.order) - 1 - n
        self.done = max(self.done, last + 1)
        return n
    def complete(self, pred):
        return all(i < self.done for i, t in enumerate(self.order) if pred(t))
WS_W1P = WS_FL1 + SZ_FL
SZ_WP = D * F * 2
WS_W2P = WS_W1P + SZ_WP
SZ_PART3 = 64 * 4 * 9 * 2 * 4 * 1024
assert SZ_PART3 <= SZ_PART + (4 << 20)
ROT = [2, 4, 6, 0]

PARTS = [int(x) for x in os.environ.get('PARTS', '8,6,4').split(',')]
PST = [sum(PARTS[:i]) for i in range(len(PARTS) + 1)]
```

```python
from common import *
STG = 36864
NSLOT = 4
F_GL = NSLOT * STG
F_LDS = F_GL + 4608
E = lambda k, d: int(os.environ.get(k, str(d)))
DIST = E('DIST', 10)
RING = E('RING', 13)
NTM = E('NTM', 2)
NP = len(PARTS)
LST = [x // 2 for x in PST]
P2 = [(0, l) for l in range(9)] + [(d, l) for p in range(NP) for d in (1, 2, 3) for l in range(LST[p], LST[p+1])]
partof = lambda l: max(p for p in range(NP) if LST[p] <= l)

def stats_to_ms(A, vst, vm, vsig, tmp):
    for a, b in ((0, 2), (4, 6), (8, 10), (0, 4), (0, 8)):
        A(f"v_add_f32 v{vst+a}, v{vst+a}, v{vst+b}")
        A(f"v_add_f32 v{vst+a+1}, v{vst+a+1}, v{vst+b+1}")
    A(f"v_mul_f32 v{vm}, {f2h(-1.0/576)}, v{vst}")
    A(f"v_mul_f32 v{tmp}, {f2h(1.0/576)}, v{vst+1}")
    A(f"v_fma_f32 v{tmp}, -v{vm}, v{vm}, v{tmp}")
    A(f"v_max_f32 v{tmp}, 0, v{tmp}")
    A(f"v_add_f32 v{tmp}, {f2h(1e-5)}, v{tmp}")
    A(f"v_sqrt_f32 v{vsig}, v{tmp}")

class Rec:
    def __init__(self): self.l = []
    def __call__(self, t):
        for x in t.strip().split("\n"):
            x = x.split(";")[0].strip()
            if x: self.l.append(x)

def gen_ffn(A, name="ffn_kernel"):
    A.raw(kernel_header(name))
    P = Prof(A, 70, 2)
    A(f"""
    s_cmp_ge_u32 s2, 256
    s_cbranch_scc1 ffn_done
    """)
    P.rt(); P.stamp()
    A(f"""
    s_load_dwordx2 s[60:61], s[0:1], {KA_WS}
    s_load_dwordx2 s[62:63], s[0:1], {KA_OUT}
    s_and_b32 s20, s2, 7                 ; xcd
    s_lshr_b32 s21, s2, 3                ; idx
    s_and_b32 s22, s20, 1
    s_lshl_b32 s22, s22, 3
    s_lshr_b32 s23, s21, 2
    s_add_u32 s22, s22, s23              ; taub
    s_lshr_b32 s23, s20, 1               ; q
    s_and_b32 s21, s21, 3                ; j
    s_lshl_b32 s25, s23, 2
    s_add_u32 s25, s25, s21              ; fb = 4q + j
    s_mul_i32 s29, s21, 9
    s_lshr_b32 s29, s29, 1
    v_and_b32 v1, 63, v0
    v_lshrrev_b32 v2, 6, v0
    v_lshlrev_b32 v26, 4, v1             ; lane*16
    v_readfirstlane_b32 s24, v2          ; wave
    v_mov_b32 v30, 0x7ffffff0
    v_add_u32 v25, {18*1024}, v26
    s_mul_i32 s30, s25, {36*9216}
    s_mul_i32 s26, s24, 9216
    s_add_u32 s31, s30, {SZ_WP}
    s_add_u32 s30, s30, s26
    s_lshl_b32 s27, s22, 2
    s_add_u32 s27, s27, s24              ; beta
    s_mul_i32 s28, s27, {36*1024}
    s_add_u32 s5, s28, {18*1024}
    s_lshl_b32 s4, s29, 10
    s_add_u32 s4, s4, s28
    s_lshl_b32 s65, s24, 3               ; 8*w
    v_and_b32 v6, 15, v1                 ; tok
    v_lshrrev_b32 v7, 4, v1              ; g
    s_waitcnt lgkmcnt(0)
    """)
    srd(A, 8, 60, 2*SZ_WP, WS_W1P)
    srd(A, 16, 60, SZ_ACT, WS_X1S)
    VM = Cnt(63); LG = Cnt(15)
    ABL = os.environ.get('ABL', '').split(',')
    cur = [0]
    def vm(tag, txt):
        key = tag[0] if isinstance(tag, tuple) else tag
        if key in ABL: txt = txt.replace("v26,", "v30,").replace("v25,", "v30,")
        A(txt); VM.issue(tag)
    def lg(tag, txt): A(txt); LG.issue(tag)
    def waitvm(pred):
        n = VM.need(pred)
        if n is not None: A(f"s_waitcnt vmcnt({n})")
    def waitlg(pred):
        n = LG.need(pred)
        if n is not None: A(f"s_waitcnt lgkmcnt({n})")
    def dma_group(g):
        ops = []
        sreg = 68 + (g & 1)
        if g < 9:
            pre = [f"s_add_u32 s{sreg}, s30, {g*STG}"]
        else:
            lit = 0
            for w in range(4):
                d, l = P2[4*(g-9) + w]
                lit |= (d*16 + l) << (8*w)
            pre = [f"s_lshr_b32 s66, {hex(lit)}, s65", "s_lshr_b32 s67, s66, 4", "s_add_u32 s67, s67, s21", "s_and_b32 s67, s67, 3",
                   "s_mul_i32 s67, s67, 9", "s_and_b32 s66, s66, 15", "s_add_u32 s66, s66, s67",
                   f"s_mul_i32 s66, s66, 9216", f"s_add_u32 s{sreg}, s66, s31"]
        for n in range(9):
            op = [(None, x) for x in pre] if n == 0 else []
            if n % 4 == 0:
                if n: op.append((None, f"s_add_u32 s{sreg}, s{sreg}, 4096"))
                op.append((None, f"s_add_u32 m0, s26, {(g % NSLOT)*STG + 1024*n}"))
            op.append((("dma", g), f"buffer_load_dwordx4 v26, s[8:11], s{sreg} offen offset:{1024*(n%4)} lds"))
            ops.append(op)
        return ops
    def xfr(kk, tt): return vr(8*kk + 4*tt, 4, 'a')
    def x1s_op(kk, tt):
        op = [(("x1s", kk), f"buffer_load_dwordx4 {xfr(kk,tt)}, v{26-tt}, s[16:19], s4 offen")]
        if tt == 1 and kk < 17:
            op += [(None, x) for x in ("s_add_u32 s4, s4, 1024", "s_cmp_eq_u32 s4, s5", "s_cselect_b32 s4, s28, s4")]
        return op
    def emit(op):
        for tag, txt in op:
            if tag is None: A(txt)
            else: vm(tag, txt)
    XP = E('XP', 5)
    for op in dma_group(0): emit(op)
    for kk in range(XP):
        for tt in range(2): emit(x1s_op(kk, tt))
    for op in dma_group(1): emit(op)
    ST, GP = 208, 232
    srd(A, 32, 60, SZ_H1, WS_H1)
    srd(A, 36, 60, SZ_FL, WS_FL1)
    srd(A, 40, 60, SZ_STAT, WS_STAT)
    srd(A, 44, 60, SZ_G, WS_G)
    srd(A, 12, 60, SZ_PART3, WS_PART)
    A(f"""
    s_lshl_b32 s66, s27, 5
    v_add_u32 v252, s66, v6
    v_lshlrev_b32 v252, 6, v252
    v_lshlrev_b32 v253, 3, v0
    v_cmp_lt_u32 vcc, 143, v0
    v_cndmask_b32 v253, v253, v30, vcc
    v_lshlrev_b32 v4, 5, v0
    v_add_u32 v4, {F_GL}, v4
    s_mul_i32 s64, s25, 1152
    v_add_u32 v27, {STG}, v26
    v_add_u32 v28, {2*STG}, v26
    v_add_u32 v29, {3*STG}, v26
    v_lshlrev_b32 v31, 4, v6
    v_add_u32 v31, {F_GL}, v31
    s_mul_i32 s48, s27, {2*144*1024}
    s_mul_i32 s66, s25, {9*1024}
    s_add_u32 s50, s48, s66
    s_add_u32 s51, s50, {144*1024}
    s_add_u32 s52, s50, 4096
    s_add_u32 s53, s51, 4096
    s_add_u32 s54, s50, 8192
    s_add_u32 s55, s51, 8192
    s_mul_i32 s66, s23, {36*1024}
    s_add_u32 s48, s48, s66              ; cluster base (beta, q), tt=0
    s_lshl_b32 s56, s27, 2
    s_add_u32 s57, s56, s23
    s_lshl_b32 s57, s57, 7
    s_add_u32 s58, s56, s21
    s_mul_i32 s56, s58, {9*4*1024}
    s_lshl_b32 s58, s58, 7
    s_add_u32 s58, s58, {256*128}
    s_lshl_b32 s59, s21, 2
    v_mov_b32 v2, s59                    ; 4j
    v_mov_b32 v5, 0
    v_mov_b32 v3, 1
    s_mov_b32 s6, 0xffff0000
    """)
    early = []
    for tt in range(2):
        for k in range(3):
            early.append([("st", f"buffer_load_dwordx4 {vr(ST+12*tt+4*k,4)}, v252, s[40:43], 0 offen offset:{1024*tt+16*k}")])
    for k in range(6):
        early.append([("st", f"buffer_load_dwordx2 {vr(GP+2*k,2)}, v253, s[44:47], s64 offen")] + ([(None, f"s_add_u32 s64, s64, {F*4}")] if k < 5 else []))
    ACC = 32
    def aring(s):
        if s < 8: return vr(176 + 4*s, 4)
        if s == 8: return vr(244, 4)
        return vr(240 + 4*(s-9), 4, 'a')
    def acc1(t, tt): return ACC + 8*t + 4*tt
    def acc2(T, tt): return acc1(2*T+1, tt)
    SIG, NM = 248, 250
    SF = 8
    FLG = 252
    def hbase(k2):
        n = k2 - 9
        return 144 + 8*n if n < 12 else 8*(n - 12)
    def hfrag(k2, tt):
        d, l = P2[k2]
        if d == 0: return vr(acc1(2*l, tt), 4)
        return vr(hbase(k2) + 4*tt, 4, 'a')
    seq = []; PE = []; nf = 0
    for p in range(NP):
        for kk in range(18):
            for t in range(PST[p], PST[p+1]):
                seq.append((('w', nf), t, ('x', kk), kk == 0)); nf += 1
        for t in range(PST[p], PST[p+1]): seq.append((('g', t), t, ('s', 0), False))
        PE.append(len(seq))
    S2 = len(seq)
    KT = 36 - 4*NTM
    o2 = [(k2, T) for k2 in range(KT) for T in range(9)] + [(k2, T) for T in range(9) for k2 in range(KT, 36)]
    for k2, T in o2: seq.append((('w', 324 + 9*k2 + T), 2*T+1, ('h', k2), k2 == 0))
    NS = len(seq)
    TM0 = S2 + KT*9
    first_read = {}
    for i, e in enumerate(seq):
        if e[0][0] == 'w': first_read.setdefault(min(e[0][1] // 36, 18 - NTM), i)
    bar_at = {i: g for g, i in first_read.items() if g > 0}
    Bpos = lambda g: first_read[min(g, 18 - NTM)] - DIST
    xlast = {kk: max(i for i, e in enumerate(seq) if e[2] == ('x', kk)) for kk in range(18)}
    xfirst = {kk: min(i for i, e in enumerate(seq) if e[2] == ('x', kk)) for kk in range(18)}
    hfirst = {k2: min(i for i, e in enumerate(seq) if e[2] == ('h', k2)) for k2 in range(36)}
    def read1(i):
        kind, f = seq[i][0]
        if kind == 'w':
            g, r = divmod(f, 36)
            lg(("a", i), f"ds_read_b128 {aring(i % RING)}, v{26 + g % NSLOT} offset:{1024*r}")
        else:
            lg(("a", i), f"ds_read_b128 {aring(i % RING)}, v31 offset:{256*f}")
    Q = []
    CAT = [None]
    KEEP = os.environ.get('KEEP')
    def add(ready, fns, deadline=10**9):
        if KEEP is not None and CAT[0] not in KEEP.split(','): return
        for fn in fns: Q.append([ready, len(Q), deadline, fn])
    def I(txt): return lambda: A(txt)
    def opfns(op): return [(lambda tag=tag, txt=txt: A(txt) if tag is None else vm(tag, txt)) for tag, txt in op]
    def spread(ops, slots, deadline=10**9):
        n = len(ops); slots = list(slots)
        for k, op in enumerate(ops):
            add(slots[len(slots) * k // n], opfns(op), deadline)
    DW = E('DW', 30)
    CAT[0] = 'dma'
    XL = E('XL', 44)
    for kk in range(XP, 18):
        for tt in range(2): add(max(0, xfirst[kk] - XL + 3*tt), opfns(x1s_op(kk, tt)), xfirst[kk] - 8)
    spread(dma_group(2), range(2, 24), Bpos(2) - 2)
    spread(early, range(24, 60))
    for g in range(3, 18):
        lo = Bpos(g-2) + 1
        w = DW
        if g > 18 - NTM: w = 16
        spread(dma_group(g), range(lo, lo + w), Bpos(g) - 2)
    CAT[0] = 'bias'
    GBAR = 3
    R = Rec()
    for k in range(4):
        R(f"v_add_f32 v{GP+k}, v{GP+k}, v{GP+4+k}")
    for k in range(4):
        R(f"v_add_f32 v{GP+k}, v{GP+k}, v{GP+8+k}")
    for e in range(2):
        g1, g2, o = GP + e, GP + 2 + e, 16 + 4*e
        R(f"""
        v_cvt_pk_bf16_f32 v{o}, v{g1}, v{g1}
        v_cvt_pk_bf16_f32 v24, v{g2}, v{g2}
        v_and_b32 v{o+3}, s6, v{o}
        v_and_b32 v24, s6, v24
        v_sub_f32 v{o+3}, v{g1}, v{o+3}
        v_sub_f32 v24, v{g2}, v24
        v_cvt_pk_bf16_f32 v{o+1}, v{o+3}, v{g2}
        v_cvt_pk_bf16_f32 v{o+2}, v{g2}, v24
        v_mov_b32 v{o+3}, 0
        """)
    def gw():
        A("v_cmp_gt_u32 vcc, 144, v0")
        A("s_and_saveexec_b64 s[66:67], vcc")
        lg("gw", f"ds_write_b128 v4, v[16:19]")
        lg("gw", f"ds_write_b128 v4, v[20:23] offset:16")
        A("s_mov_b64 exec, s[66:67]")
    add(76, [lambda: waitvm(lambda t: t == "st")] + [I(x) for x in R.l] + [gw], Bpos(GBAR) - 1)
    for tt in range(2):
        R = Rec(); stats_to_ms(R, ST+12*tt, NM+tt, SIG+tt, 240)
        o = SF + 4*tt
        R(f"""
        v_cvt_pk_bf16_f32 v{o+1}, v{NM+tt}, v{SIG+tt}
        v_lshlrev_b32 v240, 16, v{o+1}
        v_and_b32 v241, s6, v{o+1}
        v_sub_f32 v242, v{NM+tt}, v240
        v_sub_f32 v243, v{SIG+tt}, v241
        v_cvt_pk_bf16_f32 v{o}, v240, v242
        v_cvt_pk_bf16_f32 v{o+2}, v243, v241
        v_cmp_eq_u32 vcc, 0, v7
        v_mov_b32 v{o+3}, 0
        v_cndmask_b32 v{o}, 0, v{o}, vcc
        v_cndmask_b32 v{o+1}, 0, v{o+1}, vcc
        v_cndmask_b32 v{o+2}, 0, v{o+2}, vcc
        """)
        add(100 + 16*tt, [I(x) for x in R.l], PE[0] - PARTS[0] - 2)
    assert PE[0] - PARTS[0] - DIST > Bpos(GBAR)
    CAT[0] = 'conv'
    def conv(l, tt):
        a, b = acc1(2*l, tt), acc1(2*l+1, tt)
        fns = [I(f"v_cvt_pk_bf16_f32 v{a}, v{a}, v{a+1}"), I(f"v_cvt_pk_bf16_f32 v{a+1}, v{a+2}, v{a+3}"),
               I(f"v_cvt_pk_bf16_f32 v{a+2}, v{b}, v{b+1}"), I(f"v_cvt_pk_bf16_f32 v{a+3}, v{b+2}, v{b+3}")]
        fns += [I(f"v_pk_max_i16 v{a+k}, v{a+k}, 0") for k in range(4)]
        fns.append(lambda: vm(("h1st", partof(l)), f"buffer_store_dwordx4 {vr(a,4)}, v26, s[32:35], s{50 + 2*(l//4) + tt} offen offset:{1024*(l%4)} sc1"))
        return fns
    SG = E('SG', 6)
    fw = {}
    for p in range(NP):
        n = 0
        for l in range(LST[p], LST[p+1]):
            done = PE[p] - (PST[p+1] - (2*l+1))
            for tt in range(2):
                if p < NP - 1:
                    add(max(done + 2, PE[p] - 2 + SG*n), conv(l, tt))
                else:
                    c = conv(l, tt)
                    add(done + 2, c[:-1], S2 + l - 1)
                    add(max(S2 + 9, PE[p] + 8 + SG*n), c[-1:])
                n += 1
        fw[p] = PE[p] + 8 + SG*n + E('FWD', 40)
    npoll = [0]
    def poll_issue(part):
        vm(("poll", part), f"buffer_load_dwordx4 {vr(FLG,4)}, v5, s[36:39], s57 offen offset:{16*part} sc1")
    def poll_check(part):
        waitvm(lambda t: t == ("poll", part))
        n = npoll[0]; npoll[0] += 1
        A(f"""
        s_mov_b32 s67, 400000
        ffn_pc{n}:
        v_and_b32 v{FLG}, v{FLG}, v{FLG+1}
        v_and_b32 v{FLG+2}, v{FLG+2}, v{FLG+3}
        v_and_b32 v{FLG}, v{FLG}, v{FLG+2}
        s_nop 0
        v_readfirstlane_b32 s66, v{FLG}
        s_cmp_lg_u32 s66, 0
        s_cbranch_scc1 ffn_ok{n}
        s_sub_u32 s67, s67, 1
        s_cbranch_scc1 ffn_ok{n}
        s_sleep 2
        buffer_load_dwordx4 {vr(FLG,4)}, v5, s[36:39], s57 offen offset:{16*part} sc1
        s_waitcnt vmcnt(0)
        s_branch ffn_pc{n}
        ffn_ok{n}:
        """)
    PD, PL = E('PD', 24), E('PL', 30)
    avail = {}
    CAT[0] = 'poll'
    for p in range(NP):
        add(fw[p] + PD, [lambda p=p: poll_issue(p)])
        add(fw[p] + PD + PL, [lambda p=p: poll_check(p)])
        avail[p] = fw[p] + PD + PL + 1
    CAT[0] = 'h1'
    HL = E('HL', 40)
    a0, a1 = avail[0], TM0 - HL
    prev = 0
    for n, k2 in enumerate(range(9, 36)):
        d, l = P2[k2]
        for tt in range(2):
            op = []
            if tt == 0:
                if l == LST[partof(l)]:
                    op += [(None, x) for x in (f"s_add_u32 s64, s21, {d}", "s_and_b32 s64, s64, 3", f"s_mul_i32 s64, s64, {9*1024}",
                           "s_add_u32 s64, s64, s48", f"s_add_u32 s64, s64, {4096*(l//4)}", f"s_add_u32 s49, s64, {144*1024}")]
                elif l % 4 == 0:
                    op += [(None, "s_add_u32 s64, s64, 4096"), (None, "s_add_u32 s49, s49, 4096")]
            op.append((("h1", k2), f"buffer_load_dwordx4 {hfrag(k2,tt)}, v26, s[32:35], s{64 if tt == 0 else 49} offen offset:{1024*(l%4)} sc1"))
            s = a0 + (a1 - a0) * (2*n + tt) // 54
            s = min(s, hfirst[k2] - HL)
            s = max(s, avail[partof(l)], prev + 1)
            if hbase(k2) < 144: s = max(s, xlast[hbase(k2) // 8] + 1)
            assert s < hfirst[k2] - 8, (k2, s, hfirst[k2])
            prev = s
            add(s, opfns(op), hfirst[k2] - 4)
    XT, GB = 208, 220
    R = Rec()
    srd(R, 40, 60, SZ_ACT, WS_X1)
    srd(R, 44, 60, 13824, WS_MOD)
    R(f"""
        s_lshl_b32 s22, s23, 1
        s_add_u32 s20, s22, 2
        s_cmp_eq_u32 s23, 3
        s_cselect_b32 s20, 0, s20            ; rot
        s_cselect_b32 s22, 7, s22            ; A0
        s_cselect_b32 s67, 1, 0
        s_mul_i32 s29, s21, 9
        s_add_u32 s29, s29, s22
        s_sub_u32 s29, s29, s67              ; first tile loaded (A0-1 when q==3)
        s_mul_i32 s28, s27, 72
        s_add_u32 s28, s28, s29
        s_lshl_b32 s28, s28, 9
        s_add_u32 s30, s28, {36*512}         ; tt=1
        s_lshl_b32 s29, s29, 6
        s_add_u32 s29, s29, {2880*4}
        s_lshl_b32 s67, s23, 10
        s_add_u32 s59, s56, s67
        v_lshlrev_b32 v240, 3, v1
        v_lshlrev_b32 v241, 4, v7""")
    CAT[0] = 'always'
    add(S2 + 40, [I(x) for x in R.l])
    CAT[0] = 'fin'
    fl = []
    for k in range(3):
        for tt in range(2):
            fl.append([("fin", f"buffer_load_dwordx2 {vr(XT+4*k+2*tt,2)}, v240, s[40:43], s{28+2*tt} offen offset:{512*k}")])
        fl.append([("fin", f"buffer_load_dwordx4 {vr(GB+4*k,4)}, v241, s[44:47], s29 offen offset:{64*k}")])
    spread(fl, range(TM0 - 10, TM0 + 26))
    nk = 36 - KT
    CAT[0] = 'pst'
    for T in range(7):
        pre = [f"s_add_u32 s66, s20, {T}", "s_cmp_ge_u32 s66, 9", "s_cselect_b32 s67, 9, 0", "s_sub_u32 s66, s66, s67",
               "s_lshl_b32 s66, s66, 12", "s_add_u32 s66, s66, s59"]
        a_ = acc2(T, 0)
        cv = [f"v_cvt_pk_bf16_f32 v{a_+k}, v{a_+2*k}, v{a_+2*k+1}" for k in range(4)]
        add(TM0 + nk*(T+1) - 2, [I(x) for x in pre])
        add(TM0 + nk*(T+1) + 2, [I(x) for x in cv] + [lambda a_=a_: vm("pst", f"buffer_store_dwordx4 {vr(a_,4)}, v26, s[12:15], s66 offen sc1")])
    flagged = {}
    def try_flags():
        for part in range(NP):
            if part in flagged: continue
            if sum(t == ("h1st", part) for t in VM.order) == PARTS[part] and VM.complete(lambda t: t == ("h1st", part)):
                vm("flag", f"buffer_store_dword v3, v2, s[36:39], s57 offen offset:{16*part} sc1")
                flagged[part] = cur[0]
    CAT[0] = 'conv'
    for p in range(NP):
        add(fw[p], [lambda p=p: (waitvm(lambda t: t == ("h1st", p)), try_flags())])
    Q.sort(key=lambda e: (e[0], e[1]))
    NOSIDE = E('NOSIDE', 0)
    def pump(slot, k):
        n = 0
        while Q and Q[0][0] <= slot and n < k:
            Q.pop(0)[3](); n += 1
    def flush_deadlines(slot):
        idx = [i for i, e in enumerate(Q) if e[2] <= slot]
        if idx:
            for _ in range(idx[-1] + 1):
                assert Q[0][0] <= slot, (Q[0], slot)
                Q.pop(0)[3]()
    WG = E('WG', 4)
    P.stamp()
    waitvm(lambda t: t == ("dma", 0))
    A("s_barrier")
    P.stamp()
    if PROF: A("s_waitcnt lgkmcnt(0)")
    for i in range(DIST): read1(i)
    seen = set()
    for i in range(NS):
        cur[0] = i
        asrc, t, bsrc, first = seq[i]
        flush_deadlines(i)
        if bsrc not in seen:
            seen.add(bsrc)
            tag = ("x1s", bsrc[1]) if bsrc[0] == 'x' else ("h1", bsrc[1])
            if bsrc[0] == 'x' or (bsrc[0] == 'h' and bsrc[1] >= 9):
                assert NOSIDE or sum(x == tag for x in VM.order) == 2, tag
                waitvm(lambda x: x == tag)
            try_flags()
        if i % WG == 0:
            waitlg(lambda x: isinstance(x, tuple) and x[0] == "a" and x[1] < i + WG)
        nx = i + DIST
        for tt in range(2):
            d = vr(acc1(t, tt), 4)
            B = xfr(bsrc[1], tt) if bsrc[0] == 'x' else hfrag(bsrc[1], tt) if bsrc[0] == 'h' else vr(SF + 4*tt, 4)
            A(f"v_mfma_f32_16x16x32_bf16 {d}, {aring(i % RING)}, {B}, {'0' if first else d}")
            if nx < NS and tt == 0:
                if nx in bar_at:
                    g = bar_at[nx]
                    gs = [g] if g < 18 - NTM else list(range(g, 18))
                    if g == GBAR: waitlg(lambda x: x == "gw")
                    for gg in gs: assert NOSIDE or sum(x == ("dma", gg) for x in VM.order) == 9, gg
                    waitvm(lambda x: x[0] == "dma" and x[1] in gs)
                    A("s_barrier")
                    if PROF and g % 3 == 0:
                        P.stamp(); A("s_waitcnt lgkmcnt(0)"); LG.done = len(LG.order)
                    try_flags()
                read1(nx)
            backlog = sum(1 for e in Q if e[0] <= i)
            if tt == 0: pump(i, 1 if backlog > E('BL', 10) else 0)
            else: pump(i, 1 if (i + 1) % WG == 0 else 2)
    assert not Q, Q
    assert NOSIDE or len(flagged) == NP
    print("flags at slots", flagged, "avail", avail, "PE", PE, "TM0", TM0, "NS", NS)
    P.stamp()
    srd(A, 16, 62, SZ_ACT)
    A(f"""
    s_lshl_b32 s66, s23, 2
    v_mov_b32 v2, s66
    v_rcp_f32 v242, v{SIG}
    v_rcp_f32 v246, v{SIG+1}
    v_sub_u32 v9, 31, v6
    s_mov_b32 s67, {16*64*1152}
    s_cmp_gt_u32 s27, 32
    s_cselect_b64 vcc, -1, 0
    s_cselect_b32 s67, {(-16*64*1152) & 0xffffffff}, s67
    v_cndmask_b32 v8, v6, v9, vcc
    v_lshlrev_b32 v8, 6, v8
    v_add_u32 v8, s27, v8
    v_mul_u32_u24 v8, 1152, v8
    v_lshl_add_u32 v8, v7, 3, v8
    v_add_u32 v9, s67, v8                 ; tt=1
    s_mul_i32 s64, s21, 288
    s_lshl_b32 s49, s22, 5
    s_add_u32 s64, s64, s49
    s_lshl_b32 s66, s22, 12
    s_add_u32 s66, s66, s56
    s_waitcnt vmcnt(0)
    buffer_store_dword v3, v2, s[36:39], s58 offen sc1
    """)
    P.stamp()
    A(f"""
    s_mov_b32 s49, 400000
    ffn_p3:
    s_sub_u32 s49, s49, 1
    s_cbranch_scc1 ffn_p3x
    buffer_load_dwordx4 {vr(FLG,4)}, v5, s[36:39], s58 offen sc1
    s_waitcnt vmcnt(0)
    v_and_b32 v{FLG}, v{FLG}, v{FLG+1}
    v_and_b32 v{FLG+2}, v{FLG+2}, v{FLG+3}
    v_and_b32 v{FLG}, v{FLG}, v{FLG+2}
    s_nop 0
    v_readfirstlane_b32 s67, v{FLG}
    s_cmp_lg_u32 s67, 0
    s_cbranch_scc0 ffn_p3
    ffn_p3x:
    """)
    P.stamp()
    PR = 32
    for d in (1, 2, 3):
        A(f"""
        s_add_u32 s67, s23, {d}
        s_and_b32 s67, s67, 3
        s_lshl_b32 s67, s67, 10
        s_add_u32 s67, s67, s66
        s_add_u32 s4, s67, 4096
        """)
        for k in range(2):
            A(f"buffer_load_dwordx4 {vr(PR+8*(d-1)+4*k,4)}, v26, s[12:15], {'s67' if k == 0 else 's4'} offen sc1")
    def fin(r, srcs, x, gb, tt, off):
        rc = 242 if tt == 0 else 246
        for hh in range(2):
            rr = r + 2*hh
            for sreg in srcs:
                A(f"v_lshlrev_b32 v10, 16, v{sreg+hh}")
                A(f"v_and_b32 v11, s6, v{sreg+hh}")
                A(f"v_pk_add_f32 {vr(rr,2)}, {vr(rr,2)}, v[10:11]")
            A(f"v_pk_mul_f32 {vr(rr,2)}, {vr(rr,2)}, v[{rc}:{rc+1}] op_sel_hi:[1,0]")
            A(f"v_lshlrev_b32 v10, 16, v{x+hh}")
            A(f"v_and_b32 v11, s6, v{x+hh}")
            A(f"v_pk_fma_f32 {vr(rr,2)}, {vr(rr,2)}, {vr(gb+2*hh,2)}, v[10:11]")
            A(f"v_cvt_pk_bf16_f32 v{x+hh}, v{rr}, v{rr+1}")
        A(f"buffer_store_dwordx2 {vr(x,2)}, v{8+tt}, s[16:19], s64 offen offset:{off}")
    A("s_cmp_eq_u32 s23, 3")
    A("s_cbranch_scc1 ffn_q3")
    A("s_waitcnt vmcnt(0)")
    for k in range(2):
        for tt in range(2):
            fin(acc2(7+k, tt), [PR+8*d+4*k+2*tt for d in range(3)], XT+4*k+2*tt, GB+4*k, tt, 32*k)
    A("s_branch ffn_end")
    A("ffn_q3:")
    A("s_sub_u32 s67, s66, 4096")
    for s_ in range(4):
        A(f"buffer_load_dwordx4 {vr(56+4*s_,4)}, v26, s[12:15], s67 offen offset:{1024*s_} sc1")
    A("s_sub_u32 s64, s64, 32")
    for k in range(8): A(f"v_mov_b32 v{72+k}, 0")
    A("s_waitcnt vmcnt(4)")
    for k in range(2):
        for tt in range(2):
            fin(acc2(7+k, tt), [PR+8*d+4*k+2*tt for d in range(3)], XT+4*(k+1)+2*tt, GB+4*(k+1), tt, 32*(k+1))
    A("s_waitcnt vmcnt(4)")
    for tt in range(2):
        fin(72+4*tt, [56+4*s_+2*tt for s_ in range(4)], XT+2*tt, GB, tt, 0)
    A("ffn_end:")
    if PROF:
        A("s_waitcnt vmcnt(0)")
        P.stamp(); P.rt()
        P.flush(60, 24, 40, 8)
    A("ffn_done:\ns_endpgm")
    return dict(name=name, vgpr=512, sgpr=102, accum=256, grid=256, block=256, lds=F_LDS)
```

```python
from common import *

KA_NLN = 192
KA_NMOD = 54
KA_NPK = 54
KA_W0 = 304
KA_GRID = KA_W0 + 288
KA_LDS = 36864

def gen_ka(A, name="ka_kernel"):
    A.raw(kernel_header(name))
    P = Prof(A, 56, 0)
    A(f"""
    s_cmp_ge_u32 s2, {KA_GRID}
    s_cbranch_scc1 ka_done
    """)
    P.rt()
    P.stamp()
    if PROF:
        A("v_lshrrev_b32 v2, 6, v0")
        A("s_nop 1")
        A("v_readfirstlane_b32 s52, v2")
    A(f"""
    s_cmp_ge_u32 s2, {KA_W0}
    s_cbranch_scc1 ka_wpack
    s_cmp_ge_u32 s2, {KA_NLN + KA_NMOD + KA_NPK}
    s_cbranch_scc1 ka_done
    s_cmp_ge_u32 s2, {KA_NLN + KA_NMOD}
    s_cbranch_scc1 ka_pack
    s_cmp_ge_u32 s2, {KA_NLN}
    s_cbranch_scc1 ka_mod
    s_load_dwordx4 s[4:7], s[0:1], {KA_X}
    s_load_dwordx2 s[8:9], s[0:1], {KA_SIM}
    s_load_dwordx2 s[10:11], s[0:1], {KA_WS}
    s_and_b32 s20, s2, 7
    s_lshr_b32 s21, s2, 3
    s_mul_i32 s23, s21, 43
    s_lshr_b32 s23, s23, 8            ; idx/6
    s_lshl_b32 s20, s20, 2
    s_add_u32 s20, s20, s23           ; s2v
    s_mul_i32 s23, s23, 6
    s_sub_u32 s21, s21, s23           ; cg
    s_mov_b32 s22, {8*32*1152}
    v_and_b32 v1, 63, v0              ; lane
    v_lshrrev_b32 v2, 6, v0           ; wave
    v_lshrrev_b32 v3, 3, v1           ; r
    v_and_b32 v4, 7, v1               ; c
    v_lshl_add_u32 v5, v2, 4, v3      ; s1 = 16w + r
    v_lshlrev_b32 v6, 5, v5
    v_add_u32 v6, s20, v6
    v_mul_u32_u24 v6, 1152, v6
    s_mul_i32 s24, s21, 12
    v_add_u32 v7, s24, v4             ; c + 12 cg
    """)
    for i in range(9):
        if i: A(f"v_add_u32 v7, 8, v7")
        A(f"v_subrev_u32 v17, 72, v7")
        A(f"v_min_u32 v17, v17, v7")
        A(f"v_lshl_add_u32 v{8+i}, v17, 4, v6")
    A("s_waitcnt lgkmcnt(0)")
    srd(A, 12, 4, SZ_ACT)
    X0, X1 = 32, 68
    for i in range(9):
        A(f"buffer_load_dwordx4 {vr(X0+4*i,4)}, v{8+i}, s[12:15], 0 offen")
    for i in range(9):
        A(f"buffer_load_dwordx4 {vr(X1+4*i,4)}, v{8+i}, s[12:15], s22 offen")
    A(f"""
    v_and_b32 v18, 15, v1
    v_lshrrev_b32 v19, 4, v1          ; g
    v_lshl_add_u32 v20, v2, 4, v18    ; j
    v_cmp_lt_u32 vcc, 32, v20         ; j > 32 -> imag
    v_subrev_u32 v21, 32, v20
    v_mov_b32 v22, s6
    v_mov_b32 v23, s7
    v_mov_b32 v24, s8
    v_mov_b32 v25, s9
    v_cndmask_b32 v21, v20, v21, vcc
    v_cndmask_b32 v22, v22, v24, vcc
    v_cndmask_b32 v23, v23, v25, vcc
    v_lshlrev_b32 v21, 17, v21        ; *32*4096
    v_lshl_add_u32 v21, v19, 4, v21   ; + 16 g
    v_add_co_u32 v22, vcc, v22, v21
    v_addc_co_u32 v23, vcc, 0, v23, vcc
    global_load_dwordx4 v[104:107], v[22:23], off
    global_load_dwordx4 v[108:111], v[22:23], off offset:64
    """)
    srd(A, 16, 10, SZ_ACT, WS_Z)
    A("s_mov_b32 s25, 0x3f803f80")
    for r in range(4): A(f"v_mov_b32 v{24+r}, 0")
    for p, X in enumerate((X0, X1)):
        for i in range(9):
            A(f"s_waitcnt vmcnt({2 + 17 - (9*p + i)})")
            for k in range(4):
                A(f"v_dot2_f32_bf16 v{24+2*p}, v{X+4*i+k}, s25, v{24+2*p}")
                A(f"v_dot2_f32_bf16 v{25+2*p}, v{X+4*i+k}, v{X+4*i+k}, v{25+2*p}")
    P.stamp()
    for mode in ("quad_perm:[1,0,3,2]", "quad_perm:[2,3,0,1]", "row_half_mirror"):
        for r in range(4):
            A(f"v_add_f32_dpp v{24+r}, v{24+r}, v{24+r} {mode} row_mask:0xf bank_mask:0xf")
    inv = "0x3ae38e39"
    import struct
    inv = hex(struct.unpack("<I", struct.pack("<f", 1.0/576))[0])
    eps = hex(struct.unpack("<I", struct.pack("<f", 1e-5))[0])
    for p in range(2):
        s_, q_ = 24+2*p, 25+2*p
        rs, nb = 28+2*p, 112+2*p
        A(f"v_mul_f32 v{s_}, {inv}, v{s_}")
        A(f"v_mul_f32 v{q_}, {inv}, v{q_}")
        A(f"v_fma_f32 v{q_}, -v{s_}, v{s_}, v{q_}")
        A(f"v_max_f32 v{q_}, 0, v{q_}")
        A(f"v_add_f32 v{q_}, {eps}, v{q_}")
        A(f"v_rsq_f32 v{rs}, v{q_}")
        A(f"v_mul_f32 v{nb}, v{s_}, v{rs}")
        A(f"v_sub_f32 v{nb}, 0, v{nb}")
    A("v_mul_u32_u24 v8, 192, v5")
    A("v_lshl_add_u32 v8, v4, 4, v8")
    A("s_mov_b32 s26, 0xffff0000")
    for p, X in enumerate((X0, X1)):
        rs, nb = 28+2*p, 112+2*p
        for i in range(2):
            for k in range(4):
                src = X+4*i+k
                A(f"v_lshlrev_b32 v116, 16, v{src}")
                A(f"v_and_b32 v117, s26, v{src}")
                A(f"v_pk_fma_f32 v[116:117], v[116:117], v[{rs}:{rs+1}], v[{nb}:{nb+1}] op_sel_hi:[1,0,0]")
                A(f"v_cvt_pk_bf16_f32 v{src}, v116, v117")
    A(f"ds_write_b128 v8, {vr(X0,4)}")
    A(f"ds_write_b128 v8, {vr(X1,4)} offset:{8*192}")
    A("v_cmp_gt_u32 vcc, 4, v4")
    A("s_and_saveexec_b64 s[28:29], vcc")
    A(f"ds_write_b128 v8, {vr(X0+4,4)} offset:128")
    A(f"ds_write_b128 v8, {vr(X1+4,4)} offset:{8*192+128}")
    A("s_mov_b64 exec, s[28:29]")
    A(f"""
    v_bfe_u32 v9, v1, 2, 2            ; r'
    v_lshl_add_u32 v9, v19, 3, v9
    v_mul_u32_u24 v9, 192, v9
    v_and_b32 v10, 1, v1
    v_lshl_add_u32 v9, v10, 5, v9
    v_bfe_u32 v10, v1, 1, 1
    v_lshl_add_u32 v9, v10, 3, v9
    v_lshlrev_b32 v11, 5, v20
    v_add_u32 v11, s20, v11
    v_mul_u32_u24 v11, 1152, v11
    v_lshl_add_u32 v11, v19, 4, v11
    s_mul_i32 s27, s21, 192
    s_waitcnt lgkmcnt(0)
    s_barrier
    """)
    P.stamp()
    AF = 32
    ACC = 80
    n = 0
    for ks in range(2):
        for T in range(6):
            for h in range(2):
                off = (32*ks + 4*h) * 192 + 64*(T >> 1) + 16*(T & 1)
                A(f"ds_read_b64_tr_b16 {vr(AF+4*(6*ks+T)+2*h,2)}, v9 offset:{off}")
    A("s_waitcnt vmcnt(0)")
    for ks in range(2):
        for T in range(6):
            idx = 6*ks+T
            A(f"s_waitcnt lgkmcnt({min(15, 2*(11-idx))})")
            c = "0" if ks == 0 else vr(ACC+4*T,4)
            A(f"v_mfma_f32_16x16x32_bf16 {vr(ACC+4*T,4)}, {vr(AF+4*idx,4)}, {vr(104+4*ks,4)}, {c}")
    for b in range(3):
        a0 = ACC + 8*b
        o = 32 + 4*b
        for k in range(4):
            A(f"v_cvt_pk_bf16_f32 v{o+k}, v{a0+2*k}, v{a0+2*k+1}")
        A(f"buffer_store_dwordx4 {vr(o,4)}, v11, s[16:19], s27 offen offset:{64*b}")
    if PROF:
        A("s_waitcnt vmcnt(0)")
        P.stamp()
        P.rt()
    P.flush(10, 52, 44, 8)
    A("s_endpgm")
    P.n = 2

    A.label("ka_mod")
    A(f"""
    s_load_dwordx4 s[4:7], s[0:1], {KA_C}      ; c, w_mod
    s_load_dwordx2 s[10:11], s[0:1], {KA_WS}
    s_sub_u32 s20, s2, {KA_NLN}                ; m
    v_and_b32 v1, 63, v0
    v_lshrrev_b32 v2, 6, v0
    v_lshrrev_b32 v3, 3, v1                    ; r
    v_and_b32 v4, 7, v1                        ; cc
    v_mul_u32_u24 v5, 144, v2
    v_add_u32 v5, v5, v3                       ; 144w + r
    v_mul_u32_u24 v6, 6912, v5
    v_lshl_add_u32 v6, v4, 4, v6
    v_lshlrev_b32 v7, 1, v0
    s_lshl_b32 s21, s20, 7
    s_waitcnt lgkmcnt(0)
    """)
    srd(A, 12, 4, 1152)
    srd(A, 16, 6, 576*6912)
    for k in range(3):
        A(f"buffer_load_ushort v{8+k}, v7, s[12:15], 0 offen offset:{512*k}")
    W = 32
    for i in range(18):
        A(f"buffer_load_dwordx4 {vr(W+4*i,4)}, v6, s[16:19], s21 offen")
        if i < 17: A(f"s_add_u32 s21, s21, {8*6912}")
    srd(A, 24, 10, 0x8000, WS_MOD)
    A("s_waitcnt vmcnt(18)")
    A("v_lshlrev_b32 v7, 2, v0")
    log2e = "0x3fb8aa3b"
    for k in range(3):
        A(f"""
        v_lshlrev_b32 v{8+k}, 16, v{8+k}
        v_mul_f32 v11, {log2e}, v{8+k}
        v_exp_f32 v11, -v11
        v_add_f32 v11, 1.0, v11
        v_rcp_f32 v11, v11
        v_mul_f32 v11, v11, v{8+k}
        v_cvt_pk_bf16_f32 v11, v11, v11
        v_lshlrev_b32 v11, 16, v11
        ds_write_b32 v7, v11 offset:{1024*k}
        """)
    A("""
    v_lshlrev_b32 v5, 2, v5
    s_waitcnt lgkmcnt(0)
    s_barrier
    """)
    SV = 104
    for i in range(18):
        A(f"ds_read_b32 v{SV+i}, v5 offset:{32*i}")
    for k in range(8): A(f"v_mov_b32 v{16+k}, 0")
    A("s_mov_b32 s22, 0xffff0000")
    A("s_waitcnt lgkmcnt(0)")
    for i in range(18):
        A(f"s_waitcnt vmcnt({17-i})")
        for k in range(4):
            A(f"v_lshlrev_b32 v12, 16, v{W+4*i+k}")
            A(f"v_and_b32 v13, s22, v{W+4*i+k}")
            A(f"v_fmac_f32 v{16+2*k}, v12, v{SV+i}")
            A(f"v_fmac_f32 v{17+2*k}, v13, v{SV+i}")
    P.stamp()
    P.stamp()
    P.stamp()
    P.rt()
    P.flush(10, 52, 44, 8)
    if PROF: A("s_mov_b64 exec, -1")
    A(f"""
    v_lshrrev_b32 v12, 3, v0                   ; w*8 + r
    v_lshlrev_b32 v12, 8, v12
    v_lshl_add_u32 v12, v4, 5, v12
    ds_write_b128 v12, v[16:19] offset:3072
    ds_write_b128 v12, v[20:23] offset:3088
    s_waitcnt lgkmcnt(0)
    s_barrier
    v_cmp_gt_u32 vcc, 64, v0
    s_and_saveexec_b64 s[28:29], vcc
    s_cbranch_execz ka_done
    """)
    for i in range(32):
        A(f"ds_read_b32 v{W+i}, v7 offset:{3072+256*i}")
    A("s_waitcnt lgkmcnt(0)")
    st = 16
    while st >= 1:
        for i in range(st):
            A(f"v_add_f32 v{W+i}, v{W+i}, v{W+i+st}")
        st //= 2
    A(f"""
    v_cvt_pk_bf16_f32 v{W}, v{W}, v{W}
    v_lshlrev_b32 v{W}, 16, v{W}
    s_mul_i32 s23, s20, 57
    s_lshr_b32 s23, s23, 9                     ; chunk = m/9
    s_cmp_eq_u32 s23, 1
    s_cbranch_scc1 ka_mod_plus1
    s_cmp_eq_u32 s23, 4
    s_cbranch_scc0 ka_mod_store
    ka_mod_plus1:
    v_add_f32 v{W}, 1.0, v{W}
    v_cvt_pk_bf16_f32 v{W}, v{W}, v{W}
    v_lshlrev_b32 v{W}, 16, v{W}
    ka_mod_store:
    s_lshl_b32 s21, s20, 8
    buffer_store_dword v{W}, v7, s[24:27], s21 offen
    ; interleaved copy CS[(col%576)*2 + (chunk==3)] for chunks 3 (sb) and 4 (1+cb)
    s_sub_u32 s30, s23, 3
    s_cmp_gt_u32 s30, 1
    s_cbranch_scc1 ka_done
    s_mul_i32 s31, s23, 9
    s_sub_u32 s31, s20, s31                    ; m % 9
    s_lshl_b32 s31, s31, 9                     ; *64*8
    s_xor_b32 s30, s30, 1                      ; sb -> 1, c1b -> 0
    s_lshl_b32 s30, s30, 2
    s_add_u32 s31, s31, s30
    s_add_u32 s31, s31, {WS_CS}
    v_lshlrev_b32 v7, 3, v0
    buffer_store_dword v{W}, v7, s[24:27], s31 offen
    ka_done:
    s_endpgm
    """)
    A.label("ka_pack")
    A(f"""
    s_load_dwordx4 s[4:7], s[0:1], {KA_HRE}
    s_load_dwordx2 s[10:11], s[0:1], {KA_WS}
    v_and_b32 v1, 63, v0
    v_lshrrev_b32 v2, 6, v0
    s_nop 0
    v_readfirstlane_b32 s24, v2
    s_sub_u32 s20, s2, {KA_NLN + KA_NMOD}
    s_lshl_b32 s21, s20, 2
    s_add_u32 s21, s21, s24                    ; u
    s_mul_i32 s22, s21, 171
    s_lshr_b32 s22, s22, 9                     ; u/3
    s_mul_i32 s23, s22, 3
    s_sub_u32 s23, s21, s23                    ; u%3
    s_cmp_ge_u32 s22, 36
    s_cselect_b32 s25, 36, 0
    s_sub_u32 s25, s22, s25                    ; eps
    v_and_b32 v3, 15, v1
    v_lshrrev_b32 v4, 4, v1
    v_mul_u32_u24 v3, 1152, v3
    v_lshl_add_u32 v3, v4, 4, v3
    s_mul_i32 s25, s25, {16*1152}
    s_mul_i32 s26, s23, 384
    s_add_u32 s25, s25, s26
    s_mul_i32 s27, s21, 6144
    s_add_u32 s28, s27, 4096
    v_lshlrev_b32 v5, 4, v1
    s_waitcnt lgkmcnt(0)
    s_cmp_ge_u32 s22, 36
    s_cselect_b32 s12, s6, s4
    s_cselect_b32 s13, s7, s5
    s_and_b32 s13, s13, 0xffff
    s_mov_b32 s14, {D*D*2}
    s_mov_b32 s15, 0x20000
    """)
    for k in range(6):
        A(f"buffer_load_dwordx4 {vr(8+4*k,4)}, v3, s[12:15], s25 offen offset:{64*k}")
    srd(A, 16, 10, SZ_WDP, WS_WDP)
    srd(A, 32, 10, SZ_FL, WS_FL1)
    A(f"""
    v_mov_b32 v32, 0
    v_mov_b32 v33, 0
    v_mov_b32 v34, 0
    v_mov_b32 v35, 0
    s_lshl_b32 s29, s21, 10
    buffer_store_dwordx4 v[32:35], v5, s[32:35], s29 offen
    """)
    for k in range(6):
        A(f"s_waitcnt vmcnt({6 - k + k})" if False else f"s_waitcnt vmcnt({6})" if k == 0 else "s_nop 0")
        break
    A("s_waitcnt vmcnt(1)")
    for k in range(6):
        so = "s27" if k < 4 else "s28"
        A(f"buffer_store_dwordx4 {vr(8+4*k,4)}, v5, s[16:19], {so} offen offset:{1024*(k%4)}")
    A("s_endpgm")
    A.label("ka_wpack")
    A(f"""
    s_load_dwordx4 s[4:7], s[0:1], {KA_W1}
    s_load_dwordx2 s[10:11], s[0:1], {KA_WS}
    v_and_b32 v1, 63, v0
    v_lshrrev_b32 v2, 6, v0
    s_nop 0
    v_readfirstlane_b32 s24, v2
    s_sub_u32 s20, s2, {KA_W0}
    s_and_b32 s21, s20, 7                      ; x
    s_lshr_b32 s22, s20, 3                     ; v
    s_lshr_b32 s25, s21, 1                     ; q
    s_and_b32 s26, s21, 1                      ; jh
    v_lshlrev_b32 v20, 4, v1
    v_lshrrev_b32 v21, 2, v1
    v_and_b32 v22, 3, v1
    s_mul_i32 s27, s24, 9216
    s_cmp_ge_u32 s22, 18
    s_cbranch_scc1 ka_wp2
    """)
    def dma_offs(cpr, mul, pitch):
        for n in range(9):
            A(f"""
            v_add_u32 v3, {64*n}, v1
            v_mul_u32_u24 v4, {mul}, v3
            v_lshrrev_b32 v4, 16, v4
            v_mul_u32_u24 v5, {cpr}, v4
            v_sub_u32 v3, v3, v5
            v_lshlrev_b32 v3, 4, v3
            v_mul_u32_u24 v5, {pitch}, v4
            v_add_u32 v{8+n}, v3, v5
            """)
    dma_offs(72, 911, 9216)
    A(f"""
    s_lshl_b32 s28, s22, 5
    s_lshl_b32 s29, s24, 3
    s_add_u32 s28, s28, s29
    s_mul_i32 s28, s28, 9216
    s_mul_i32 s29, s21, 1152
    s_add_u32 s28, s28, s29
    v_mul_u32_u24 v23, 1152, v21
    v_lshl_add_u32 v23, v22, 3, v23
    s_mul_i32 s29, s24, 288
    v_add_u32 v23, s29, v23
    v_add_u32 v24, {16*1152}, v23
    s_lshl_b32 s30, s21, 1
    s_lshr_b32 s31, s24, 1
    s_add_u32 s30, s30, s31                    ; fb
    s_and_b32 s31, s30, 3
    s_mul_i32 s31, s31, 9
    s_lshr_b32 s31, s31, 1
    s_sub_u32 s22, s22, s31
    s_cselect_b32 s31, 18, 0
    s_add_u32 s22, s22, s31
    s_mul_i32 s30, s30, {36*9216}
    s_and_b32 s38, s24, 1
    s_mul_i32 s38, s38, 9                      ; t0
    s_mov_b32 s39, {PST[1]}                    ; thr1
    s_mov_b32 s42, {PST[2]}                    ; thr2
    s_mul_i32 s40, s22, {PARTS[0]}             ; c0
    s_mul_i32 s41, s22, {PARTS[1]}
    s_add_u32 s41, s41, {18*PST[1] - PST[1]}   ; c1
    s_mul_i32 s43, s22, {PARTS[2]}
    s_add_u32 s43, s43, {18*PST[2] - PST[2]}   ; c2
    s_waitcnt lgkmcnt(0)
    s_mov_b32 s12, s4
    s_mov_b32 s13, s5
    s_branch ka_wp3
    ka_wp2:
    """)
    dma_offs(36, 1821, 1152)
    A(f"""
    s_sub_u32 s22, s22, 18
    s_mul_i32 s28, s25, 1152
    s_lshl_b32 s29, s22, 6
    s_add_u32 s28, s28, s29
    s_lshl_b32 s29, s24, 4
    s_add_u32 s28, s28, s29
    s_mul_i32 s28, s28, 1152
    s_mul_i32 s29, s26, 576
    s_add_u32 s28, s28, s29
    v_mul_u32_u24 v23, 576, v21
    v_lshl_add_u32 v23, v22, 3, v23
    s_lshr_b32 s31, s24, 1
    s_mul_i32 s29, s31, {32*576}
    s_and_b32 s32, s24, 1
    s_mul_i32 s33, s32, 288
    s_add_u32 s29, s29, s33
    v_add_u32 v23, s29, v23
    v_add_u32 v24, {16*576}, v23
    s_lshl_b32 s30, s21, 1
    s_add_u32 s30, s30, s32                    ; q*4 + j
    s_mul_i32 s30, s30, {36*9216}
    s_add_u32 s30, s30, {SZ_WP}
    s_lshl_b32 s33, s22, 1
    s_add_u32 s33, s33, s31                    ; kstep
    s_mul_i32 s33, s33, 9
    s_lshl_b32 s39, s25, 1
    s_add_u32 s39, s39, 2
    s_cmp_eq_u32 s25, 3
    s_cselect_b32 s39, 0, s39
    s_mov_b32 s38, 0
    s_sub_u32 s41, s33, s39                    ; cB
    s_add_u32 s40, s41, 9                      ; cA
    s_mov_b32 s42, 100
    s_mov_b32 s43, 0
    s_waitcnt lgkmcnt(0)
    s_mov_b32 s12, s6
    s_mov_b32 s13, s7
    ka_wp3:
    s_and_b32 s13, s13, 0xffff
    s_mov_b32 s14, {D*F*2}
    s_mov_b32 s15, 0x20000
    """)
    for n in range(9):
        A(f"s_add_u32 m0, s27, {1024*n}")
        A(f"buffer_load_dwordx4 v{8+n}, s[12:15], s28 offen lds")
    srd(A, 16, 10, 2*SZ_WP, WS_W1P)
    A("s_waitcnt vmcnt(0)")
    A("s_barrier")
    for T in range(9):
        A(f"ds_read_b64_tr_b16 {vr(32+4*T,2)}, v23 offset:{32*T}")
        A(f"ds_read_b64_tr_b16 {vr(34+4*T,2)}, v24 offset:{32*T}")
    for T in range(9):
        A(f"s_add_u32 s36, s38, {T}")
        A(f"s_cmp_lt_u32 s36, s39")
        A(f"s_cselect_b32 s37, s40, s41")
        A(f"s_cmp_lt_u32 s36, s42")
        A(f"s_cselect_b32 s37, s37, s43")
        A(f"s_add_u32 s36, s36, s37")
        A(f"s_lshl_b32 s36, s36, 10")
        A(f"s_add_u32 s36, s36, s30")
        A(f"s_waitcnt lgkmcnt({min(15, 16-2*T)})")
        A(f"buffer_store_dwordx4 {vr(32+4*T,4)}, v20, s[16:19], s36 offen")
    A("s_endpgm")
    return dict(name=name, vgpr=128, sgpr=100, accum=128, grid=KA_GRID, block=256, lds=KA_LDS)
```

```python
from common import *
import struct
f2h = lambda f: hex(struct.unpack("<I", struct.pack("<f", f))[0])

KB_GRID = 256
KB_MODL = 73728
KB_LDS = KB_MODL + 14336

def gen_kb(A, name="kb_kernel"):
    A.raw(kernel_header(name))
    P = Prof(A, 84, 1)
    A(f"""
    s_cmp_ge_u32 s2, {KB_GRID}
    s_cbranch_scc1 kb_done
    """)
    P.rt()
    P.stamp()
    A(f"""
    s_load_dwordx8 s[4:11], s[0:1], {KA_X}
    s_load_dwordx2 s[12:13], s[0:1], {KA_HIM}
    s_load_dwordx2 s[14:15], s[0:1], {KA_WS}
    s_load_dwordx4 s[16:19], s[0:1], {KA_W1}
    s_and_b32 s20, s2, 7                          ; xcd
    s_lshr_b32 s21, s2, 3                         ; idx
    s_mul_i32 s22, s21, 43
    s_lshr_b32 s22, s22, 8                        ; idx/6
    s_mul_i32 s23, s22, 6
    s_sub_u32 s23, s21, s23                       ; et
    s_lshl_b32 s22, s22, 3
    s_add_u32 s22, s22, s20                       ; class
    v_and_b32 v1, 63, v0
    v_lshrrev_b32 v2, 6, v0
    s_nop 0
    v_readfirstlane_b32 s24, v2                   ; wave
    s_cmp_gt_u32 s22, 32
    s_cbranch_scc1 kb_side
    s_lshr_b32 s25, s24, 1                        ; p
    s_and_b32 s26, s24, 1                         ; dh
    s_and_b32 s27, s22, 31
    s_cmp_lg_u32 s27, 0
    s_cselect_b32 s27, -1, 0
    s_and_b32 s28, s27, 32
    s_add_u32 s28, s28, s22
    s_cmp_lg_u32 s25, 0
    s_cselect_b32 s29, s28, s22
    s_mul_i32 s29, s29, 36864
    s_mul_i32 s30, s26, 18432
    s_add_u32 s29, s29, s30                       ; Z soffset (a=0)
    s_add_u32 s30, s29, 9216                      ; a=1
    s_mul_i32 s31, s24, 18432
    """)
    for b in range(9):
        A(f"""
        v_add_u32 v3, {64*b}, v1
        v_mul_u32_u24 v4, 911, v3
        v_lshrrev_b32 v4, 16, v4                  ; row
        v_mul_u32_u24 v5, 72, v4
        v_sub_u32 v3, v3, v5                      ; slot
        v_and_b32 v5, 6, v4                       ; 2*((row>>1)&3)
        v_xor_b32 v3, v3, v5
        v_mul_u32_u24 v4, 1152, v4
        v_lshl_add_u32 v{8+b}, v3, 4, v4
        """)
    A("s_waitcnt lgkmcnt(0)")
    srd(A, 32, 14, SZ_ACT, WS_Z)
    srd(A, 36, 14, 13824, WS_MOD)
    A("s_mov_b32 m0, s31")
    for n in range(18):
        a, b = divmod(n, 9)
        A(f"buffer_load_dwordx4 v{8+b}, s[32:35], s{29+a} offen lds")
        if n < 17:
            A("s_add_u32 m0, m0, 1024")
    A(f"""
    v_lshlrev_b32 v3, 4, v1
    s_lshl_b32 s40, s24, 10
    s_add_u32 s41, s40, {KB_MODL}
    s_mov_b32 m0, s41
    """)
    for k in range(4):
        if k == 3:
            A("s_cmp_gt_u32 s24, 1")
            A("s_cbranch_scc1 kb_modskip")
        A(f"buffer_load_dwordx4 v3, s[36:39], s40 offen lds")
        if k < 3:
            A("s_add_u32 m0, m0, 4096")
            A("s_add_u32 s40, s40, 4096")
    A("s_branch kb_moddone")
    A.label("kb_modskip")
    A("s_sub_u32 m0, m0, 4096")
    A("s_sub_u32 s40, s40, 4096")
    A(f"buffer_load_dwordx4 v3, s[36:39], s40 offen lds")
    A.label("kb_moddone")
    A(f"""
    s_cmp_lg_u32 s25, 0
    s_cselect_b32 s44, s8, s6
    s_cselect_b32 s45, s9, s7
    s_cselect_b32 s48, s6, s8
    s_cselect_b32 s49, s7, s9
    s_cselect_b32 s42, 0x80008000, 0              ; m1
    s_and_b32 s45, s45, 0xffff
    s_and_b32 s49, s49, 0xffff
    s_mov_b32 s46, {S*S*2}
    s_mov_b32 s47, 0x20000
    s_mov_b32 s50, {S*S*2}
    s_mov_b32 s51, 0x20000
    v_and_b32 v4, 15, v1                          ; tok / i
    v_lshrrev_b32 v5, 4, v1                       ; g
    v_lshlrev_b32 v6, 6, v4
    v_add_u32 v6, s22, v6                         ; t (tt=0)
    v_lshlrev_b32 v7, 12, v6
    v_lshl_add_u32 v7, v5, 3, v7                  ; t*4096 + 8g
    s_mov_b32 s43, {16*64*4096}
    """)
    B1, B2 = 20, 28
    for tt in range(2):
        so = "s43" if tt else "0"
        for h in range(2):
            A(f"buffer_load_dwordx2 {vr(B1+4*tt+2*h,2)}, v7, s[44:47], {so} offen offset:{32*h}")
            A(f"buffer_load_dwordx2 {vr(B2+4*tt+2*h,2)}, v7, s[48:51], {so} offen offset:{32*h}")
    srd(A, 52, 14, SZ_WDP, WS_WDP)
    A(f"""
    v_lshlrev_b32 v15, 4, v1
    v_add_u32 v16, 4096, v15
    v_add_u32 v17, 8192, v15
    s_mul_i32 s62, s25, 36
    s_mul_i32 s63, s23, 6
    s_add_u32 s62, s62, s63
    s_mul_i32 s62, s62, 18
    s_mul_i32 s63, s26, 9
    s_add_u32 s62, s62, s63
    s_lshl_b32 s62, s62, 10
    """)
    for E in range(6):
        A(f"s_add_u32 s{56+E}, s62, {18*1024*E}")
    VM = Cnt(63)
    for _ in range(30): VM.issue("z")
    def wd(a):
        for E in range(6):
            A(f"buffer_load_dwordx4 {vr(4*(6*a+E),4,'a')}, v{15+a//4}, s[{52}:{55}], s{56+E} offen offset:{1024*(a%4)}")
            VM.issue(("wd", a))
    def waitvm(pred):
        n = VM.need(pred)
        if n is not None: A(f"s_waitcnt vmcnt({n})")
    WPRE = 3
    for a in range(WPRE): wd(a)
    A(f"""
    v_bfe_u32 v12, v1, 2, 2                       ; r'
    v_lshl_add_u32 v12, v5, 2, v12                ; row = 4g + r'
    v_and_b32 v13, 6, v12
    v_lshlrev_b32 v13, 4, v13                     ; F = 32*((row>>1)&3)
    v_mul_u32_u24 v12, 1152, v12
    v_and_b32 v14, 3, v1
    v_lshl_add_u32 v12, v14, 3, v12               ; + 8c'
    s_lshl_b32 s64, s26, 9                        ; 512 dh
    v_add_u32 v12, s64, v12
    s_lshl_b32 s65, s26, 1                        ; 2 dh
    """)
    for k in range(4):
        A(f"""
        s_add_u32 s66, s65, {k}
        s_lshr_b32 s67, s66, 2
        s_lshl_b32 s67, s67, 7
        s_and_b32 s66, s66, 3
        s_lshl_b32 s66, s66, 5
        v_xor_b32 v14, s66, v13
        v_add3_u32 v{8+k}, v12, v14, s67
        """)
    A(f"""
    s_mul_i32 s66, s26, 1152
    s_add_u32 s66, s66, {KB_MODL}
    v_lshlrev_b32 v18, 5, v5
    v_add_u32 v18, s66, v18
    s_or_b32 s67, s22, s25
    s_cmp_eq_u32 s67, 0
    s_cselect_b32 s67, {f2h(2048.0)}, 0
    v_mov_b32 v36, s67
    v_cmp_eq_u32 vcc, 0, v4
    v_cndmask_b32 v36, 0, v36, vcc
    """)
    P.stamp()
    waitvm(lambda t: t == "z")
    A("s_mov_b32 s66, 0x80008000")
    for k in range(8):
        A(f"v_xor_b32 v{B1+k}, s42, v{B1+k}")
        A(f"v_xor_b32 v{B2+k}, s66, v{B2+k}")
        A(f"v_and_b32 v{B2+k}, s27, v{B2+k}")
    A("s_barrier")
    P.stamp()
    if PROF: A("s_waitcnt lgkmcnt(0)")
    YACC = 40
    AF = 88
    A2 = 120
    HF = 152
    SC = 168
    XR = 200
    def reads(a):
        s = a & 1
        for Ti in range(2):
            T = 2*a + Ti
            for ks in range(2):
                for h in range(2):
                    off = 128*(T >> 2) + 18432*h + 36864*ks
                    A(f"ds_read_b64_tr_b16 {vr(AF+16*s+4*(2*Ti+ks)+2*h,2)}, v{8+(T&3)} offset:{off}")
        for k in range(2):
            A(f"ds_read_b128 {vr(SC+16*s+4*k,4)}, v18 offset:{2304+128*a+16*k}")
            A(f"ds_read_b128 {vr(SC+16*s+8+4*k,4)}, v18 offset:{128*a+16*k}")
    def s2mfma(a):
        s = a & 1
        for ks in range(2):
            for Ti in range(2):
                for tt in range(2):
                    d = vr(A2+16*s+4*(2*Ti+tt),4)
                    c = "0" if ks == 0 else d
                    B = (B1 if ks == 0 else B2) + 4*tt
                    A(f"v_mfma_f32_16x16x32_bf16 {d}, {vr(AF+16*s+4*(2*Ti+ks),4)}, {vr(B,4)}, {c}")
    def scale(a):
        s = a & 1
        sc = SC + 16*s
        for k in range(4):
            A(f"v_pk_mul_f32 {vr(sc+8+2*k,2)}, {vr(sc+8+2*k,2)}, v[36:37] op_sel_hi:[1,0]")
        for tt in range(2):
            for Ti in range(2):
                for k in range(2):
                    r = A2+16*s+4*(2*Ti+tt)+2*k
                    c = sc + 4*Ti + 2*k
                    if tt == 0:
                        A(f"v_pk_fma_f32 {vr(r,2)}, {vr(r,2)}, {vr(c,2)}, {vr(c+8,2)}")
                    else:
                        A(f"v_pk_mul_f32 {vr(r,2)}, {vr(r,2)}, {vr(c,2)}")
                    A(f"v_cvt_pk_bf16_f32 v{HF+8*s+4*tt+2*Ti+k}, v{r}, v{r+1}")
    def dft(a):
        s = a & 1
        for E in range(6):
            for tt in range(2):
                d = vr(YACC+4*(2*E+tt),4)
                c = "0" if a == 0 else d
                A(f"v_mfma_f32_16x16x32_bf16 {d}, {vr(4*(6*a+E),4,'a')}, {vr(HF+8*s+4*tt,4)}, {c}")
    A(f"""
    s_lshr_b32 s68, s24, 1                        ; dir
    s_and_b32 s69, s24, 1                         ; tt
    s_lshl_b32 s70, s69, 10                       ; 64*16*tt
    v_add_u32 v38, s70, v6                        ; t
    v_sub_u32 v39, 2048, v38
    s_cmp_lg_u32 s68, 0
    s_cselect_b64 vcc, -1, 0
    v_cndmask_b32 v38, v38, v39, vcc
    v_mul_u32_u24 v38, 1152, v38
    v_lshl_add_u32 v38, v5, 3, v38
    s_mul_i32 s71, s23, 192
    """)
    srd(A, 72, 4, SZ_ACT)
    def xloads():
        for k in range(6):
            A(f"buffer_load_dwordx2 {vr(XR+2*k,2)}, v38, s[72:75], s71 offen offset:{32*k}")
            VM.issue("x")
    wd(WPRE)
    reads(0)
    reads(1)
    A("s_waitcnt lgkmcnt(12)")
    s2mfma(0)
    scale(0)
    for a in range(9):
        if a + 1 < 9:
            A("s_waitcnt lgkmcnt(0)")
            s2mfma(a+1)
        if a + 2 < 9:
            reads(a+2)
        if a + WPRE + 1 < 9: wd(a + WPRE + 1)
        if a + WPRE + 1 == 9: xloads()
        waitvm(lambda t: t == ("wd", a))
        dft(a)
        if a + 1 < 9:
            scale(a+1)
    P.stamp()
    A("s_barrier")
    A(f"""
    s_mul_i32 s76, s24, 12288
    v_lshlrev_b32 v8, 4, v1
    v_add_u32 v9, s76, v8
    """)
    for i in range(12):
        A(f"ds_write_b128 v9, {vr(YACC+4*i,4)} offset:{1024*i}")
    A(f"""
    s_waitcnt lgkmcnt(0)
    s_barrier
    s_and_b32 s76, s68, s27
    s_cmp_lg_u32 s76, s68
    s_cbranch_scc1 kb_done
    s_lshl_b32 s76, s69, 10
    v_add_u32 v9, s76, v8
    """)
    PR = 40
    for w in range(4):
        for E in range(6):
            A(f"ds_read_b128 {vr(PR+24*w+4*E,4)}, v9 offset:{12288*w+2048*E}")
    GA, CB = 136, 160
    A(f"""
    s_mul_i32 s76, s23, 384
    s_add_u32 s76, s76, {KB_MODL}
    v_lshlrev_b32 v10, 4, v5
    v_add_u32 v10, s76, v10
    """)
    for k in range(6):
        A(f"ds_read_b128 {vr(GA+4*k,4)}, v10 offset:{1152*4+64*k}")
        A(f"ds_read_b128 {vr(CB+4*k,4)}, v10 offset:{2304*4+64*k}")
    A(f"""
    s_cmp_lg_u32 s68, 0
    s_cselect_b32 s76, -1.0, 1.0
    v_mov_b32 v12, s76
    s_sub_u32 s77, 64, s22
    s_cselect_b32 s77, s77, s22
    """)
    A.items.pop(); A.items.pop()
    A(f"""
    s_sub_u32 s77, 64, s22
    s_cmp_lg_u32 s68, 0
    s_cselect_b32 s77, s77, s22                   ; beta
    s_lshl_b32 s78, s69, 4
    v_add_u32 v13, s78, v4                        ; tau%32
    s_lshl_b32 s79, s77, 5
    v_add_u32 v14, s79, v13                       ; tau
    v_lshlrev_b32 v15, 3, v1
    v_lshlrev_b32 v16, 4, v1
    s_lshl_b32 s79, s77, 1
    s_add_u32 s79, s79, s69                       ; tau16
    s_mul_i32 s80, s23, 3
    s_mul_i32 s79, s79, 18
    s_add_u32 s79, s79, s80
    s_lshl_b32 s79, s79, 10
    v_lshlrev_b32 v17, 6, v14
    s_lshl_b32 s80, s23, 3
    s_mov_b32 s81, 0xffff0000
    """)
    srd(A, 32, 14, SZ_ACT, WS_X1)
    srd(A, 36, 14, SZ_ACT, WS_X1S)
    srd(A, 44, 14, SZ_STAT, WS_STAT)
    A("s_waitcnt vmcnt(0) lgkmcnt(0)")
    P.stamp()
    A("v_mov_b32 v18, 0")
    A("v_mov_b32 v19, 0")
    A("s_mov_b32 s82, 0x3f803f80")
    for k in range(12):
        r = PR + 2*k
        A(f"v_pk_add_f32 {vr(r,2)}, {vr(r,2)}, {vr(r+24,2)}")
        A(f"v_pk_add_f32 {vr(r+48,2)}, {vr(r+48,2)}, {vr(r+72,2)}")
        A(f"v_pk_fma_f32 {vr(r,2)}, {vr(r+48,2)}, v[12:13], {vr(r,2)} op_sel_hi:[1,0,1]")
        A(f"v_lshlrev_b32 v20, 16, v{XR+k}")
        A(f"v_and_b32 v21, s81, v{XR+k}")
        A(f"v_pk_fma_f32 {vr(r,2)}, {vr(r,2)}, {vr(GA+2*k,2)}, v[20:21]")
        A(f"v_cvt_pk_bf16_f32 v{XR+k}, v{r}, v{r+1}")
        A(f"v_lshlrev_b32 v20, 16, v{XR+k}")
        A(f"v_and_b32 v21, s81, v{XR+k}")
        A(f"v_dot2_f32_bf16 v18, v{XR+k}, s82, v18")
        A(f"v_dot2_f32_bf16 v19, v{XR+k}, v{XR+k}, v19")
        A(f"v_pk_mul_f32 v[20:21], v[20:21], {vr(CB+2*k,2)}")
        A(f"v_cvt_pk_bf16_f32 v{212+k}, v20, v21")
    for k in range(6):
        A(f"buffer_store_dwordx2 {vr(XR+2*k,2)}, v15, s[32:35], s79 offen offset:{512*k}")
    for k in range(3):
        A(f"buffer_store_dwordx4 {vr(212+4*k,4)}, v16, s[36:39], s79 offen offset:{1024*k}")
    for sw in ("v_permlane16_swap_b32", "v_permlane32_swap_b32"):
        A(f"""
        v_mov_b32 v20, v18
        v_mov_b32 v21, v19
        {sw} v18, v20
        {sw} v19, v21
        v_add_f32 v18, v18, v20
        v_add_f32 v19, v19, v21
        """)
    A(f"""
    v_cmp_gt_u32 vcc, 16, v1
    s_and_saveexec_b64 s[48:49], vcc
    buffer_store_dwordx2 v[18:19], v17, s[44:47], s80 offen
    """)
    if PROF:
        A("s_waitcnt vmcnt(0)")
        P.stamp()
        P.rt()
    P.flush(14, 24, 52, 8)
    A("s_endpgm")
    P.n = 2

    A.label("kb_side")
    A(f"""
    s_sub_u32 s25, s21, 24
    s_mul_i32 s26, s25, 7
    s_add_u32 s26, s26, s20
    s_sub_u32 s26, s26, 1
    s_sub_u32 s27, s21, 30
    s_lshl_b32 s27, s27, 3
    s_add_u32 s27, s27, s20
    s_add_u32 s27, s27, 42
    s_cmp_ge_u32 s21, 30
    s_cselect_b32 s26, s27, s26                   ; sid
    s_cmp_ge_u32 s26, 54
    s_cbranch_scc1 kb_done
    s_mul_i32 s27, s26, 57
    s_lshr_b32 s27, s27, 10
    s_mul_i32 s28, s27, 18
    s_sub_u32 s28, s26, s28                       ; cc
    s_mul_i32 s29, s27, 192
    s_mul_i32 s30, s24, 48
    s_add_u32 s29, s29, s30
    s_mul_i32 s30, s29, 9216
    s_lshl_b32 s31, s28, 9
    s_add_u32 s30, s30, s31                       ; soffset
    v_lshlrev_b32 v3, 3, v1
    s_waitcnt lgkmcnt(0)
    """)
    srd(A, 32, 16, D*F*2)
    W = 32
    for i in range(48):
        A(f"buffer_load_dwordx2 {vr(W+2*i,2)}, v3, s[32:35], s30 offen")
        if i < 47: A(f"s_add_u32 s30, s30, 9216")
    srd(A, 80, 18, D*F*2)
    A(f"""
    s_lshl_b32 s31, s26, 2
    s_add_u32 s31, s31, s24
    s_mul_i32 s31, s31, 24576
    v_lshlrev_b32 v5, 4, v1
    """)
    NPF = 24
    for i in range(NPF):
        A(f"buffer_load_dwordx4 {vr(128+4*i,4)}, v5, s[80:83], s31 offen offset:{1024*(i%4)}")
        if i % 4 == 3: A("s_add_u32 s31, s31, 4096")
    A(f"""
    s_lshl_b32 s29, s29, 3
    s_add_u32 s36, s14, s29
    s_addc_u32 s37, s15, 0
    s_add_u32 s36, s36, {WS_CS}
    s_addc_u32 s37, s37, 0
    s_mov_b32 s38, 0xffff0000
    """)
    for k in range(8): A(f"v_mov_b32 v{8+k}, 0")
    for bt in range(3):
        A(f"s_load_dwordx16 s[48:63], s[36:37], {128*bt}")
        A(f"s_load_dwordx16 s[64:79], s[36:37], {128*bt+64}")
        A("s_waitcnt lgkmcnt(0)")
        for ii in range(16):
            i = 16*bt + ii
            A(f"s_waitcnt vmcnt({min(63, 47-i+NPF)})")
            sp = 48 + 2*ii
            for k in range(2):
                A(f"v_lshlrev_b32 v16, 16, v{W+2*i+k}")
                A(f"v_and_b32 v17, s38, v{W+2*i+k}")
                A(f"v_pk_fma_f32 {vr(8+4*k,2)}, v[16:17], s[{sp}:{sp+1}], {vr(8+4*k,2)} op_sel_hi:[0,1,1]")
                A(f"v_pk_fma_f32 {vr(10+4*k,2)}, v[16:17], s[{sp}:{sp+1}], {vr(10+4*k,2)} op_sel:[1,0,0] op_sel_hi:[1,1,1]")
    A(f"""
    v_lshlrev_b32 v4, 5, v0
    ds_write_b128 v4, v[8:11]
    ds_write_b128 v4, v[12:15] offset:16
    s_waitcnt lgkmcnt(0)
    s_barrier
    v_lshlrev_b32 v4, 3, v0
    ds_read_b64 v[8:9], v4
    ds_read_b64 v[10:11], v4 offset:2048
    ds_read_b64 v[12:13], v4 offset:4096
    ds_read_b64 v[14:15], v4 offset:6144
    """)
    srd(A, 40, 14, SZ_G, WS_G)
    A(f"""
    s_mul_i32 s44, s27, {2*F*4}
    s_lshl_b32 s45, s28, 10
    s_add_u32 s44, s44, s45
    s_add_u32 s45, s44, {F*4}
    v_lshlrev_b32 v4, 2, v0
    s_waitcnt lgkmcnt(0)
    v_pk_add_f32 v[8:9], v[8:9], v[10:11]
    v_pk_add_f32 v[12:13], v[12:13], v[14:15]
    v_pk_add_f32 v[8:9], v[8:9], v[12:13]
    buffer_store_dword v8, v4, s[40:43], s44 offen
    buffer_store_dword v9, v4, s[40:43], s45 offen
    """)
    if PROF:
        A("s_waitcnt vmcnt(0)")
        for _ in range(5): P.stamp()
        P.rt()
    P.flush(14, 24, 52, 8)
    A("kb_done:\ns_endpgm")
    return dict(name=name, vgpr=224+216, sgpr=102, accum=224, grid=KB_GRID, block=256, lds=KB_LDS)
```

```python
from asmlib import *
S, D, F = 2048, 576, 4608
KA_X, KA_SRE, KA_SIM, KA_HRE, KA_HIM, KA_BX, KA_W1, KA_W2, KA_C, KA_WMOD, KA_OUT, KA_DBG, KA_WS = [8 * i for i in range(13)]
WS_MOD = 0
WS_CS = 0x4000
WS_Z = 0x10000
SZ_ACT = S * D * 2
WS_X1 = WS_Z + SZ_ACT
WS_X1S = WS_X1 + SZ_ACT
WS_STAT = WS_X1S + SZ_ACT
SZ_STAT = 2048 * 64
WS_G = WS_STAT + SZ_STAT
SZ_G = 3 * 2 * F * 4
WS_H1 = WS_G + 0x20000
SZ_H1 = S * F * 2
WS_PART = WS_H1 + SZ_H1
SZ_PART = 4 * S * D * 4

def srd(A, d, base, size, off=0):
    if off:
        A(f"s_add_u32 s{d}, s{base}, {off}")
        A(f"s_addc_u32 s{d+1}, s{base+1}, 0")
        A(f"s_and_b32 s{d+1}, s{d+1}, 0xffff")
    else:
        A(f"s_mov_b32 s{d}, s{base}")
        A(f"s_and_b32 s{d+1}, s{base+1}, 0xffff")
    A(f"s_mov_b32 s{d+2}, {size}")
    A(f"s_mov_b32 s{d+3}, 0x20000")

def vr(a, n=1, t="v"):
    return f"{t}{a}" if n == 1 else f"{t}[{a}:{a+n-1}]"

import os
PROF = os.environ.get("PROF", "0") == "1"
WS_PROF = 200 << 20
class Prof:
    def __init__(self, A, base, slot):
        self.A, self.base, self.n, self.slot = A, base, 0, slot
    def stamp(self):
        if not PROF: return
        self.A(f"s_memtime s[{self.base+2*self.n}:{self.base+2*self.n+1}]")
        self.n += 1
    def rt(self):
        if not PROF: return
        self.A(f"s_memrealtime s[{self.base+2*self.n}:{self.base+2*self.n+1}]")
        self.n += 1
    def flush(self, ws_sgpr, wave_sgpr, srd_base, vtmp):
        if not PROF: return
        A = self.A
        A("s_waitcnt lgkmcnt(0)")
        srd(A, srd_base, ws_sgpr, 1 << 24, WS_PROF + self.slot * (1 << 20))
        A(f"s_lshl_b32 s{srd_base+4}, s2, 3")
        A(f"s_add_u32 s{srd_base+4}, s{srd_base+4}, s{wave_sgpr}")
        A(f"s_lshl_b32 s{srd_base+4}, s{srd_base+4}, 7")
        A(f"s_mov_b64 exec, 1")
        A(f"v_mov_b32 v{vtmp+1}, 0")
        for i in range(self.n):
            A(f"v_mov_b32 v{vtmp}, s{self.base+2*i}")
            A(f"buffer_store_dword v{vtmp}, v{vtmp+1}, s[{srd_base}:{srd_base+3}], s{srd_base+4} offen offset:{4*i}")

WS_WDP = WS_PART + SZ_PART + (4 << 20)
SZ_WDP = 2 * 36 * 18 * 1024
WS_FL1 = WS_WDP + SZ_WDP
WS_FL2 = WS_FL1 + 256 * 128
SZ_FL = 2 * 256 * 128
SZ_PART2 = 64 * 4 * 4 * 4 * 5 * 1024
assert SZ_PART2 <= SZ_PART + (4 << 20)
import struct
f2h = lambda f: hex(struct.unpack("<I", struct.pack("<f", f))[0])

class Cnt:
    def __init__(self, maxn):
        self.order = []; self.done = 0; self.maxn = maxn
    def issue(self, tag): self.order.append(tag)
    def need(self, pred):
        idx = [i for i, t in enumerate(self.order) if pred(t)]
        if not idx: return None
        last = idx[-1]
        if last < self.done: return None
        n = len(self.order) - 1 - last
        if n > self.maxn: n = self.maxn; last = len(self.order) - 1 - n
        self.done = max(self.done, last + 1)
        return n
    def complete(self, pred):
        return all(i < self.done for i, t in enumerate(self.order) if pred(t))
WS_W1P = WS_FL1 + SZ_FL
SZ_WP = D * F * 2
WS_W2P = WS_W1P + SZ_WP
SZ_PART3 = 64 * 4 * 9 * 2 * 4 * 1024
assert SZ_PART3 <= SZ_PART + (4 << 20)
ROT = [2, 4, 6, 0]

PARTS = [int(x) for x in os.environ.get('PARTS', '8,6,4').split(',')]
PST = [sum(PARTS[:i]) for i in range(len(PARTS) + 1)]

DBGT = os.environ.get("DBGT", "0") == "1"
def dbg_start(A, sreg):
    if not DBGT: return
    A(f"s_memrealtime s[{sreg}:{sreg+1}]")
    A(f"s_load_dwordx2 s[{sreg+2}:{sreg+3}], s[0:1], {KA_DBG}")
def dbg_mark(A, sreg, launch, idx, tmp_srd, vt, start=False):
    if not DBGT: return
    A("s_waitcnt vmcnt(0) lgkmcnt(0)")
    A(f"s_memrealtime s[{tmp_srd+4}:{tmp_srd+5}]")
    A(f"s_sub_u32 s{tmp_srd}, s{sreg+2}, {512*launch}")
    A(f"s_subb_u32 s{tmp_srd+1}, s{sreg+3}, 0")
    A(f"s_and_b32 s{tmp_srd+1}, s{tmp_srd+1}, 0xffff")
    A(f"s_mov_b32 s{tmp_srd+2}, 256")
    A(f"s_mov_b32 s{tmp_srd+3}, 0x20000")
    A("s_waitcnt lgkmcnt(0)")
    A(f"s_mov_b64 s[{tmp_srd+6}:{tmp_srd+7}], exec")
    A("s_mov_b64 exec, 1")
    A(f"v_mov_b32 v{vt}, s{tmp_srd+4}")
    A(f"v_mov_b32 v{vt+1}, 0")
    A(f"buffer_atomic_umax v{vt}, v{vt+1}, s[{tmp_srd}:{tmp_srd+3}], 0 offen offset:{4*idx}")
    if start:
        A(f"s_not_b32 s{tmp_srd+4}, s{sreg}")
        A(f"v_mov_b32 v{vt+2}, s{tmp_srd+4}")
        A(f"buffer_atomic_umax v{vt+2}, v{vt+1}, s[{tmp_srd}:{tmp_srd+3}], 0 offen offset:{4*idx-4}")
    A(f"s_mov_b64 exec, s[{tmp_srd+6}:{tmp_srd+7}]")
```

```python
from common import *
STG = 36864
NSLOT = 4
F_GL = NSLOT * STG
F_LDS = F_GL + 4608
E = lambda k, d: int(os.environ.get(k, str(d)))
DIST = E('DIST', 10)
RING = E('RING', 13)
NTM = E('NTM', 2)
NP = len(PARTS)
LST = [x // 2 for x in PST]
P2 = [(0, l) for l in range(9)] + [(d, l) for p in range(NP) for d in (1, 2, 3) for l in range(LST[p], LST[p+1])]
partof = lambda l: max(p for p in range(NP) if LST[p] <= l)

def stats_to_ms(A, vst, vm, vsig, tmp):
    for a, b in ((0, 2), (4, 6), (8, 10), (0, 4), (0, 8)):
        A(f"v_add_f32 v{vst+a}, v{vst+a}, v{vst+b}")
        A(f"v_add_f32 v{vst+a+1}, v{vst+a+1}, v{vst+b+1}")
    A(f"v_mul_f32 v{vm}, {f2h(-1.0/576)}, v{vst}")
    A(f"v_mul_f32 v{tmp}, {f2h(1.0/576)}, v{vst+1}")
    A(f"v_fma_f32 v{tmp}, -v{vm}, v{vm}, v{tmp}")
    A(f"v_max_f32 v{tmp}, 0, v{tmp}")
    A(f"v_add_f32 v{tmp}, {f2h(1e-5)}, v{tmp}")
    A(f"v_sqrt_f32 v{vsig}, v{tmp}")

class Rec:
    def __init__(self): self.l = []
    def __call__(self, t):
        for x in t.strip().split("\n"):
            x = x.split(";")[0].strip()
            if x: self.l.append(x)

def gen_ffn(A, name="ffn_kernel"):
    A.raw(kernel_header(name))
    P = Prof(A, 70, 2)
    A(f"""
    s_cmp_ge_u32 s2, 256
    s_cbranch_scc1 ffn_done
    """)
    dbg_start(A, 96)
    P.rt(); P.stamp()
    A(f"""
    s_load_dwordx2 s[60:61], s[0:1], {KA_WS}
    s_load_dwordx2 s[62:63], s[0:1], {KA_OUT}
    s_and_b32 s20, s2, 7                 ; xcd
    s_lshr_b32 s21, s2, 3                ; idx
    s_and_b32 s22, s20, 1
    s_lshl_b32 s22, s22, 3
    s_lshr_b32 s23, s21, 2
    s_add_u32 s22, s22, s23              ; taub
    s_lshr_b32 s23, s20, 1               ; q
    s_and_b32 s21, s21, 3                ; j
    s_lshl_b32 s25, s23, 2
    s_add_u32 s25, s25, s21              ; fb = 4q + j
    s_mul_i32 s29, s21, 9
    s_lshr_b32 s29, s29, 1
    v_and_b32 v1, 63, v0
    v_lshrrev_b32 v2, 6, v0
    v_lshlrev_b32 v26, 4, v1             ; lane*16
    v_readfirstlane_b32 s24, v2          ; wave
    v_mov_b32 v30, 0x7ffffff0
    v_add_u32 v25, {18*1024}, v26
    s_mul_i32 s30, s25, {36*9216}
    s_mul_i32 s26, s24, 9216
    s_add_u32 s31, s30, {SZ_WP}
    s_add_u32 s30, s30, s26
    s_lshl_b32 s27, s22, 2
    s_add_u32 s27, s27, s24              ; beta
    s_mul_i32 s28, s27, {36*1024}
    s_add_u32 s5, s28, {18*1024}
    s_lshl_b32 s4, s29, 10
    s_add_u32 s4, s4, s28
    s_lshl_b32 s65, s24, 3               ; 8*w
    v_and_b32 v6, 15, v1                 ; tok
    v_lshrrev_b32 v7, 4, v1              ; g
    s_waitcnt lgkmcnt(0)
    """)
    srd(A, 8, 60, 2*SZ_WP, WS_W1P)
    srd(A, 16, 60, SZ_ACT, WS_X1S)
    VM = Cnt(63); LG = Cnt(15)
    ABL = os.environ.get('ABL', '').split(',')
    cur = [0]
    def vm(tag, txt):
        key = tag[0] if isinstance(tag, tuple) else tag
        if key in ABL: txt = txt.replace("v26,", "v30,").replace("v25,", "v30,")
        A(txt); VM.issue(tag)
    def lg(tag, txt): A(txt); LG.issue(tag)
    def waitvm(pred):
        n = VM.need(pred)
        if n is not None: A(f"s_waitcnt vmcnt({n})")
    def waitlg(pred):
        n = LG.need(pred)
        if n is not None: A(f"s_waitcnt lgkmcnt({n})")
    def dma_group(g):
        ops = []
        sreg = 68 + (g & 1)
        if g < 9:
            pre = [f"s_add_u32 s{sreg}, s30, {g*STG}"]
        else:
            lit = 0
            for w in range(4):
                d, l = P2[4*(g-9) + w]
                lit |= (d*16 + l) << (8*w)
            pre = [f"s_lshr_b32 s66, {hex(lit)}, s65", "s_lshr_b32 s67, s66, 4", "s_add_u32 s67, s67, s21", "s_and_b32 s67, s67, 3",
                   "s_mul_i32 s67, s67, 9", "s_and_b32 s66, s66, 15", "s_add_u32 s66, s66, s67",
                   f"s_mul_i32 s66, s66, 9216", f"s_add_u32 s{sreg}, s66, s31"]
        for n in range(9):
            op = [(None, x) for x in pre] if n == 0 else []
            if n % 4 == 0:
                if n: op.append((None, f"s_add_u32 s{sreg}, s{sreg}, 4096"))
                op.append((None, f"s_add_u32 m0, s26, {(g % NSLOT)*STG + 1024*n}"))
            op.append((("dma", g), f"buffer_load_dwordx4 v26, s[8:11], s{sreg} offen offset:{1024*(n%4)} lds"))
            ops.append(op)
        return ops
    def xfr(kk, tt): return vr(8*kk + 4*tt, 4, 'a')
    def x1s_op(kk, tt):
        op = [(("x1s", kk), f"buffer_load_dwordx4 {xfr(kk,tt)}, v{26-tt}, s[16:19], s4 offen")]
        if tt == 1 and kk < 17:
            op += [(None, x) for x in ("s_add_u32 s4, s4, 1024", "s_cmp_eq_u32 s4, s5", "s_cselect_b32 s4, s28, s4")]
        return op
    def emit(op):
        for tag, txt in op:
            if tag is None: A(txt)
            else: vm(tag, txt)
    XP = E('XP', 5)
    for op in dma_group(0): emit(op)
    for kk in range(XP):
        for tt in range(2): emit(x1s_op(kk, tt))
    for op in dma_group(1): emit(op)
    ST, GP = 208, 232
    srd(A, 32, 60, SZ_H1, WS_H1)
    srd(A, 36, 60, SZ_FL, WS_FL1)
    srd(A, 40, 60, SZ_STAT, WS_STAT)
    srd(A, 44, 60, SZ_G, WS_G)
    srd(A, 12, 60, SZ_PART3, WS_PART)
    A(f"""
    s_lshl_b32 s66, s27, 5
    v_add_u32 v252, s66, v6
    v_lshlrev_b32 v252, 6, v252
    v_lshlrev_b32 v253, 3, v0
    v_cmp_lt_u32 vcc, 143, v0
    v_cndmask_b32 v253, v253, v30, vcc
    v_lshlrev_b32 v4, 5, v0
    v_add_u32 v4, {F_GL}, v4
    s_mul_i32 s64, s25, 1152
    v_add_u32 v27, {STG}, v26
    v_add_u32 v28, {2*STG}, v26
    v_add_u32 v29, {3*STG}, v26
    v_lshlrev_b32 v31, 4, v6
    v_add_u32 v31, {F_GL}, v31
    s_mul_i32 s48, s27, {2*144*1024}
    s_mul_i32 s66, s25, {9*1024}
    s_add_u32 s50, s48, s66
    s_add_u32 s51, s50, {144*1024}
    s_add_u32 s52, s50, 4096
    s_add_u32 s53, s51, 4096
    s_add_u32 s54, s50, 8192
    s_add_u32 s55, s51, 8192
    s_mul_i32 s66, s23, {36*1024}
    s_add_u32 s48, s48, s66              ; cluster base (beta, q), tt=0
    s_lshl_b32 s56, s27, 2
    s_add_u32 s57, s56, s23
    s_lshl_b32 s57, s57, 7
    s_add_u32 s58, s56, s21
    s_mul_i32 s56, s58, {9*4*1024}
    s_lshl_b32 s58, s58, 7
    s_add_u32 s58, s58, {256*128}
    s_lshl_b32 s59, s21, 2
    v_mov_b32 v2, s59                    ; 4j
    v_mov_b32 v5, 0
    v_mov_b32 v3, 1
    s_mov_b32 s6, 0xffff0000
    """)
    early = []
    for tt in range(2):
        for k in range(3):
            early.append([("st", f"buffer_load_dwordx4 {vr(ST+12*tt+4*k,4)}, v252, s[40:43], 0 offen offset:{1024*tt+16*k}")])
    for k in range(6):
        early.append([("st", f"buffer_load_dwordx2 {vr(GP+2*k,2)}, v253, s[44:47], s64 offen")] + ([(None, f"s_add_u32 s64, s64, {F*4}")] if k < 5 else []))
    ACC = 32
    def aring(s):
        if s < 8: return vr(176 + 4*s, 4)
        if s == 8: return vr(244, 4)
        return vr(240 + 4*(s-9), 4, 'a')
    def acc1(t, tt): return ACC + 8*t + 4*tt
    def acc2(T, tt): return acc1(2*T+1, tt)
    SIG, NM = 248, 250
    SF = 8
    FLG = 252
    def hbase(k2):
        n = k2 - 9
        return 144 + 8*n if n < 12 else 8*(n - 12)
    def hfrag(k2, tt):
        d, l = P2[k2]
        if d == 0: return vr(acc1(2*l, tt), 4)
        return vr(hbase(k2) + 4*tt, 4, 'a')
    seq = []; PE = []; nf = 0
    for p in range(NP):
        for kk in range(18):
            for t in range(PST[p], PST[p+1]):
                seq.append((('w', nf), t, ('x', kk), kk == 0)); nf += 1
        for t in range(PST[p], PST[p+1]): seq.append((('g', t), t, ('s', 0), False))
        PE.append(len(seq))
    S2 = len(seq)
    KT = 36 - 4*NTM
    o2 = [(k2, T) for k2 in range(KT) for T in range(9)] + [(k2, T) for T in range(9) for k2 in range(KT, 36)]
    for k2, T in o2: seq.append((('w', 324 + 9*k2 + T), 2*T+1, ('h', k2), k2 == 0))
    NS = len(seq)
    TM0 = S2 + KT*9
    first_read = {}
    for i, e in enumerate(seq):
        if e[0][0] == 'w': first_read.setdefault(min(e[0][1] // 36, 18 - NTM), i)
    bar_at = {i: g for g, i in first_read.items() if g > 0}
    Bpos = lambda g: first_read[min(g, 18 - NTM)] - DIST
    xlast = {kk: max(i for i, e in enumerate(seq) if e[2] == ('x', kk)) for kk in range(18)}
    xfirst = {kk: min(i for i, e in enumerate(seq) if e[2] == ('x', kk)) for kk in range(18)}
    hfirst = {k2: min(i for i, e in enumerate(seq) if e[2] == ('h', k2)) for k2 in range(36)}
    def read1(i):
        kind, f = seq[i][0]
        if kind == 'w':
            g, r = divmod(f, 36)
            lg(("a", i), f"ds_read_b128 {aring(i % RING)}, v{26 + g % NSLOT} offset:{1024*r}")
        else:
            lg(("a", i), f"ds_read_b128 {aring(i % RING)}, v31 offset:{256*f}")
    Q = []
    CAT = [None]
    KEEP = os.environ.get('KEEP')
    def add(ready, fns, deadline=10**9):
        if KEEP is not None and CAT[0] not in KEEP.split(','): return
        for fn in fns: Q.append([ready, len(Q), deadline, fn])
    def I(txt): return lambda: A(txt)
    def opfns(op): return [(lambda tag=tag, txt=txt: A(txt) if tag is None else vm(tag, txt)) for tag, txt in op]
    def spread(ops, slots, deadline=10**9):
        n = len(ops); slots = list(slots)
        for k, op in enumerate(ops):
            add(slots[len(slots) * k // n], opfns(op), deadline)
    DW = E('DW', 30)
    CAT[0] = 'dma'
    XL = E('XL', 44)
    for kk in range(XP, 18):
        for tt in range(2): add(max(0, xfirst[kk] - XL + 3*tt), opfns(x1s_op(kk, tt)), xfirst[kk] - 8)
    spread(dma_group(2), range(2, 24), Bpos(2) - 2)
    spread(early, range(24, 60))
    for g in range(3, 18):
        lo = Bpos(g-2) + 1
        w = DW
        if g > 18 - NTM: w = 16
        spread(dma_group(g), range(lo, lo + w), Bpos(g) - 2)
    CAT[0] = 'bias'
    GBAR = 3
    R = Rec()
    for k in range(4):
        R(f"v_add_f32 v{GP+k}, v{GP+k}, v{GP+4+k}")
    for k in range(4):
        R(f"v_add_f32 v{GP+k}, v{GP+k}, v{GP+8+k}")
    for e in range(2):
        g1, g2, o = GP + e, GP + 2 + e, 16 + 4*e
        R(f"""
        v_cvt_pk_bf16_f32 v{o}, v{g1}, v{g1}
        v_cvt_pk_bf16_f32 v24, v{g2}, v{g2}
        v_and_b32 v{o+3}, s6, v{o}
        v_and_b32 v24, s6, v24
        v_sub_f32 v{o+3}, v{g1}, v{o+3}
        v_sub_f32 v24, v{g2}, v24
        v_cvt_pk_bf16_f32 v{o+1}, v{o+3}, v{g2}
        v_cvt_pk_bf16_f32 v{o+2}, v{g2}, v24
        v_mov_b32 v{o+3}, 0
        """)
    def gw():
        A("v_cmp_gt_u32 vcc, 144, v0")
        A("s_and_saveexec_b64 s[66:67], vcc")
        lg("gw", f"ds_write_b128 v4, v[16:19]")
        lg("gw", f"ds_write_b128 v4, v[20:23] offset:16")
        A("s_mov_b64 exec, s[66:67]")
    add(76, [lambda: waitvm(lambda t: t == "st")] + [I(x) for x in R.l] + [gw], Bpos(GBAR) - 1)
    for tt in range(2):
        R = Rec(); stats_to_ms(R, ST+12*tt, NM+tt, SIG+tt, 240)
        o = SF + 4*tt
        R(f"""
        v_cvt_pk_bf16_f32 v{o+1}, v{NM+tt}, v{SIG+tt}
        v_lshlrev_b32 v240, 16, v{o+1}
        v_and_b32 v241, s6, v{o+1}
        v_sub_f32 v242, v{NM+tt}, v240
        v_sub_f32 v243, v{SIG+tt}, v241
        v_cvt_pk_bf16_f32 v{o}, v240, v242
        v_cvt_pk_bf16_f32 v{o+2}, v243, v241
        v_cmp_eq_u32 vcc, 0, v7
        v_mov_b32 v{o+3}, 0
        v_cndmask_b32 v{o}, 0, v{o}, vcc
        v_cndmask_b32 v{o+1}, 0, v{o+1}, vcc
        v_cndmask_b32 v{o+2}, 0, v{o+2}, vcc
        """)
        add(100 + 16*tt, [I(x) for x in R.l], PE[0] - PARTS[0] - 2)
    assert PE[0] - PARTS[0] - DIST > Bpos(GBAR)
    CAT[0] = 'conv'
    def conv(l, tt):
        a, b = acc1(2*l, tt), acc1(2*l+1, tt)
        fns = [I(f"v_cvt_pk_bf16_f32 v{a}, v{a}, v{a+1}"), I(f"v_cvt_pk_bf16_f32 v{a+1}, v{a+2}, v{a+3}"),
               I(f"v_cvt_pk_bf16_f32 v{a+2}, v{b}, v{b+1}"), I(f"v_cvt_pk_bf16_f32 v{a+3}, v{b+2}, v{b+3}")]
        fns += [I(f"v_pk_max_i16 v{a+k}, v{a+k}, 0") for k in range(4)]
        fns.append(lambda: vm(("h1st", partof(l)), f"buffer_store_dwordx4 {vr(a,4)}, v26, s[32:35], s{50 + 2*(l//4) + tt} offen offset:{1024*(l%4)} sc1"))
        return fns
    SG = E('SG', 6)
    fw = {}
    for p in range(NP):
        n = 0
        for l in range(LST[p], LST[p+1]):
            done = PE[p] - (PST[p+1] - (2*l+1))
            for tt in range(2):
                if p < NP - 1:
                    add(max(done + 2, PE[p] - 2 + SG*n), conv(l, tt))
                else:
                    c = conv(l, tt)
                    add(done + 2, c[:-1], S2 + l - 1)
                    add(max(S2 + 9, PE[p] + 8 + SG*n), c[-1:])
                n += 1
        fw[p] = PE[p] + 8 + SG*n + E('FWD', 40)
    npoll = [0]
    def poll_issue(part):
        vm(("poll", part), f"buffer_load_dwordx4 {vr(FLG,4)}, v5, s[36:39], s57 offen offset:{16*part} sc1")
    def poll_check(part):
        waitvm(lambda t: t == ("poll", part))
        n = npoll[0]; npoll[0] += 1
        A(f"""
        s_mov_b32 s67, 400000
        ffn_pc{n}:
        v_and_b32 v{FLG}, v{FLG}, v{FLG+1}
        v_and_b32 v{FLG+2}, v{FLG+2}, v{FLG+3}
        v_and_b32 v{FLG}, v{FLG}, v{FLG+2}
        s_nop 0
        v_readfirstlane_b32 s66, v{FLG}
        s_cmp_lg_u32 s66, 0
        s_cbranch_scc1 ffn_ok{n}
        s_sub_u32 s67, s67, 1
        s_cbranch_scc1 ffn_ok{n}
        s_sleep 2
        buffer_load_dwordx4 {vr(FLG,4)}, v5, s[36:39], s57 offen offset:{16*part} sc1
        s_waitcnt vmcnt(0)
        s_branch ffn_pc{n}
        ffn_ok{n}:
        """)
    PD, PL = E('PD', 24), E('PL', 30)
    avail = {}
    CAT[0] = 'poll'
    for p in range(NP):
        add(fw[p] + PD, [lambda p=p: poll_issue(p)])
        add(fw[p] + PD + PL, [lambda p=p: poll_check(p)])
        avail[p] = fw[p] + PD + PL + 1
    CAT[0] = 'h1'
    HL = E('HL', 40)
    a0, a1 = avail[0], TM0 - HL
    prev = 0
    for n, k2 in enumerate(range(9, 36)):
        d, l = P2[k2]
        for tt in range(2):
            op = []
            if tt == 0:
                if l == LST[partof(l)]:
                    op += [(None, x) for x in (f"s_add_u32 s64, s21, {d}", "s_and_b32 s64, s64, 3", f"s_mul_i32 s64, s64, {9*1024}",
                           "s_add_u32 s64, s64, s48", f"s_add_u32 s64, s64, {4096*(l//4)}", f"s_add_u32 s49, s64, {144*1024}")]
                elif l % 4 == 0:
                    op += [(None, "s_add_u32 s64, s64, 4096"), (None, "s_add_u32 s49, s49, 4096")]
            op.append((("h1", k2), f"buffer_load_dwordx4 {hfrag(k2,tt)}, v26, s[32:35], s{64 if tt == 0 else 49} offen offset:{1024*(l%4)} sc1"))
            s = a0 + (a1 - a0) * (2*n + tt) // 54
            s = min(s, hfirst[k2] - HL)
            s = max(s, avail[partof(l)], prev + 1)
            if hbase(k2) < 144: s = max(s, xlast[hbase(k2) // 8] + 1)
            assert s < hfirst[k2] - 8, (k2, s, hfirst[k2])
            prev = s
            add(s, opfns(op), hfirst[k2] - 4)
    XT, GB = 208, 220
    R = Rec()
    srd(R, 40, 60, SZ_ACT, WS_X1)
    srd(R, 44, 60, 13824, WS_MOD)
    R(f"""
        s_lshl_b32 s22, s23, 1
        s_add_u32 s20, s22, 2
        s_cmp_eq_u32 s23, 3
        s_cselect_b32 s20, 0, s20            ; rot
        s_cselect_b32 s22, 7, s22            ; A0
        s_cselect_b32 s67, 1, 0
        s_mul_i32 s29, s21, 9
        s_add_u32 s29, s29, s22
        s_sub_u32 s29, s29, s67              ; first tile loaded (A0-1 when q==3)
        s_mul_i32 s28, s27, 72
        s_add_u32 s28, s28, s29
        s_lshl_b32 s28, s28, 9
        s_add_u32 s30, s28, {36*512}         ; tt=1
        s_lshl_b32 s29, s29, 6
        s_add_u32 s29, s29, {2880*4}
        s_lshl_b32 s67, s23, 10
        s_add_u32 s59, s56, s67
        v_lshlrev_b32 v240, 3, v1
        v_lshlrev_b32 v241, 4, v7""")
    CAT[0] = 'always'
    add(S2 + 40, [I(x) for x in R.l])
    CAT[0] = 'fin'
    fl = []
    for k in range(3):
        for tt in range(2):
            fl.append([("fin", f"buffer_load_dwordx2 {vr(XT+4*k+2*tt,2)}, v240, s[40:43], s{28+2*tt} offen offset:{512*k}")])
        fl.append([("fin", f"buffer_load_dwordx4 {vr(GB+4*k,4)}, v241, s[44:47], s29 offen offset:{64*k}")])
    spread(fl, range(TM0 - 10, TM0 + 26))
    nk = 36 - KT
    CAT[0] = 'pst'
    for T in range(7):
        pre = [f"s_add_u32 s66, s20, {T}", "s_cmp_ge_u32 s66, 9", "s_cselect_b32 s67, 9, 0", "s_sub_u32 s66, s66, s67",
               "s_lshl_b32 s66, s66, 12", "s_add_u32 s66, s66, s59"]
        a_ = acc2(T, 0)
        cv = [f"v_cvt_pk_bf16_f32 v{a_+k}, v{a_+2*k}, v{a_+2*k+1}" for k in range(4)]
        add(TM0 + nk*(T+1) - 2, [I(x) for x in pre])
        add(TM0 + nk*(T+1) + 2, [I(x) for x in cv] + [lambda a_=a_: vm("pst", f"buffer_store_dwordx4 {vr(a_,4)}, v26, s[12:15], s66 offen sc1")])
    flagged = {}
    def try_flags():
        for part in range(NP):
            if part in flagged: continue
            if sum(t == ("h1st", part) for t in VM.order) == PARTS[part] and VM.complete(lambda t: t == ("h1st", part)):
                vm("flag", f"buffer_store_dword v3, v2, s[36:39], s57 offen offset:{16*part} sc1")
                flagged[part] = cur[0]
    CAT[0] = 'conv'
    for p in range(NP):
        add(fw[p], [lambda p=p: (waitvm(lambda t: t == ("h1st", p)), try_flags())])
    Q.sort(key=lambda e: (e[0], e[1]))
    NOSIDE = E('NOSIDE', 0)
    def pump(slot, k):
        n = 0
        while Q and Q[0][0] <= slot and n < k:
            Q.pop(0)[3](); n += 1
    def flush_deadlines(slot):
        idx = [i for i, e in enumerate(Q) if e[2] <= slot]
        if idx:
            for _ in range(idx[-1] + 1):
                assert Q[0][0] <= slot, (Q[0], slot)
                Q.pop(0)[3]()
    WG = E('WG', 4)
    P.stamp()
    waitvm(lambda t: t == ("dma", 0))
    A("s_barrier")
    P.stamp()
    if PROF: A("s_waitcnt lgkmcnt(0)")
    if DBGT:
        A("s_memrealtime s[92:93]")
        A("s_waitcnt lgkmcnt(0)")
    for i in range(DIST): read1(i)
    seen = set()
    for i in range(NS):
        cur[0] = i
        asrc, t, bsrc, first = seq[i]
        flush_deadlines(i)
        if bsrc not in seen:
            seen.add(bsrc)
            tag = ("x1s", bsrc[1]) if bsrc[0] == 'x' else ("h1", bsrc[1])
            if bsrc[0] == 'x' or (bsrc[0] == 'h' and bsrc[1] >= 9):
                assert NOSIDE or sum(x == tag for x in VM.order) == 2, tag
                waitvm(lambda x: x == tag)
            try_flags()
        if i % WG == 0:
            waitlg(lambda x: isinstance(x, tuple) and x[0] == "a" and x[1] < i + WG)
        nx = i + DIST
        for tt in range(2):
            d = vr(acc1(t, tt), 4)
            B = xfr(bsrc[1], tt) if bsrc[0] == 'x' else hfrag(bsrc[1], tt) if bsrc[0] == 'h' else vr(SF + 4*tt, 4)
            A(f"v_mfma_f32_16x16x32_bf16 {d}, {aring(i % RING)}, {B}, {'0' if first else d}")
            if nx < NS and tt == 0:
                if nx in bar_at:
                    g = bar_at[nx]
                    gs = [g] if g < 18 - NTM else list(range(g, 18))
                    if g == GBAR: waitlg(lambda x: x == "gw")
                    for gg in gs: assert NOSIDE or sum(x == ("dma", gg) for x in VM.order) == 9, gg
                    waitvm(lambda x: x[0] == "dma" and x[1] in gs)
                    A("s_barrier")
                    if PROF and g % 3 == 0:
                        P.stamp(); A("s_waitcnt lgkmcnt(0)"); LG.done = len(LG.order)
                    try_flags()
                read1(nx)
            backlog = sum(1 for e in Q if e[0] <= i)
            if tt == 0: pump(i, 1 if backlog > E('BL', 10) else 0)
            else: pump(i, 1 if (i + 1) % WG == 0 else 2)
    assert not Q, Q
    assert NOSIDE or len(flagged) == NP
    print("flags at slots", flagged, "avail", avail, "PE", PE, "TM0", TM0, "NS", NS)
    P.stamp()
    dbg_mark(A, 96, 2, 10, 84, 16)
    srd(A, 16, 62, SZ_ACT)
    A(f"""
    s_lshl_b32 s66, s23, 2
    v_mov_b32 v2, s66
    v_rcp_f32 v242, v{SIG}
    v_rcp_f32 v246, v{SIG+1}
    v_sub_u32 v9, 31, v6
    s_mov_b32 s67, {16*64*1152}
    s_cmp_gt_u32 s27, 32
    s_cselect_b64 vcc, -1, 0
    s_cselect_b32 s67, {(-16*64*1152) & 0xffffffff}, s67
    v_cndmask_b32 v8, v6, v9, vcc
    v_lshlrev_b32 v8, 6, v8
    v_add_u32 v8, s27, v8
    v_mul_u32_u24 v8, 1152, v8
    v_lshl_add_u32 v8, v7, 3, v8
    v_add_u32 v9, s67, v8                 ; tt=1
    s_mul_i32 s64, s21, 288
    s_lshl_b32 s49, s22, 5
    s_add_u32 s64, s64, s49
    s_lshl_b32 s66, s22, 12
    s_add_u32 s66, s66, s56
    s_waitcnt vmcnt(0)
    buffer_store_dword v3, v2, s[36:39], s58 offen sc1
    """)
    P.stamp()
    A(f"""
    s_mov_b32 s49, 400000
    ffn_p3:
    s_sub_u32 s49, s49, 1
    s_cbranch_scc1 ffn_p3x
    buffer_load_dwordx4 {vr(FLG,4)}, v5, s[36:39], s58 offen sc1
    s_waitcnt vmcnt(0)
    v_and_b32 v{FLG}, v{FLG}, v{FLG+1}
    v_and_b32 v{FLG+2}, v{FLG+2}, v{FLG+3}
    v_and_b32 v{FLG}, v{FLG}, v{FLG+2}
    s_nop 0
    v_readfirstlane_b32 s67, v{FLG}
    s_cmp_lg_u32 s67, 0
    s_cbranch_scc0 ffn_p3
    ffn_p3x:
    """)
    P.stamp()
    PR = 32
    for d in (1, 2, 3):
        A(f"""
        s_add_u32 s67, s23, {d}
        s_and_b32 s67, s67, 3
        s_lshl_b32 s67, s67, 10
        s_add_u32 s67, s67, s66
        s_add_u32 s4, s67, 4096
        """)
        for k in range(2):
            A(f"buffer_load_dwordx4 {vr(PR+8*(d-1)+4*k,4)}, v26, s[12:15], {'s67' if k == 0 else 's4'} offen sc1")
    def fin(r, srcs, x, gb, tt, off):
        rc = 242 if tt == 0 else 246
        for hh in range(2):
            rr = r + 2*hh
            for sreg in srcs:
                A(f"v_lshlrev_b32 v10, 16, v{sreg+hh}")
                A(f"v_and_b32 v11, s6, v{sreg+hh}")
                A(f"v_pk_add_f32 {vr(rr,2)}, {vr(rr,2)}, v[10:11]")
            A(f"v_pk_mul_f32 {vr(rr,2)}, {vr(rr,2)}, v[{rc}:{rc+1}] op_sel_hi:[1,0]")
            A(f"v_lshlrev_b32 v10, 16, v{x+hh}")
            A(f"v_and_b32 v11, s6, v{x+hh}")
            A(f"v_pk_fma_f32 {vr(rr,2)}, {vr(rr,2)}, {vr(gb+2*hh,2)}, v[10:11]")
            A(f"v_cvt_pk_bf16_f32 v{x+hh}, v{rr}, v{rr+1}")
        A(f"buffer_store_dwordx2 {vr(x,2)}, v{8+tt}, s[16:19], s64 offen offset:{off}")
    A("s_cmp_eq_u32 s23, 3")
    A("s_cbranch_scc1 ffn_q3")
    A("s_waitcnt vmcnt(0)")
    for k in range(2):
        for tt in range(2):
            fin(acc2(7+k, tt), [PR+8*d+4*k+2*tt for d in range(3)], XT+4*k+2*tt, GB+4*k, tt, 32*k)
    A("s_branch ffn_end")
    A("ffn_q3:")
    A("s_sub_u32 s67, s66, 4096")
    for s_ in range(4):
        A(f"buffer_load_dwordx4 {vr(56+4*s_,4)}, v26, s[12:15], s67 offen offset:{1024*s_} sc1")
    A("s_sub_u32 s64, s64, 32")
    for k in range(8): A(f"v_mov_b32 v{72+k}, 0")
    A("s_waitcnt vmcnt(4)")
    for k in range(2):
        for tt in range(2):
            fin(acc2(7+k, tt), [PR+8*d+4*k+2*tt for d in range(3)], XT+4*(k+1)+2*tt, GB+4*(k+1), tt, 32*(k+1))
    A("s_waitcnt vmcnt(4)")
    for tt in range(2):
        fin(72+4*tt, [56+4*s_+2*tt for s_ in range(4)], XT+2*tt, GB, tt, 0)
    A("ffn_end:")
    if PROF:
        A("s_waitcnt vmcnt(0)")
        P.stamp(); P.rt()
        P.flush(60, 24, 40, 8)
    dbg_mark(A, 96, 2, 9, 84, 8, True, (92, 11))
    A("ffn_done:\ns_endpgm")
    return dict(name=name, vgpr=512, sgpr=102, accum=256, grid=256, block=256, lds=F_LDS)
```

```python
from common import *

KA_NLN = 192
KA_NMOD = 54
KA_NPK = 54
KA_W0 = 304
KA_GRID = KA_W0 + 288
KA_LDS = 36864

def gen_ka(A, name="ka_kernel"):
    A.raw(kernel_header(name))
    P = Prof(A, 56, 0)
    A(f"""
    s_cmp_ge_u32 s2, {KA_GRID}
    s_cbranch_scc1 ka_done
    """)
    dbg_start(A, 90)
    P.rt()
    P.stamp()
    if PROF:
        A("v_lshrrev_b32 v2, 6, v0")
        A("s_nop 1")
        A("v_readfirstlane_b32 s52, v2")
    A(f"""
    s_cmp_ge_u32 s2, {KA_W0}
    s_cbranch_scc1 ka_wpack
    s_cmp_ge_u32 s2, {KA_NLN + KA_NMOD + KA_NPK}
    s_cbranch_scc1 ka_done
    s_cmp_ge_u32 s2, {KA_NLN + KA_NMOD}
    s_cbranch_scc1 ka_pack
    s_cmp_ge_u32 s2, {KA_NLN}
    s_cbranch_scc1 ka_mod
    s_load_dwordx4 s[4:7], s[0:1], {KA_X}
    s_load_dwordx2 s[8:9], s[0:1], {KA_SIM}
    s_load_dwordx2 s[10:11], s[0:1], {KA_WS}
    s_and_b32 s20, s2, 7
    s_lshr_b32 s21, s2, 3
    s_mul_i32 s23, s21, 43
    s_lshr_b32 s23, s23, 8            ; idx/6
    s_lshl_b32 s20, s20, 2
    s_add_u32 s20, s20, s23           ; s2v
    s_mul_i32 s23, s23, 6
    s_sub_u32 s21, s21, s23           ; cg
    s_mov_b32 s22, {8*32*1152}
    v_and_b32 v1, 63, v0              ; lane
    v_lshrrev_b32 v2, 6, v0           ; wave
    v_lshrrev_b32 v3, 3, v1           ; r
    v_and_b32 v4, 7, v1               ; c
    v_lshl_add_u32 v5, v2, 4, v3      ; s1 = 16w + r
    v_lshlrev_b32 v6, 5, v5
    v_add_u32 v6, s20, v6
    v_mul_u32_u24 v6, 1152, v6
    s_mul_i32 s24, s21, 12
    v_add_u32 v7, s24, v4             ; c + 12 cg
    """)
    for i in range(9):
        if i: A(f"v_add_u32 v7, 8, v7")
        A(f"v_subrev_u32 v17, 72, v7")
        A(f"v_min_u32 v17, v17, v7")
        A(f"v_lshl_add_u32 v{8+i}, v17, 4, v6")
    A("s_waitcnt lgkmcnt(0)")
    srd(A, 12, 4, SZ_ACT)
    X0, X1 = 32, 68
    for i in range(9):
        A(f"buffer_load_dwordx4 {vr(X0+4*i,4)}, v{8+i}, s[12:15], 0 offen")
    for i in range(9):
        A(f"buffer_load_dwordx4 {vr(X1+4*i,4)}, v{8+i}, s[12:15], s22 offen")
    A(f"""
    v_and_b32 v18, 15, v1
    v_lshrrev_b32 v19, 4, v1          ; g
    v_lshl_add_u32 v20, v2, 4, v18    ; j
    v_cmp_lt_u32 vcc, 32, v20         ; j > 32 -> imag
    v_subrev_u32 v21, 32, v20
    v_mov_b32 v22, s6
    v_mov_b32 v23, s7
    v_mov_b32 v24, s8
    v_mov_b32 v25, s9
    v_cndmask_b32 v21, v20, v21, vcc
    v_cndmask_b32 v22, v22, v24, vcc
    v_cndmask_b32 v23, v23, v25, vcc
    v_lshlrev_b32 v21, 17, v21        ; *32*4096
    v_lshl_add_u32 v21, v19, 4, v21   ; + 16 g
    v_add_co_u32 v22, vcc, v22, v21
    v_addc_co_u32 v23, vcc, 0, v23, vcc
    global_load_dwordx4 v[104:107], v[22:23], off
    global_load_dwordx4 v[108:111], v[22:23], off offset:64
    """)
    srd(A, 16, 10, SZ_ACT, WS_Z)
    A("s_mov_b32 s25, 0x3f803f80")
    for r in range(4): A(f"v_mov_b32 v{24+r}, 0")
    for p, X in enumerate((X0, X1)):
        for i in range(9):
            A(f"s_waitcnt vmcnt({2 + 17 - (9*p + i)})")
            for k in range(4):
                A(f"v_dot2_f32_bf16 v{24+2*p}, v{X+4*i+k}, s25, v{24+2*p}")
                A(f"v_dot2_f32_bf16 v{25+2*p}, v{X+4*i+k}, v{X+4*i+k}, v{25+2*p}")
    P.stamp()
    for mode in ("quad_perm:[1,0,3,2]", "quad_perm:[2,3,0,1]", "row_half_mirror"):
        for r in range(4):
            A(f"v_add_f32_dpp v{24+r}, v{24+r}, v{24+r} {mode} row_mask:0xf bank_mask:0xf")
    inv = "0x3ae38e39"
    import struct
    inv = hex(struct.unpack("<I", struct.pack("<f", 1.0/576))[0])
    eps = hex(struct.unpack("<I", struct.pack("<f", 1e-5))[0])
    for p in range(2):
        s_, q_ = 24+2*p, 25+2*p
        rs, nb = 28+2*p, 112+2*p
        A(f"v_mul_f32 v{s_}, {inv}, v{s_}")
        A(f"v_mul_f32 v{q_}, {inv}, v{q_}")
        A(f"v_fma_f32 v{q_}, -v{s_}, v{s_}, v{q_}")
        A(f"v_max_f32 v{q_}, 0, v{q_}")
        A(f"v_add_f32 v{q_}, {eps}, v{q_}")
        A(f"v_rsq_f32 v{rs}, v{q_}")
        A(f"v_mul_f32 v{nb}, v{s_}, v{rs}")
        A(f"v_sub_f32 v{nb}, 0, v{nb}")
    A("v_mul_u32_u24 v8, 192, v5")
    A("v_lshl_add_u32 v8, v4, 4, v8")
    A("s_mov_b32 s26, 0xffff0000")
    for p, X in enumerate((X0, X1)):
        rs, nb = 28+2*p, 112+2*p
        for i in range(2):
            for k in range(4):
                src = X+4*i+k
                A(f"v_lshlrev_b32 v116, 16, v{src}")
                A(f"v_and_b32 v117, s26, v{src}")
                A(f"v_pk_fma_f32 v[116:117], v[116:117], v[{rs}:{rs+1}], v[{nb}:{nb+1}] op_sel_hi:[1,0,0]")
                A(f"v_cvt_pk_bf16_f32 v{src}, v116, v117")
    A(f"ds_write_b128 v8, {vr(X0,4)}")
    A(f"ds_write_b128 v8, {vr(X1,4)} offset:{8*192}")
    A("v_cmp_gt_u32 vcc, 4, v4")
    A("s_and_saveexec_b64 s[28:29], vcc")
    A(f"ds_write_b128 v8, {vr(X0+4,4)} offset:128")
    A(f"ds_write_b128 v8, {vr(X1+4,4)} offset:{8*192+128}")
    A("s_mov_b64 exec, s[28:29]")
    A(f"""
    v_bfe_u32 v9, v1, 2, 2            ; r'
    v_lshl_add_u32 v9, v19, 3, v9
    v_mul_u32_u24 v9, 192, v9
    v_and_b32 v10, 1, v1
    v_lshl_add_u32 v9, v10, 5, v9
    v_bfe_u32 v10, v1, 1, 1
    v_lshl_add_u32 v9, v10, 3, v9
    v_lshlrev_b32 v11, 5, v20
    v_add_u32 v11, s20, v11
    v_mul_u32_u24 v11, 1152, v11
    v_lshl_add_u32 v11, v19, 4, v11
    s_mul_i32 s27, s21, 192
    s_waitcnt lgkmcnt(0)
    s_barrier
    """)
    P.stamp()
    AF = 32
    ACC = 80
    n = 0
    for ks in range(2):
        for T in range(6):
            for h in range(2):
                off = (32*ks + 4*h) * 192 + 64*(T >> 1) + 16*(T & 1)
                A(f"ds_read_b64_tr_b16 {vr(AF+4*(6*ks+T)+2*h,2)}, v9 offset:{off}")
    A("s_waitcnt vmcnt(0)")
    for ks in range(2):
        for T in range(6):
            idx = 6*ks+T
            A(f"s_waitcnt lgkmcnt({min(15, 2*(11-idx))})")
            c = "0" if ks == 0 else vr(ACC+4*T,4)
            A(f"v_mfma_f32_16x16x32_bf16 {vr(ACC+4*T,4)}, {vr(AF+4*idx,4)}, {vr(104+4*ks,4)}, {c}")
    for b in range(3):
        a0 = ACC + 8*b
        o = 32 + 4*b
        for k in range(4):
            A(f"v_cvt_pk_bf16_f32 v{o+k}, v{a0+2*k}, v{a0+2*k+1}")
        A(f"buffer_store_dwordx4 {vr(o,4)}, v11, s[16:19], s27 offen offset:{64*b}")
    if PROF:
        A("s_waitcnt vmcnt(0)")
        P.stamp()
        P.rt()
    P.flush(10, 52, 44, 8)
    dbg_mark(A, 90, 0, 1, 80, 120, True)
    A("s_endpgm")
    P.n = 2

    A.label("ka_mod")
    A(f"""
    s_load_dwordx4 s[4:7], s[0:1], {KA_C}      ; c, w_mod
    s_load_dwordx2 s[10:11], s[0:1], {KA_WS}
    s_sub_u32 s20, s2, {KA_NLN}                ; m
    v_and_b32 v1, 63, v0
    v_lshrrev_b32 v2, 6, v0
    v_lshrrev_b32 v3, 3, v1                    ; r
    v_and_b32 v4, 7, v1                        ; cc
    v_mul_u32_u24 v5, 144, v2
    v_add_u32 v5, v5, v3                       ; 144w + r
    v_mul_u32_u24 v6, 6912, v5
    v_lshl_add_u32 v6, v4, 4, v6
    v_lshlrev_b32 v7, 1, v0
    s_lshl_b32 s21, s20, 7
    s_waitcnt lgkmcnt(0)
    """)
    srd(A, 12, 4, 1152)
    srd(A, 16, 6, 576*6912)
    for k in range(3):
        A(f"buffer_load_ushort v{8+k}, v7, s[12:15], 0 offen offset:{512*k}")
    W = 32
    for i in range(18):
        A(f"buffer_load_dwordx4 {vr(W+4*i,4)}, v6, s[16:19], s21 offen")
        if i < 17: A(f"s_add_u32 s21, s21, {8*6912}")
    srd(A, 24, 10, 0x8000, WS_MOD)
    A("s_waitcnt vmcnt(18)")
    A("v_lshlrev_b32 v7, 2, v0")
    log2e = "0x3fb8aa3b"
    for k in range(3):
        A(f"""
        v_lshlrev_b32 v{8+k}, 16, v{8+k}
        v_mul_f32 v11, {log2e}, v{8+k}
        v_exp_f32 v11, -v11
        v_add_f32 v11, 1.0, v11
        v_rcp_f32 v11, v11
        v_mul_f32 v11, v11, v{8+k}
        v_cvt_pk_bf16_f32 v11, v11, v11
        v_lshlrev_b32 v11, 16, v11
        ds_write_b32 v7, v11 offset:{1024*k}
        """)
    A("""
    v_lshlrev_b32 v5, 2, v5
    s_waitcnt lgkmcnt(0)
    s_barrier
    """)
    SV = 104
    for i in range(18):
        A(f"ds_read_b32 v{SV+i}, v5 offset:{32*i}")
    for k in range(8): A(f"v_mov_b32 v{16+k}, 0")
    A("s_mov_b32 s22, 0xffff0000")
    A("s_waitcnt lgkmcnt(0)")
    for i in range(18):
        A(f"s_waitcnt vmcnt({17-i})")
        for k in range(4):
            A(f"v_lshlrev_b32 v12, 16, v{W+4*i+k}")
            A(f"v_and_b32 v13, s22, v{W+4*i+k}")
            A(f"v_fmac_f32 v{16+2*k}, v12, v{SV+i}")
            A(f"v_fmac_f32 v{17+2*k}, v13, v{SV+i}")
    P.stamp()
    P.stamp()
    P.stamp()
    P.rt()
    P.flush(10, 52, 44, 8)
    if PROF: A("s_mov_b64 exec, -1")
    dbg_mark(A, 90, 0, 3, 80, 120)
    A(f"""
    v_lshrrev_b32 v12, 3, v0                   ; w*8 + r
    v_lshlrev_b32 v12, 8, v12
    v_lshl_add_u32 v12, v4, 5, v12
    ds_write_b128 v12, v[16:19] offset:3072
    ds_write_b128 v12, v[20:23] offset:3088
    s_waitcnt lgkmcnt(0)
    s_barrier
    v_cmp_gt_u32 vcc, 64, v0
    s_and_saveexec_b64 s[28:29], vcc
    s_cbranch_execz ka_done
    """)
    for i in range(32):
        A(f"ds_read_b32 v{W+i}, v7 offset:{3072+256*i}")
    A("s_waitcnt lgkmcnt(0)")
    st = 16
    while st >= 1:
        for i in range(st):
            A(f"v_add_f32 v{W+i}, v{W+i}, v{W+i+st}")
        st //= 2
    A(f"""
    v_cvt_pk_bf16_f32 v{W}, v{W}, v{W}
    v_lshlrev_b32 v{W}, 16, v{W}
    s_mul_i32 s23, s20, 57
    s_lshr_b32 s23, s23, 9                     ; chunk = m/9
    s_cmp_eq_u32 s23, 1
    s_cbranch_scc1 ka_mod_plus1
    s_cmp_eq_u32 s23, 4
    s_cbranch_scc0 ka_mod_store
    ka_mod_plus1:
    v_add_f32 v{W}, 1.0, v{W}
    v_cvt_pk_bf16_f32 v{W}, v{W}, v{W}
    v_lshlrev_b32 v{W}, 16, v{W}
    ka_mod_store:
    s_lshl_b32 s21, s20, 8
    buffer_store_dword v{W}, v7, s[24:27], s21 offen
    ; interleaved copy CS[(col%576)*2 + (chunk==3)] for chunks 3 (sb) and 4 (1+cb)
    s_sub_u32 s30, s23, 3
    s_cmp_gt_u32 s30, 1
    s_cbranch_scc1 ka_done
    s_mul_i32 s31, s23, 9
    s_sub_u32 s31, s20, s31                    ; m % 9
    s_lshl_b32 s31, s31, 9                     ; *64*8
    s_xor_b32 s30, s30, 1                      ; sb -> 1, c1b -> 0
    s_lshl_b32 s30, s30, 2
    s_add_u32 s31, s31, s30
    s_add_u32 s31, s31, {WS_CS}
    v_lshlrev_b32 v7, 3, v0
    buffer_store_dword v{W}, v7, s[24:27], s31 offen
    ka_done:
    s_endpgm
    """)
    A.label("ka_pack")
    A(f"""
    s_load_dwordx4 s[4:7], s[0:1], {KA_HRE}
    s_load_dwordx2 s[10:11], s[0:1], {KA_WS}
    v_and_b32 v1, 63, v0
    v_lshrrev_b32 v2, 6, v0
    s_nop 0
    v_readfirstlane_b32 s24, v2
    s_sub_u32 s20, s2, {KA_NLN + KA_NMOD}
    s_lshl_b32 s21, s20, 2
    s_add_u32 s21, s21, s24                    ; u
    s_mul_i32 s22, s21, 171
    s_lshr_b32 s22, s22, 9                     ; u/3
    s_mul_i32 s23, s22, 3
    s_sub_u32 s23, s21, s23                    ; u%3
    s_cmp_ge_u32 s22, 36
    s_cselect_b32 s25, 36, 0
    s_sub_u32 s25, s22, s25                    ; eps
    v_and_b32 v3, 15, v1
    v_lshrrev_b32 v4, 4, v1
    v_mul_u32_u24 v3, 1152, v3
    v_lshl_add_u32 v3, v4, 4, v3
    s_mul_i32 s25, s25, {16*1152}
    s_mul_i32 s26, s23, 384
    s_add_u32 s25, s25, s26
    s_mul_i32 s27, s21, 6144
    s_add_u32 s28, s27, 4096
    v_lshlrev_b32 v5, 4, v1
    s_waitcnt lgkmcnt(0)
    s_cmp_ge_u32 s22, 36
    s_cselect_b32 s12, s6, s4
    s_cselect_b32 s13, s7, s5
    s_and_b32 s13, s13, 0xffff
    s_mov_b32 s14, {D*D*2}
    s_mov_b32 s15, 0x20000
    """)
    for k in range(6):
        A(f"buffer_load_dwordx4 {vr(8+4*k,4)}, v3, s[12:15], s25 offen offset:{64*k}")
    srd(A, 16, 10, SZ_WDP, WS_WDP)
    srd(A, 32, 10, SZ_FL, WS_FL1)
    A(f"""
    v_mov_b32 v32, 0
    v_mov_b32 v33, 0
    v_mov_b32 v34, 0
    v_mov_b32 v35, 0
    s_lshl_b32 s29, s21, 10
    buffer_store_dwordx4 v[32:35], v5, s[32:35], s29 offen
    """)
    for k in range(6):
        A(f"s_waitcnt vmcnt({6 - k + k})" if False else f"s_waitcnt vmcnt({6})" if k == 0 else "s_nop 0")
        break
    A("s_waitcnt vmcnt(1)")
    for k in range(6):
        so = "s27" if k < 4 else "s28"
        A(f"buffer_store_dwordx4 {vr(8+4*k,4)}, v5, s[16:19], {so} offen offset:{1024*(k%4)}")
    A("s_endpgm")
    A.label("ka_wpack")
    A(f"""
    s_load_dwordx4 s[4:7], s[0:1], {KA_W1}
    s_load_dwordx2 s[10:11], s[0:1], {KA_WS}
    v_and_b32 v1, 63, v0
    v_lshrrev_b32 v2, 6, v0
    s_nop 0
    v_readfirstlane_b32 s24, v2
    s_sub_u32 s20, s2, {KA_W0}
    s_and_b32 s21, s20, 7                      ; x
    s_lshr_b32 s22, s20, 3                     ; v
    s_lshr_b32 s25, s21, 1                     ; q
    s_and_b32 s26, s21, 1                      ; jh
    v_lshlrev_b32 v20, 4, v1
    v_lshrrev_b32 v21, 2, v1
    v_and_b32 v22, 3, v1
    s_mul_i32 s27, s24, 9216
    s_cmp_ge_u32 s22, 18
    s_cbranch_scc1 ka_wp2
    """)
    def dma_offs(cpr, mul, pitch):
        for n in range(9):
            A(f"""
            v_add_u32 v3, {64*n}, v1
            v_mul_u32_u24 v4, {mul}, v3
            v_lshrrev_b32 v4, 16, v4
            v_mul_u32_u24 v5, {cpr}, v4
            v_sub_u32 v3, v3, v5
            v_lshlrev_b32 v3, 4, v3
            v_mul_u32_u24 v5, {pitch}, v4
            v_add_u32 v{8+n}, v3, v5
            """)
    dma_offs(72, 911, 9216)
    A(f"""
    s_lshl_b32 s28, s22, 5
    s_lshl_b32 s29, s24, 3
    s_add_u32 s28, s28, s29
    s_mul_i32 s28, s28, 9216
    s_mul_i32 s29, s21, 1152
    s_add_u32 s28, s28, s29
    v_mul_u32_u24 v23, 1152, v21
    v_lshl_add_u32 v23, v22, 3, v23
    s_mul_i32 s29, s24, 288
    v_add_u32 v23, s29, v23
    v_add_u32 v24, {16*1152}, v23
    s_lshl_b32 s30, s21, 1
    s_lshr_b32 s31, s24, 1
    s_add_u32 s30, s30, s31                    ; fb
    s_and_b32 s31, s30, 3
    s_mul_i32 s31, s31, 9
    s_lshr_b32 s31, s31, 1
    s_sub_u32 s22, s22, s31
    s_cselect_b32 s31, 18, 0
    s_add_u32 s22, s22, s31
    s_mul_i32 s30, s30, {36*9216}
    s_and_b32 s38, s24, 1
    s_mul_i32 s38, s38, 9                      ; t0
    s_mov_b32 s39, {PST[1]}                    ; thr1
    s_mov_b32 s42, {PST[2]}                    ; thr2
    s_mul_i32 s40, s22, {PARTS[0]}             ; c0
    s_mul_i32 s41, s22, {PARTS[1]}
    s_add_u32 s41, s41, {18*PST[1] - PST[1]}   ; c1
    s_mul_i32 s43, s22, {PARTS[2]}
    s_add_u32 s43, s43, {18*PST[2] - PST[2]}   ; c2
    s_waitcnt lgkmcnt(0)
    s_mov_b32 s12, s4
    s_mov_b32 s13, s5
    s_branch ka_wp3
    ka_wp2:
    """)
    dma_offs(36, 1821, 1152)
    A(f"""
    s_sub_u32 s22, s22, 18
    s_mul_i32 s28, s25, 1152
    s_lshl_b32 s29, s22, 6
    s_add_u32 s28, s28, s29
    s_lshl_b32 s29, s24, 4
    s_add_u32 s28, s28, s29
    s_mul_i32 s28, s28, 1152
    s_mul_i32 s29, s26, 576
    s_add_u32 s28, s28, s29
    v_mul_u32_u24 v23, 576, v21
    v_lshl_add_u32 v23, v22, 3, v23
    s_lshr_b32 s31, s24, 1
    s_mul_i32 s29, s31, {32*576}
    s_and_b32 s32, s24, 1
    s_mul_i32 s33, s32, 288
    s_add_u32 s29, s29, s33
    v_add_u32 v23, s29, v23
    v_add_u32 v24, {16*576}, v23
    s_lshl_b32 s30, s21, 1
    s_add_u32 s30, s30, s32                    ; q*4 + j
    s_mul_i32 s30, s30, {36*9216}
    s_add_u32 s30, s30, {SZ_WP}
    s_lshl_b32 s33, s22, 1
    s_add_u32 s33, s33, s31                    ; kstep
    s_mul_i32 s33, s33, 9
    s_lshl_b32 s39, s25, 1
    s_add_u32 s39, s39, 2
    s_cmp_eq_u32 s25, 3
    s_cselect_b32 s39, 0, s39
    s_mov_b32 s38, 0
    s_sub_u32 s41, s33, s39                    ; cB
    s_add_u32 s40, s41, 9                      ; cA
    s_mov_b32 s42, 100
    s_mov_b32 s43, 0
    s_waitcnt lgkmcnt(0)
    s_mov_b32 s12, s6
    s_mov_b32 s13, s7
    ka_wp3:
    s_and_b32 s13, s13, 0xffff
    s_mov_b32 s14, {D*F*2}
    s_mov_b32 s15, 0x20000
    """)
    for n in range(9):
        A(f"s_add_u32 m0, s27, {1024*n}")
        A(f"buffer_load_dwordx4 v{8+n}, s[12:15], s28 offen lds")
    srd(A, 16, 10, 2*SZ_WP, WS_W1P)
    A("s_waitcnt vmcnt(0)")
    A("s_barrier")
    for T in range(9):
        A(f"ds_read_b64_tr_b16 {vr(32+4*T,2)}, v23 offset:{32*T}")
        A(f"ds_read_b64_tr_b16 {vr(34+4*T,2)}, v24 offset:{32*T}")
    for T in range(9):
        A(f"s_add_u32 s36, s38, {T}")
        A(f"s_cmp_lt_u32 s36, s39")
        A(f"s_cselect_b32 s37, s40, s41")
        A(f"s_cmp_lt_u32 s36, s42")
        A(f"s_cselect_b32 s37, s37, s43")
        A(f"s_add_u32 s36, s36, s37")
        A(f"s_lshl_b32 s36, s36, 10")
        A(f"s_add_u32 s36, s36, s30")
        A(f"s_waitcnt lgkmcnt({min(15, 16-2*T)})")
        A(f"buffer_store_dwordx4 {vr(32+4*T,4)}, v20, s[16:19], s36 offen")
    dbg_mark(A, 90, 0, 2, 80, 120)
    A("s_endpgm")
    return dict(name=name, vgpr=128, sgpr=100, accum=128, grid=KA_GRID, block=256, lds=KA_LDS)
```

```python
from common import *
import struct
f2h = lambda f: hex(struct.unpack("<I", struct.pack("<f", f))[0])

KB_GRID = 256
KB_MODL = 73728
KB_LDS = KB_MODL + 14336

def gen_kb(A, name="kb_kernel"):
    A.raw(kernel_header(name))
    P = Prof(A, 84, 1)
    A(f"""
    s_cmp_ge_u32 s2, {KB_GRID}
    s_cbranch_scc1 kb_done
    """)
    dbg_start(A, 96)
    P.rt()
    P.stamp()
    A(f"""
    s_load_dwordx8 s[4:11], s[0:1], {KA_X}
    s_load_dwordx2 s[12:13], s[0:1], {KA_HIM}
    s_load_dwordx2 s[14:15], s[0:1], {KA_WS}
    s_load_dwordx4 s[16:19], s[0:1], {KA_W1}
    s_and_b32 s20, s2, 7                          ; xcd
    s_lshr_b32 s21, s2, 3                         ; idx
    s_mul_i32 s22, s21, 43
    s_lshr_b32 s22, s22, 8                        ; idx/6
    s_mul_i32 s23, s22, 6
    s_sub_u32 s23, s21, s23                       ; et
    s_lshl_b32 s22, s22, 3
    s_add_u32 s22, s22, s20                       ; class
    v_and_b32 v1, 63, v0
    v_lshrrev_b32 v2, 6, v0
    s_nop 0
    v_readfirstlane_b32 s24, v2                   ; wave
    s_cmp_gt_u32 s22, 32
    s_cbranch_scc1 kb_side
    s_lshr_b32 s25, s24, 1                        ; p
    s_and_b32 s26, s24, 1                         ; dh
    s_and_b32 s27, s22, 31
    s_cmp_lg_u32 s27, 0
    s_cselect_b32 s27, -1, 0
    s_and_b32 s28, s27, 32
    s_add_u32 s28, s28, s22
    s_cmp_lg_u32 s25, 0
    s_cselect_b32 s29, s28, s22
    s_mul_i32 s29, s29, 36864
    s_mul_i32 s30, s26, 18432
    s_add_u32 s29, s29, s30                       ; Z soffset (a=0)
    s_add_u32 s30, s29, 9216                      ; a=1
    s_mul_i32 s31, s24, 18432
    """)
    for b in range(9):
        A(f"""
        v_add_u32 v3, {64*b}, v1
        v_mul_u32_u24 v4, 911, v3
        v_lshrrev_b32 v4, 16, v4                  ; row
        v_mul_u32_u24 v5, 72, v4
        v_sub_u32 v3, v3, v5                      ; slot
        v_and_b32 v5, 6, v4                       ; 2*((row>>1)&3)
        v_xor_b32 v3, v3, v5
        v_mul_u32_u24 v4, 1152, v4
        v_lshl_add_u32 v{8+b}, v3, 4, v4
        """)
    A("s_waitcnt lgkmcnt(0)")
    srd(A, 32, 14, SZ_ACT, WS_Z)
    srd(A, 36, 14, 13824, WS_MOD)
    A("s_mov_b32 m0, s31")
    for n in range(18):
        a, b = divmod(n, 9)
        A(f"buffer_load_dwordx4 v{8+b}, s[32:35], s{29+a} offen lds")
        if n < 17:
            A("s_add_u32 m0, m0, 1024")
    A(f"""
    v_lshlrev_b32 v3, 4, v1
    s_lshl_b32 s40, s24, 10
    s_add_u32 s41, s40, {KB_MODL}
    s_mov_b32 m0, s41
    """)
    for k in range(4):
        if k == 3:
            A("s_cmp_gt_u32 s24, 1")
            A("s_cbranch_scc1 kb_modskip")
        A(f"buffer_load_dwordx4 v3, s[36:39], s40 offen lds")
        if k < 3:
            A("s_add_u32 m0, m0, 4096")
            A("s_add_u32 s40, s40, 4096")
    A("s_branch kb_moddone")
    A.label("kb_modskip")
    A("s_sub_u32 m0, m0, 4096")
    A("s_sub_u32 s40, s40, 4096")
    A(f"buffer_load_dwordx4 v3, s[36:39], s40 offen lds")
    A.label("kb_moddone")
    A(f"""
    s_cmp_lg_u32 s25, 0
    s_cselect_b32 s44, s8, s6
    s_cselect_b32 s45, s9, s7
    s_cselect_b32 s48, s6, s8
    s_cselect_b32 s49, s7, s9
    s_cselect_b32 s42, 0x80008000, 0              ; m1
    s_and_b32 s45, s45, 0xffff
    s_and_b32 s49, s49, 0xffff
    s_mov_b32 s46, {S*S*2}
    s_mov_b32 s47, 0x20000
    s_mov_b32 s50, {S*S*2}
    s_mov_b32 s51, 0x20000
    v_and_b32 v4, 15, v1                          ; tok / i
    v_lshrrev_b32 v5, 4, v1                       ; g
    v_lshlrev_b32 v6, 6, v4
    v_add_u32 v6, s22, v6                         ; t (tt=0)
    v_lshlrev_b32 v7, 12, v6
    v_lshl_add_u32 v7, v5, 3, v7                  ; t*4096 + 8g
    s_mov_b32 s43, {16*64*4096}
    """)
    B1, B2 = 20, 28
    for tt in range(2):
        so = "s43" if tt else "0"
        for h in range(2):
            A(f"buffer_load_dwordx2 {vr(B1+4*tt+2*h,2)}, v7, s[44:47], {so} offen offset:{32*h}")
            A(f"buffer_load_dwordx2 {vr(B2+4*tt+2*h,2)}, v7, s[48:51], {so} offen offset:{32*h}")
    srd(A, 52, 14, SZ_WDP, WS_WDP)
    A(f"""
    v_lshlrev_b32 v15, 4, v1
    v_add_u32 v16, 4096, v15
    v_add_u32 v17, 8192, v15
    s_mul_i32 s62, s25, 36
    s_mul_i32 s63, s23, 6
    s_add_u32 s62, s62, s63
    s_mul_i32 s62, s62, 18
    s_mul_i32 s63, s26, 9
    s_add_u32 s62, s62, s63
    s_lshl_b32 s62, s62, 10
    """)
    for E in range(6):
        A(f"s_add_u32 s{56+E}, s62, {18*1024*E}")
    VM = Cnt(63)
    for _ in range(30): VM.issue("z")
    def wd(a):
        for E in range(6):
            A(f"buffer_load_dwordx4 {vr(4*(6*a+E),4,'a')}, v{15+a//4}, s[{52}:{55}], s{56+E} offen offset:{1024*(a%4)}")
            VM.issue(("wd", a))
    def waitvm(pred):
        n = VM.need(pred)
        if n is not None: A(f"s_waitcnt vmcnt({n})")
    WPRE = 3
    for a in range(WPRE): wd(a)
    A(f"""
    v_bfe_u32 v12, v1, 2, 2                       ; r'
    v_lshl_add_u32 v12, v5, 2, v12                ; row = 4g + r'
    v_and_b32 v13, 6, v12
    v_lshlrev_b32 v13, 4, v13                     ; F = 32*((row>>1)&3)
    v_mul_u32_u24 v12, 1152, v12
    v_and_b32 v14, 3, v1
    v_lshl_add_u32 v12, v14, 3, v12               ; + 8c'
    s_lshl_b32 s64, s26, 9                        ; 512 dh
    v_add_u32 v12, s64, v12
    s_lshl_b32 s65, s26, 1                        ; 2 dh
    """)
    for k in range(4):
        A(f"""
        s_add_u32 s66, s65, {k}
        s_lshr_b32 s67, s66, 2
        s_lshl_b32 s67, s67, 7
        s_and_b32 s66, s66, 3
        s_lshl_b32 s66, s66, 5
        v_xor_b32 v14, s66, v13
        v_add3_u32 v{8+k}, v12, v14, s67
        """)
    A(f"""
    s_mul_i32 s66, s26, 1152
    s_add_u32 s66, s66, {KB_MODL}
    v_lshlrev_b32 v18, 5, v5
    v_add_u32 v18, s66, v18
    s_or_b32 s67, s22, s25
    s_cmp_eq_u32 s67, 0
    s_cselect_b32 s67, {f2h(2048.0)}, 0
    v_mov_b32 v36, s67
    v_cmp_eq_u32 vcc, 0, v4
    v_cndmask_b32 v36, 0, v36, vcc
    """)
    P.stamp()
    waitvm(lambda t: t == "z")
    A("s_mov_b32 s66, 0x80008000")
    for k in range(8):
        A(f"v_xor_b32 v{B1+k}, s42, v{B1+k}")
        A(f"v_xor_b32 v{B2+k}, s66, v{B2+k}")
        A(f"v_and_b32 v{B2+k}, s27, v{B2+k}")
    A("s_barrier")
    P.stamp()
    if PROF: A("s_waitcnt lgkmcnt(0)")
    YACC = 40
    AF = 88
    A2 = 120
    HF = 152
    SC = 168
    XR = 200
    def reads(a):
        s = a & 1
        for Ti in range(2):
            T = 2*a + Ti
            for ks in range(2):
                for h in range(2):
                    off = 128*(T >> 2) + 18432*h + 36864*ks
                    A(f"ds_read_b64_tr_b16 {vr(AF+16*s+4*(2*Ti+ks)+2*h,2)}, v{8+(T&3)} offset:{off}")
        for k in range(2):
            A(f"ds_read_b128 {vr(SC+16*s+4*k,4)}, v18 offset:{2304+128*a+16*k}")
            A(f"ds_read_b128 {vr(SC+16*s+8+4*k,4)}, v18 offset:{128*a+16*k}")
    def s2mfma(a):
        s = a & 1
        for ks in range(2):
            for Ti in range(2):
                for tt in range(2):
                    d = vr(A2+16*s+4*(2*Ti+tt),4)
                    c = "0" if ks == 0 else d
                    B = (B1 if ks == 0 else B2) + 4*tt
                    A(f"v_mfma_f32_16x16x32_bf16 {d}, {vr(AF+16*s+4*(2*Ti+ks),4)}, {vr(B,4)}, {c}")
    def scale(a):
        s = a & 1
        sc = SC + 16*s
        for k in range(4):
            A(f"v_pk_mul_f32 {vr(sc+8+2*k,2)}, {vr(sc+8+2*k,2)}, v[36:37] op_sel_hi:[1,0]")
        for tt in range(2):
            for Ti in range(2):
                for k in range(2):
                    r = A2+16*s+4*(2*Ti+tt)+2*k
                    c = sc + 4*Ti + 2*k
                    if tt == 0:
                        A(f"v_pk_fma_f32 {vr(r,2)}, {vr(r,2)}, {vr(c,2)}, {vr(c+8,2)}")
                    else:
                        A(f"v_pk_mul_f32 {vr(r,2)}, {vr(r,2)}, {vr(c,2)}")
                    A(f"v_cvt_pk_bf16_f32 v{HF+8*s+4*tt+2*Ti+k}, v{r}, v{r+1}")
    def dft(a):
        s = a & 1
        for E in range(6):
            for tt in range(2):
                d = vr(YACC+4*(2*E+tt),4)
                c = "0" if a == 0 else d
                A(f"v_mfma_f32_16x16x32_bf16 {d}, {vr(4*(6*a+E),4,'a')}, {vr(HF+8*s+4*tt,4)}, {c}")
    A(f"""
    s_lshr_b32 s68, s24, 1                        ; dir
    s_and_b32 s69, s24, 1                         ; tt
    s_lshl_b32 s70, s69, 10                       ; 64*16*tt
    v_add_u32 v38, s70, v6                        ; t
    v_sub_u32 v39, 2048, v38
    s_cmp_lg_u32 s68, 0
    s_cselect_b64 vcc, -1, 0
    v_cndmask_b32 v38, v38, v39, vcc
    v_mul_u32_u24 v38, 1152, v38
    v_lshl_add_u32 v38, v5, 3, v38
    s_mul_i32 s71, s23, 192
    """)
    srd(A, 72, 4, SZ_ACT)
    def xloads():
        for k in range(6):
            A(f"buffer_load_dwordx2 {vr(XR+2*k,2)}, v38, s[72:75], s71 offen offset:{32*k}")
            VM.issue("x")
    wd(WPRE)
    reads(0)
    reads(1)
    A("s_waitcnt lgkmcnt(12)")
    s2mfma(0)
    scale(0)
    for a in range(9):
        if a + 1 < 9:
            A("s_waitcnt lgkmcnt(0)")
            s2mfma(a+1)
        if a + 2 < 9:
            reads(a+2)
        if a + WPRE + 1 < 9: wd(a + WPRE + 1)
        if a + WPRE + 1 == 9: xloads()
        waitvm(lambda t: t == ("wd", a))
        dft(a)
        if a + 1 < 9:
            scale(a+1)
    dbg_mark(A, 96, 1, 7, 84, 8)
    P.stamp()
    A("s_barrier")
    A(f"""
    s_mul_i32 s76, s24, 12288
    v_lshlrev_b32 v8, 4, v1
    v_add_u32 v9, s76, v8
    """)
    for i in range(12):
        A(f"ds_write_b128 v9, {vr(YACC+4*i,4)} offset:{1024*i}")
    A(f"""
    s_waitcnt lgkmcnt(0)
    s_barrier
    s_and_b32 s76, s68, s27
    s_cmp_lg_u32 s76, s68
    s_cbranch_scc1 kb_done
    s_lshl_b32 s76, s69, 10
    v_add_u32 v9, s76, v8
    """)
    PR = 40
    for w in range(4):
        for E in range(6):
            A(f"ds_read_b128 {vr(PR+24*w+4*E,4)}, v9 offset:{12288*w+2048*E}")
    GA, CB = 136, 160
    A(f"""
    s_mul_i32 s76, s23, 384
    s_add_u32 s76, s76, {KB_MODL}
    v_lshlrev_b32 v10, 4, v5
    v_add_u32 v10, s76, v10
    """)
    for k in range(6):
        A(f"ds_read_b128 {vr(GA+4*k,4)}, v10 offset:{1152*4+64*k}")
        A(f"ds_read_b128 {vr(CB+4*k,4)}, v10 offset:{2304*4+64*k}")
    A(f"""
    s_cmp_lg_u32 s68, 0
    s_cselect_b32 s76, -1.0, 1.0
    v_mov_b32 v12, s76
    s_sub_u32 s77, 64, s22
    s_cselect_b32 s77, s77, s22
    """)
    A.items.pop(); A.items.pop()
    A(f"""
    s_sub_u32 s77, 64, s22
    s_cmp_lg_u32 s68, 0
    s_cselect_b32 s77, s77, s22                   ; beta
    s_lshl_b32 s78, s69, 4
    v_add_u32 v13, s78, v4                        ; tau%32
    s_lshl_b32 s79, s77, 5
    v_add_u32 v14, s79, v13                       ; tau
    v_lshlrev_b32 v15, 3, v1
    v_lshlrev_b32 v16, 4, v1
    s_lshl_b32 s79, s77, 1
    s_add_u32 s79, s79, s69                       ; tau16
    s_mul_i32 s80, s23, 3
    s_mul_i32 s79, s79, 18
    s_add_u32 s79, s79, s80
    s_lshl_b32 s79, s79, 10
    v_lshlrev_b32 v17, 6, v14
    s_lshl_b32 s80, s23, 3
    s_mov_b32 s81, 0xffff0000
    """)
    srd(A, 32, 14, SZ_ACT, WS_X1)
    srd(A, 36, 14, SZ_ACT, WS_X1S)
    srd(A, 44, 14, SZ_STAT, WS_STAT)
    A("s_waitcnt vmcnt(0) lgkmcnt(0)")
    P.stamp()
    A("v_mov_b32 v18, 0")
    A("v_mov_b32 v19, 0")
    A("s_mov_b32 s82, 0x3f803f80")
    for k in range(12):
        r = PR + 2*k
        A(f"v_pk_add_f32 {vr(r,2)}, {vr(r,2)}, {vr(r+24,2)}")
        A(f"v_pk_add_f32 {vr(r+48,2)}, {vr(r+48,2)}, {vr(r+72,2)}")
        A(f"v_pk_fma_f32 {vr(r,2)}, {vr(r+48,2)}, v[12:13], {vr(r,2)} op_sel_hi:[1,0,1]")
        A(f"v_lshlrev_b32 v20, 16, v{XR+k}")
        A(f"v_and_b32 v21, s81, v{XR+k}")
        A(f"v_pk_fma_f32 {vr(r,2)}, {vr(r,2)}, {vr(GA+2*k,2)}, v[20:21]")
        A(f"v_cvt_pk_bf16_f32 v{XR+k}, v{r}, v{r+1}")
        A(f"v_lshlrev_b32 v20, 16, v{XR+k}")
        A(f"v_and_b32 v21, s81, v{XR+k}")
        A(f"v_dot2_f32_bf16 v18, v{XR+k}, s82, v18")
        A(f"v_dot2_f32_bf16 v19, v{XR+k}, v{XR+k}, v19")
        A(f"v_pk_mul_f32 v[20:21], v[20:21], {vr(CB+2*k,2)}")
        A(f"v_cvt_pk_bf16_f32 v{212+k}, v20, v21")
    for k in range(6):
        A(f"buffer_store_dwordx2 {vr(XR+2*k,2)}, v15, s[32:35], s79 offen offset:{512*k}")
    for k in range(3):
        A(f"buffer_store_dwordx4 {vr(212+4*k,4)}, v16, s[36:39], s79 offen offset:{1024*k}")
    for sw in ("v_permlane16_swap_b32", "v_permlane32_swap_b32"):
        A(f"""
        v_mov_b32 v20, v18
        v_mov_b32 v21, v19
        {sw} v18, v20
        {sw} v19, v21
        v_add_f32 v18, v18, v20
        v_add_f32 v19, v19, v21
        """)
    A(f"""
    v_cmp_gt_u32 vcc, 16, v1
    s_and_saveexec_b64 s[48:49], vcc
    buffer_store_dwordx2 v[18:19], v17, s[44:47], s80 offen
    """)
    if PROF:
        A("s_waitcnt vmcnt(0)")
        P.stamp()
        P.rt()
    P.flush(14, 24, 52, 8)
    dbg_mark(A, 96, 1, 5, 84, 8, True)
    A("s_endpgm")
    P.n = 2

    A.label("kb_side")
    A(f"""
    s_sub_u32 s25, s21, 24
    s_mul_i32 s26, s25, 7
    s_add_u32 s26, s26, s20
    s_sub_u32 s26, s26, 1
    s_sub_u32 s27, s21, 30
    s_lshl_b32 s27, s27, 3
    s_add_u32 s27, s27, s20
    s_add_u32 s27, s27, 42
    s_cmp_ge_u32 s21, 30
    s_cselect_b32 s26, s27, s26                   ; sid
    s_cmp_ge_u32 s26, 54
    s_cbranch_scc1 kb_done
    s_mul_i32 s27, s26, 57
    s_lshr_b32 s27, s27, 10
    s_mul_i32 s28, s27, 18
    s_sub_u32 s28, s26, s28                       ; cc
    s_mul_i32 s29, s27, 192
    s_mul_i32 s30, s24, 48
    s_add_u32 s29, s29, s30
    s_mul_i32 s30, s29, 9216
    s_lshl_b32 s31, s28, 9
    s_add_u32 s30, s30, s31                       ; soffset
    v_lshlrev_b32 v3, 3, v1
    s_waitcnt lgkmcnt(0)
    """)
    srd(A, 32, 16, D*F*2)
    W = 32
    for i in range(48):
        A(f"buffer_load_dwordx2 {vr(W+2*i,2)}, v3, s[32:35], s30 offen")
        if i < 47: A(f"s_add_u32 s30, s30, 9216")
    srd(A, 80, 18, D*F*2)
    A(f"""
    s_lshl_b32 s31, s26, 2
    s_add_u32 s31, s31, s24
    s_mul_i32 s31, s31, 24576
    v_lshlrev_b32 v5, 4, v1
    """)
    NPF = 24
    for i in range(NPF):
        A(f"buffer_load_dwordx4 {vr(128+4*i,4)}, v5, s[80:83], s31 offen offset:{1024*(i%4)}")
        if i % 4 == 3: A("s_add_u32 s31, s31, 4096")
    A(f"""
    s_lshl_b32 s29, s29, 3
    s_add_u32 s36, s14, s29
    s_addc_u32 s37, s15, 0
    s_add_u32 s36, s36, {WS_CS}
    s_addc_u32 s37, s37, 0
    s_mov_b32 s38, 0xffff0000
    """)
    for k in range(8): A(f"v_mov_b32 v{8+k}, 0")
    for bt in range(3):
        A(f"s_load_dwordx16 s[48:63], s[36:37], {128*bt}")
        A(f"s_load_dwordx16 s[64:79], s[36:37], {128*bt+64}")
        A("s_waitcnt lgkmcnt(0)")
        for ii in range(16):
            i = 16*bt + ii
            A(f"s_waitcnt vmcnt({min(63, 47-i+NPF)})")
            sp = 48 + 2*ii
            for k in range(2):
                A(f"v_lshlrev_b32 v16, 16, v{W+2*i+k}")
                A(f"v_and_b32 v17, s38, v{W+2*i+k}")
                A(f"v_pk_fma_f32 {vr(8+4*k,2)}, v[16:17], s[{sp}:{sp+1}], {vr(8+4*k,2)} op_sel_hi:[0,1,1]")
                A(f"v_pk_fma_f32 {vr(10+4*k,2)}, v[16:17], s[{sp}:{sp+1}], {vr(10+4*k,2)} op_sel:[1,0,0] op_sel_hi:[1,1,1]")
    A(f"""
    v_lshlrev_b32 v4, 5, v0
    ds_write_b128 v4, v[8:11]
    ds_write_b128 v4, v[12:15] offset:16
    s_waitcnt lgkmcnt(0)
    s_barrier
    v_lshlrev_b32 v4, 3, v0
    ds_read_b64 v[8:9], v4
    ds_read_b64 v[10:11], v4 offset:2048
    ds_read_b64 v[12:13], v4 offset:4096
    ds_read_b64 v[14:15], v4 offset:6144
    """)
    srd(A, 40, 14, SZ_G, WS_G)
    A(f"""
    s_mul_i32 s44, s27, {2*F*4}
    s_lshl_b32 s45, s28, 10
    s_add_u32 s44, s44, s45
    s_add_u32 s45, s44, {F*4}
    v_lshlrev_b32 v4, 2, v0
    s_waitcnt lgkmcnt(0)
    v_pk_add_f32 v[8:9], v[8:9], v[10:11]
    v_pk_add_f32 v[12:13], v[12:13], v[14:15]
    v_pk_add_f32 v[8:9], v[8:9], v[12:13]
    buffer_store_dword v8, v4, s[40:43], s44 offen
    buffer_store_dword v9, v4, s[40:43], s45 offen
    """)
    if PROF:
        A("s_waitcnt vmcnt(0)")
        for _ in range(5): P.stamp()
        P.rt()
    P.flush(14, 24, 52, 8)
    dbg_mark(A, 96, 1, 6, 84, 8)
    A("kb_done:\ns_endpgm")
    return dict(name=name, vgpr=224+216, sgpr=102, accum=224, grid=KB_GRID, block=256, lds=KB_LDS)
```

```python
from asmlib import *
S, D, F = 2048, 576, 4608
KA_X, KA_SRE, KA_SIM, KA_HRE, KA_HIM, KA_BX, KA_W1, KA_W2, KA_C, KA_WMOD, KA_OUT, KA_DBG, KA_WS = [8 * i for i in range(13)]
WS_MOD = 0
WS_CS = 0x4000
WS_Z = 0x10000
SZ_ACT = S * D * 2
WS_X1 = WS_Z + SZ_ACT
WS_X1S = WS_X1 + SZ_ACT
WS_STAT = WS_X1S + SZ_ACT
SZ_STAT = 2048 * 64
WS_G = WS_STAT + SZ_STAT
SZ_G = 3 * 2 * F * 4
WS_H1 = WS_G + 0x20000
SZ_H1 = S * F * 2
WS_PART = WS_H1 + SZ_H1
SZ_PART = 4 * S * D * 4

def srd(A, d, base, size, off=0):
    if off:
        A(f"s_add_u32 s{d}, s{base}, {off}")
        A(f"s_addc_u32 s{d+1}, s{base+1}, 0")
        A(f"s_and_b32 s{d+1}, s{d+1}, 0xffff")
    else:
        A(f"s_mov_b32 s{d}, s{base}")
        A(f"s_and_b32 s{d+1}, s{base+1}, 0xffff")
    A(f"s_mov_b32 s{d+2}, {size}")
    A(f"s_mov_b32 s{d+3}, 0x20000")

def vr(a, n=1, t="v"):
    return f"{t}{a}" if n == 1 else f"{t}[{a}:{a+n-1}]"

import os
PROF = os.environ.get("PROF", "0") == "1"
WS_PROF = 200 << 20
class Prof:
    def __init__(self, A, base, slot):
        self.A, self.base, self.n, self.slot = A, base, 0, slot
    def stamp(self):
        if not PROF: return
        self.A(f"s_memtime s[{self.base+2*self.n}:{self.base+2*self.n+1}]")
        self.n += 1
    def rt(self):
        if not PROF: return
        self.A(f"s_memrealtime s[{self.base+2*self.n}:{self.base+2*self.n+1}]")
        self.n += 1
    def flush(self, ws_sgpr, wave_sgpr, srd_base, vtmp):
        if not PROF: return
        A = self.A
        A("s_waitcnt lgkmcnt(0)")
        srd(A, srd_base, ws_sgpr, 1 << 24, WS_PROF + self.slot * (1 << 20))
        A(f"s_lshl_b32 s{srd_base+4}, s2, 3")
        A(f"s_add_u32 s{srd_base+4}, s{srd_base+4}, s{wave_sgpr}")
        A(f"s_lshl_b32 s{srd_base+4}, s{srd_base+4}, 7")
        A(f"s_mov_b64 exec, 1")
        A(f"v_mov_b32 v{vtmp+1}, 0")
        for i in range(self.n):
            A(f"v_mov_b32 v{vtmp}, s{self.base+2*i}")
            A(f"buffer_store_dword v{vtmp}, v{vtmp+1}, s[{srd_base}:{srd_base+3}], s{srd_base+4} offen offset:{4*i}")

WS_WDP = WS_PART + SZ_PART + (4 << 20)
SZ_WDP = 2 * 36 * 18 * 1024
WS_FL1 = WS_WDP + SZ_WDP
WS_FL2 = WS_FL1 + 256 * 128
SZ_FL = 2 * 256 * 128
SZ_PART2 = 64 * 4 * 4 * 4 * 5 * 1024
assert SZ_PART2 <= SZ_PART + (4 << 20)
import struct
f2h = lambda f: hex(struct.unpack("<I", struct.pack("<f", f))[0])

class Cnt:
    def __init__(self, maxn):
        self.order = []; self.done = 0; self.maxn = maxn
    def issue(self, tag): self.order.append(tag)
    def need(self, pred):
        idx = [i for i, t in enumerate(self.order) if pred(t)]
        if not idx: return None
        last = idx[-1]
        if last < self.done: return None
        n = len(self.order) - 1 - last
        if n > self.maxn: n = self.maxn; last = len(self.order) - 1 - n
        self.done = max(self.done, last + 1)
        return n
    def complete(self, pred):
        return all(i < self.done for i, t in enumerate(self.order) if pred(t))
WS_W1P = WS_FL1 + SZ_FL
SZ_WP = D * F * 2
WS_W2P = WS_W1P + SZ_WP
SZ_PART3 = 64 * 4 * 9 * 2 * 4 * 1024
assert SZ_PART3 <= SZ_PART + (4 << 20)
ROT = [2, 4, 6, 0]

PARTS = [int(x) for x in os.environ.get('PARTS', '8,6,4').split(',')]
PST = [sum(PARTS[:i]) for i in range(len(PARTS) + 1)]

DBGT = os.environ.get("DBGT", "0") == "1"
def dbg_start(A, sreg):
    if not DBGT: return
    A(f"s_memrealtime s[{sreg}:{sreg+1}]")
    A(f"s_load_dwordx2 s[{sreg+2}:{sreg+3}], s[0:1], {KA_DBG}")
def dbg_mark(A, sreg, launch, idx, tmp_srd, vt, start=False, extra=None):
    if not DBGT: return
    A("s_waitcnt vmcnt(0) lgkmcnt(0)")
    A(f"s_memrealtime s[{tmp_srd+4}:{tmp_srd+5}]")
    A(f"s_add_u32 s{tmp_srd}, s{sreg+2}, {512*(int(os.environ.get('DBGL', '2'))-launch)}")
    A(f"s_addc_u32 s{tmp_srd+1}, s{sreg+3}, 0")
    A(f"s_and_b32 s{tmp_srd+1}, s{tmp_srd+1}, 0xffff")
    A(f"s_mov_b32 s{tmp_srd+2}, 256")
    A(f"s_mov_b32 s{tmp_srd+3}, 0x20000")
    A("s_waitcnt lgkmcnt(0)")
    A(f"s_mov_b64 s[{tmp_srd+6}:{tmp_srd+7}], exec")
    A(f"s_and_b32 s{tmp_srd+5}, s2, 31")
    A(f"v_or_b32 v{vt}, s{tmp_srd+5}, v0")
    A(f"v_cmp_eq_u32 vcc, 0, v{vt}")
    A("s_and_b64 exec, exec, vcc")
    A(f"v_mov_b32 v{vt}, s{tmp_srd+4}")
    A(f"v_mov_b32 v{vt+1}, 0")
    A(f"buffer_atomic_umax v{vt}, v{vt+1}, s[{tmp_srd}:{tmp_srd+3}], 0 offen offset:{4*idx}")
    if start:
        A(f"s_not_b32 s{tmp_srd+4}, s{sreg}")
        A(f"v_mov_b32 v{vt+2}, s{tmp_srd+4}")
        A(f"buffer_atomic_umax v{vt+2}, v{vt+1}, s[{tmp_srd}:{tmp_srd+3}], 0 offen offset:{4*idx-4}")
    if extra is not None:
        A(f"v_mov_b32 v{vt+2}, s{extra[0]}")
        A(f"buffer_atomic_umax v{vt+2}, v{vt+1}, s[{tmp_srd}:{tmp_srd+3}], 0 offen offset:{4*extra[1]}")
    A(f"s_mov_b64 exec, s[{tmp_srd+6}:{tmp_srd+7}]")
```

```python
from common import *

KA_NLN = 192
KA_NMOD = 54
KA_NPK = 54
KA_W0 = 304
KA_GRID = KA_W0 + 288
KA_LDS = 36864

def gen_ka(A, name="ka_kernel"):
    A.raw(kernel_header(name))
    P = Prof(A, 56, 0)
    A(f"""
    s_cmp_ge_u32 s2, {KA_GRID}
    s_cbranch_scc1 ka_done
    """)
    dbg_start(A, 90)
    P.rt()
    P.stamp()
    if PROF:
        A("v_lshrrev_b32 v2, 6, v0")
        A("s_nop 1")
        A("v_readfirstlane_b32 s52, v2")
    A(f"""
    s_cmp_ge_u32 s2, {KA_W0}
    s_cbranch_scc1 ka_wpack
    s_cmp_ge_u32 s2, {KA_NLN + KA_NMOD + KA_NPK}
    s_cbranch_scc1 ka_done
    s_cmp_ge_u32 s2, {KA_NLN + KA_NMOD}
    s_cbranch_scc1 ka_pack
    s_cmp_ge_u32 s2, {KA_NLN}
    s_cbranch_scc1 ka_mod
    s_load_dwordx4 s[4:7], s[0:1], {KA_X}
    s_load_dwordx2 s[8:9], s[0:1], {KA_SIM}
    s_load_dwordx2 s[10:11], s[0:1], {KA_WS}
    s_and_b32 s20, s2, 7
    s_lshr_b32 s21, s2, 3
    s_mul_i32 s23, s21, 43
    s_lshr_b32 s23, s23, 8            ; idx/6
    s_lshl_b32 s20, s20, 2
    s_add_u32 s20, s20, s23           ; s2v
    s_mul_i32 s23, s23, 6
    s_sub_u32 s21, s21, s23           ; cg
    s_mov_b32 s22, {8*32*1152}
    v_and_b32 v1, 63, v0              ; lane
    v_lshrrev_b32 v2, 6, v0           ; wave
    v_lshrrev_b32 v3, 3, v1           ; r
    v_and_b32 v4, 7, v1               ; c
    v_lshl_add_u32 v5, v2, 4, v3      ; s1 = 16w + r
    v_lshlrev_b32 v6, 5, v5
    v_add_u32 v6, s20, v6
    v_mul_u32_u24 v6, 1152, v6
    s_mul_i32 s24, s21, 12
    v_add_u32 v7, s24, v4             ; c + 12 cg
    """)
    for i in range(9):
        if i: A(f"v_add_u32 v7, 8, v7")
        A(f"v_subrev_u32 v17, 72, v7")
        A(f"v_min_u32 v17, v17, v7")
        A(f"v_lshl_add_u32 v{8+i}, v17, 4, v6")
    A("s_waitcnt lgkmcnt(0)")
    srd(A, 12, 4, SZ_ACT)
    X0, X1 = 32, 68
    for i in range(9):
        A(f"buffer_load_dwordx4 {vr(X0+4*i,4)}, v{8+i}, s[12:15], 0 offen")
    for i in range(9):
        A(f"buffer_load_dwordx4 {vr(X1+4*i,4)}, v{8+i}, s[12:15], s22 offen")
    A(f"""
    v_and_b32 v18, 15, v1
    v_lshrrev_b32 v19, 4, v1          ; g
    v_lshl_add_u32 v20, v2, 4, v18    ; j
    v_cmp_lt_u32 vcc, 32, v20         ; j > 32 -> imag
    v_subrev_u32 v21, 32, v20
    v_mov_b32 v22, s6
    v_mov_b32 v23, s7
    v_mov_b32 v24, s8
    v_mov_b32 v25, s9
    v_cndmask_b32 v21, v20, v21, vcc
    v_cndmask_b32 v22, v22, v24, vcc
    v_cndmask_b32 v23, v23, v25, vcc
    v_lshlrev_b32 v21, 17, v21        ; *32*4096
    v_lshl_add_u32 v21, v19, 4, v21   ; + 16 g
    v_add_co_u32 v22, vcc, v22, v21
    v_addc_co_u32 v23, vcc, 0, v23, vcc
    global_load_dwordx4 v[104:107], v[22:23], off
    global_load_dwordx4 v[108:111], v[22:23], off offset:64
    """)
    srd(A, 16, 10, SZ_ACT, WS_Z)
    A("s_mov_b32 s25, 0x3f803f80")
    for r in range(4): A(f"v_mov_b32 v{24+r}, 0")
    for p, X in enumerate((X0, X1)):
        for i in range(9):
            A(f"s_waitcnt vmcnt({2 + 17 - (9*p + i)})")
            for k in range(4):
                A(f"v_dot2_f32_bf16 v{24+2*p}, v{X+4*i+k}, s25, v{24+2*p}")
                A(f"v_dot2_f32_bf16 v{25+2*p}, v{X+4*i+k}, v{X+4*i+k}, v{25+2*p}")
    P.stamp()
    for mode in ("quad_perm:[1,0,3,2]", "quad_perm:[2,3,0,1]", "row_half_mirror"):
        for r in range(4):
            A(f"v_add_f32_dpp v{24+r}, v{24+r}, v{24+r} {mode} row_mask:0xf bank_mask:0xf")
    inv = "0x3ae38e39"
    import struct
    inv = hex(struct.unpack("<I", struct.pack("<f", 1.0/576))[0])
    eps = hex(struct.unpack("<I", struct.pack("<f", 1e-5))[0])
    for p in range(2):
        s_, q_ = 24+2*p, 25+2*p
        rs, nb = 28+2*p, 112+2*p
        A(f"v_mul_f32 v{s_}, {inv}, v{s_}")
        A(f"v_mul_f32 v{q_}, {inv}, v{q_}")
        A(f"v_fma_f32 v{q_}, -v{s_}, v{s_}, v{q_}")
        A(f"v_max_f32 v{q_}, 0, v{q_}")
        A(f"v_add_f32 v{q_}, {eps}, v{q_}")
        A(f"v_rsq_f32 v{rs}, v{q_}")
        A(f"v_mul_f32 v{nb}, v{s_}, v{rs}")
        A(f"v_sub_f32 v{nb}, 0, v{nb}")
    A("v_mul_u32_u24 v8, 192, v5")
    A("v_lshl_add_u32 v8, v4, 4, v8")
    A("s_mov_b32 s26, 0xffff0000")
    for p, X in enumerate((X0, X1)):
        rs, nb = 28+2*p, 112+2*p
        for i in range(2):
            for k in range(4):
                src = X+4*i+k
                A(f"v_lshlrev_b32 v116, 16, v{src}")
                A(f"v_and_b32 v117, s26, v{src}")
                A(f"v_pk_fma_f32 v[116:117], v[116:117], v[{rs}:{rs+1}], v[{nb}:{nb+1}] op_sel_hi:[1,0,0]")
                A(f"v_cvt_pk_bf16_f32 v{src}, v116, v117")
    A(f"ds_write_b128 v8, {vr(X0,4)}")
    A(f"ds_write_b128 v8, {vr(X1,4)} offset:{8*192}")
    A("v_cmp_gt_u32 vcc, 4, v4")
    A("s_and_saveexec_b64 s[28:29], vcc")
    A(f"ds_write_b128 v8, {vr(X0+4,4)} offset:128")
    A(f"ds_write_b128 v8, {vr(X1+4,4)} offset:{8*192+128}")
    A("s_mov_b64 exec, s[28:29]")
    A(f"""
    v_bfe_u32 v9, v1, 2, 2            ; r'
    v_lshl_add_u32 v9, v19, 3, v9
    v_mul_u32_u24 v9, 192, v9
    v_and_b32 v10, 1, v1
    v_lshl_add_u32 v9, v10, 5, v9
    v_bfe_u32 v10, v1, 1, 1
    v_lshl_add_u32 v9, v10, 3, v9
    v_lshlrev_b32 v11, 5, v20
    v_add_u32 v11, s20, v11
    v_mul_u32_u24 v11, 1152, v11
    v_lshl_add_u32 v11, v19, 4, v11
    s_mul_i32 s27, s21, 192
    s_waitcnt lgkmcnt(0)
    s_barrier
    """)
    P.stamp()
    AF = 32
    ACC = 80
    n = 0
    for ks in range(2):
        for T in range(6):
            for h in range(2):
                off = (32*ks + 4*h) * 192 + 64*(T >> 1) + 16*(T & 1)
                A(f"ds_read_b64_tr_b16 {vr(AF+4*(6*ks+T)+2*h,2)}, v9 offset:{off}")
    A("s_waitcnt vmcnt(0)")
    for ks in range(2):
        for T in range(6):
            idx = 6*ks+T
            A(f"s_waitcnt lgkmcnt({min(15, 2*(11-idx))})")
            c = "0" if ks == 0 else vr(ACC+4*T,4)
            A(f"v_mfma_f32_16x16x32_bf16 {vr(ACC+4*T,4)}, {vr(AF+4*idx,4)}, {vr(104+4*ks,4)}, {c}")
    for b in range(3):
        a0 = ACC + 8*b
        o = 32 + 4*b
        for k in range(4):
            A(f"v_cvt_pk_bf16_f32 v{o+k}, v{a0+2*k}, v{a0+2*k+1}")
        A(f"buffer_store_dwordx4 {vr(o,4)}, v11, s[16:19], s27 offen offset:{64*b}")
    if PROF:
        A("s_waitcnt vmcnt(0)")
        P.stamp()
        P.rt()
    P.flush(10, 52, 44, 8)
    dbg_mark(A, 90, 0, 1, 80, 120, True)
    A("s_endpgm")
    P.n = 2

    A.label("ka_mod")
    A(f"""
    s_load_dwordx4 s[4:7], s[0:1], {KA_C}      ; c, w_mod
    s_load_dwordx2 s[10:11], s[0:1], {KA_WS}
    s_sub_u32 s20, s2, {KA_NLN}                ; m
    v_and_b32 v1, 63, v0
    v_lshrrev_b32 v2, 6, v0
    v_lshrrev_b32 v3, 3, v1                    ; r
    v_and_b32 v4, 7, v1                        ; cc
    v_mul_u32_u24 v5, 144, v2
    v_add_u32 v5, v5, v3                       ; 144w + r
    v_mul_u32_u24 v6, 6912, v5
    v_lshl_add_u32 v6, v4, 4, v6
    v_lshlrev_b32 v7, 1, v0
    s_lshl_b32 s21, s20, 7
    s_waitcnt lgkmcnt(0)
    """)
    srd(A, 12, 4, 1152)
    srd(A, 16, 6, 576*6912)
    for k in range(3):
        A(f"buffer_load_ushort v{8+k}, v7, s[12:15], 0 offen offset:{512*k}")
    W = 32
    for i in range(18):
        A(f"buffer_load_dwordx4 {vr(W+4*i,4)}, v6, s[16:19], s21 offen")
        if i < 17: A(f"s_add_u32 s21, s21, {8*6912}")
    srd(A, 24, 10, 0x8000, WS_MOD)
    A("s_waitcnt vmcnt(18)")
    A("v_lshlrev_b32 v7, 2, v0")
    log2e = "0x3fb8aa3b"
    for k in range(3):
        A(f"""
        v_lshlrev_b32 v{8+k}, 16, v{8+k}
        v_mul_f32 v11, {log2e}, v{8+k}
        v_exp_f32 v11, -v11
        v_add_f32 v11, 1.0, v11
        v_rcp_f32 v11, v11
        v_mul_f32 v11, v11, v{8+k}
        v_cvt_pk_bf16_f32 v11, v11, v11
        v_lshlrev_b32 v11, 16, v11
        ds_write_b32 v7, v11 offset:{1024*k}
        """)
    A("""
    v_lshlrev_b32 v5, 2, v5
    s_waitcnt lgkmcnt(0)
    s_barrier
    """)
    SV = 104
    for i in range(18):
        A(f"ds_read_b32 v{SV+i}, v5 offset:{32*i}")
    for k in range(8): A(f"v_mov_b32 v{16+k}, 0")
    A("s_mov_b32 s22, 0xffff0000")
    A("s_waitcnt lgkmcnt(0)")
    for i in range(18):
        A(f"s_waitcnt vmcnt({17-i})")
        for k in range(4):
            A(f"v_lshlrev_b32 v12, 16, v{W+4*i+k}")
            A(f"v_and_b32 v13, s22, v{W+4*i+k}")
            A(f"v_fmac_f32 v{16+2*k}, v12, v{SV+i}")
            A(f"v_fmac_f32 v{17+2*k}, v13, v{SV+i}")
    P.stamp()
    P.stamp()
    P.stamp()
    P.rt()
    P.flush(10, 52, 44, 8)
    if PROF: A("s_mov_b64 exec, -1")
    dbg_mark(A, 90, 0, 3, 80, 120)
    A(f"""
    v_lshrrev_b32 v12, 3, v0                   ; w*8 + r
    v_lshlrev_b32 v12, 8, v12
    v_lshl_add_u32 v12, v4, 5, v12
    ds_write_b128 v12, v[16:19] offset:3072
    ds_write_b128 v12, v[20:23] offset:3088
    s_waitcnt lgkmcnt(0)
    s_barrier
    v_cmp_gt_u32 vcc, 64, v0
    s_and_saveexec_b64 s[28:29], vcc
    s_cbranch_execz ka_done
    """)
    for i in range(32):
        A(f"ds_read_b32 v{W+i}, v7 offset:{3072+256*i}")
    A("s_waitcnt lgkmcnt(0)")
    st = 16
    while st >= 1:
        for i in range(st):
            A(f"v_add_f32 v{W+i}, v{W+i}, v{W+i+st}")
        st //= 2
    A(f"""
    v_cvt_pk_bf16_f32 v{W}, v{W}, v{W}
    v_lshlrev_b32 v{W}, 16, v{W}
    s_mul_i32 s23, s20, 57
    s_lshr_b32 s23, s23, 9                     ; chunk = m/9
    s_cmp_eq_u32 s23, 1
    s_cbranch_scc1 ka_mod_plus1
    s_cmp_eq_u32 s23, 4
    s_cbranch_scc0 ka_mod_store
    ka_mod_plus1:
    v_add_f32 v{W}, 1.0, v{W}
    v_cvt_pk_bf16_f32 v{W}, v{W}, v{W}
    v_lshlrev_b32 v{W}, 16, v{W}
    ka_mod_store:
    s_lshl_b32 s21, s20, 8
    buffer_store_dword v{W}, v7, s[24:27], s21 offen
    ; interleaved copy CS[(col%576)*2 + (chunk==3)] for chunks 3 (sb) and 4 (1+cb)
    s_sub_u32 s30, s23, 3
    s_cmp_gt_u32 s30, 1
    s_cbranch_scc1 ka_done
    s_mul_i32 s31, s23, 9
    s_sub_u32 s31, s20, s31                    ; m % 9
    s_lshl_b32 s31, s31, 9                     ; *64*8
    s_xor_b32 s30, s30, 1                      ; sb -> 1, c1b -> 0
    s_lshl_b32 s30, s30, 2
    s_add_u32 s31, s31, s30
    s_add_u32 s31, s31, {WS_CS}
    v_lshlrev_b32 v7, 3, v0
    buffer_store_dword v{W}, v7, s[24:27], s31 offen
    ka_done:
    s_endpgm
    """)
    A.label("ka_pack")
    A(f"""
    s_load_dwordx4 s[4:7], s[0:1], {KA_HRE}
    s_load_dwordx2 s[10:11], s[0:1], {KA_WS}
    v_and_b32 v1, 63, v0
    v_lshrrev_b32 v2, 6, v0
    s_nop 0
    v_readfirstlane_b32 s24, v2
    s_sub_u32 s20, s2, {KA_NLN + KA_NMOD}
    s_lshl_b32 s21, s20, 2
    s_add_u32 s21, s21, s24                    ; u
    s_mul_i32 s22, s21, 171
    s_lshr_b32 s22, s22, 9                     ; u/3
    s_mul_i32 s23, s22, 3
    s_sub_u32 s23, s21, s23                    ; u%3
    s_cmp_ge_u32 s22, 36
    s_cselect_b32 s25, 36, 0
    s_sub_u32 s25, s22, s25                    ; eps
    v_and_b32 v3, 15, v1
    v_lshrrev_b32 v4, 4, v1
    v_mul_u32_u24 v3, 1152, v3
    v_lshl_add_u32 v3, v4, 4, v3
    s_mul_i32 s25, s25, {16*1152}
    s_mul_i32 s26, s23, 384
    s_add_u32 s25, s25, s26
    s_mul_i32 s27, s21, 6144
    s_add_u32 s28, s27, 4096
    v_lshlrev_b32 v5, 4, v1
    s_waitcnt lgkmcnt(0)
    s_cmp_ge_u32 s22, 36
    s_cselect_b32 s12, s6, s4
    s_cselect_b32 s13, s7, s5
    s_and_b32 s13, s13, 0xffff
    s_mov_b32 s14, {D*D*2}
    s_mov_b32 s15, 0x20000
    """)
    for k in range(6):
        A(f"buffer_load_dwordx4 {vr(8+4*k,4)}, v3, s[12:15], s25 offen offset:{64*k}")
    srd(A, 16, 10, SZ_WDP, WS_WDP)
    srd(A, 32, 10, SZ_FL, WS_FL1)
    A(f"""
    v_mov_b32 v32, 0
    v_mov_b32 v33, 0
    v_mov_b32 v34, 0
    v_mov_b32 v35, 0
    s_lshl_b32 s29, s21, 10
    buffer_store_dwordx4 v[32:35], v5, s[32:35], s29 offen
    """)
    for k in range(6):
        A(f"s_waitcnt vmcnt({6 - k + k})" if False else f"s_waitcnt vmcnt({6})" if k == 0 else "s_nop 0")
        break
    A("s_waitcnt vmcnt(1)")
    for k in range(6):
        so = "s27" if k < 4 else "s28"
        A(f"buffer_store_dwordx4 {vr(8+4*k,4)}, v5, s[16:19], {so} offen offset:{1024*(k%4)}")
    A("s_endpgm")
    A.label("ka_wpack")
    A(f"""
    s_load_dwordx4 s[4:7], s[0:1], {KA_W1}
    s_load_dwordx2 s[10:11], s[0:1], {KA_WS}
    v_and_b32 v1, 63, v0
    v_lshrrev_b32 v2, 6, v0
    s_nop 0
    v_readfirstlane_b32 s24, v2
    s_sub_u32 s20, s2, {KA_W0}
    s_and_b32 s21, s20, 7                      ; x
    s_lshr_b32 s22, s20, 3                     ; v
    s_lshr_b32 s25, s21, 1                     ; q
    s_and_b32 s26, s21, 1                      ; jh
    v_lshlrev_b32 v20, 4, v1
    v_lshrrev_b32 v21, 2, v1
    v_and_b32 v22, 3, v1
    s_mul_i32 s27, s24, 9216
    """)
    if int(os.environ.get('CPF', '1')):
        A(f"""
        s_lshl_b32 s46, s22, 2
        s_add_u32 s46, s46, s24
        s_lshl_b32 s46, s46, 10
        s_cmp_ge_u32 s46, code_end-kb_kernel
        s_cbranch_scc1 ka_nopf
        s_getpc_b64 s[44:45]
        ka_pc:
        s_add_u32 s44, s44, kb_kernel-ka_pc
        s_addc_u32 s45, s45, 0
        v_add_u32 v100, s46, v20
        global_load_dwordx4 v[104:107], v100, s[44:45]
        ka_nopf:
        """)
    A(f"""
    s_cmp_ge_u32 s22, 18
    s_cbranch_scc1 ka_wp2
    """)
    def dma_offs(cpr, mul, pitch):
        for n in range(9):
            A(f"""
            v_add_u32 v3, {64*n}, v1
            v_mul_u32_u24 v4, {mul}, v3
            v_lshrrev_b32 v4, 16, v4
            v_mul_u32_u24 v5, {cpr}, v4
            v_sub_u32 v3, v3, v5
            v_lshlrev_b32 v3, 4, v3
            v_mul_u32_u24 v5, {pitch}, v4
            v_add_u32 v{8+n}, v3, v5
            """)
    dma_offs(72, 911, 9216)
    A(f"""
    s_lshl_b32 s28, s22, 5
    s_lshl_b32 s29, s24, 3
    s_add_u32 s28, s28, s29
    s_mul_i32 s28, s28, 9216
    s_mul_i32 s29, s21, 1152
    s_add_u32 s28, s28, s29
    v_mul_u32_u24 v23, 1152, v21
    v_lshl_add_u32 v23, v22, 3, v23
    s_mul_i32 s29, s24, 288
    v_add_u32 v23, s29, v23
    v_add_u32 v24, {16*1152}, v23
    s_lshl_b32 s30, s21, 1
    s_lshr_b32 s31, s24, 1
    s_add_u32 s30, s30, s31                    ; fb
    s_and_b32 s31, s30, 3
    s_mul_i32 s31, s31, 9
    s_lshr_b32 s31, s31, 1
    s_sub_u32 s22, s22, s31
    s_cselect_b32 s31, 18, 0
    s_add_u32 s22, s22, s31
    s_mul_i32 s30, s30, {36*9216}
    s_and_b32 s38, s24, 1
    s_mul_i32 s38, s38, 9                      ; t0
    s_mov_b32 s39, {PST[1]}                    ; thr1
    s_mov_b32 s42, {PST[2]}                    ; thr2
    s_mul_i32 s40, s22, {PARTS[0]}             ; c0
    s_mul_i32 s41, s22, {PARTS[1]}
    s_add_u32 s41, s41, {18*PST[1] - PST[1]}   ; c1
    s_mul_i32 s43, s22, {PARTS[2]}
    s_add_u32 s43, s43, {18*PST[2] - PST[2]}   ; c2
    s_waitcnt lgkmcnt(0)
    s_mov_b32 s12, s4
    s_mov_b32 s13, s5
    s_branch ka_wp3
    ka_wp2:
    """)
    dma_offs(36, 1821, 1152)
    A(f"""
    s_sub_u32 s22, s22, 18
    s_mul_i32 s28, s25, 1152
    s_lshl_b32 s29, s22, 6
    s_add_u32 s28, s28, s29
    s_lshl_b32 s29, s24, 4
    s_add_u32 s28, s28, s29
    s_mul_i32 s28, s28, 1152
    s_mul_i32 s29, s26, 576
    s_add_u32 s28, s28, s29
    v_mul_u32_u24 v23, 576, v21
    v_lshl_add_u32 v23, v22, 3, v23
    s_lshr_b32 s31, s24, 1
    s_mul_i32 s29, s31, {32*576}
    s_and_b32 s32, s24, 1
    s_mul_i32 s33, s32, 288
    s_add_u32 s29, s29, s33
    v_add_u32 v23, s29, v23
    v_add_u32 v24, {16*576}, v23
    s_lshl_b32 s30, s21, 1
    s_add_u32 s30, s30, s32                    ; q*4 + j
    s_mul_i32 s30, s30, {36*9216}
    s_add_u32 s30, s30, {SZ_WP}
    s_lshl_b32 s33, s22, 1
    s_add_u32 s33, s33, s31                    ; kstep
    s_mul_i32 s33, s33, 9
    s_lshl_b32 s39, s25, 1
    s_add_u32 s39, s39, 2
    s_cmp_eq_u32 s25, 3
    s_cselect_b32 s39, 0, s39
    s_mov_b32 s38, 0
    s_sub_u32 s41, s33, s39                    ; cB
    s_add_u32 s40, s41, 9                      ; cA
    s_mov_b32 s42, 100
    s_mov_b32 s43, 0
    s_waitcnt lgkmcnt(0)
    s_mov_b32 s12, s6
    s_mov_b32 s13, s7
    ka_wp3:
    s_and_b32 s13, s13, 0xffff
    s_mov_b32 s14, {D*F*2}
    s_mov_b32 s15, 0x20000
    """)
    for n in range(9):
        A(f"s_add_u32 m0, s27, {1024*n}")
        A(f"buffer_load_dwordx4 v{8+n}, s[12:15], s28 offen lds")
    srd(A, 16, 10, 2*SZ_WP, WS_W1P)
    A("s_waitcnt vmcnt(0)")
    A("s_barrier")
    for T in range(9):
        A(f"ds_read_b64_tr_b16 {vr(32+4*T,2)}, v23 offset:{32*T}")
        A(f"ds_read_b64_tr_b16 {vr(34+4*T,2)}, v24 offset:{32*T}")
    for T in range(9):
        A(f"s_add_u32 s36, s38, {T}")
        A(f"s_cmp_lt_u32 s36, s39")
        A(f"s_cselect_b32 s37, s40, s41")
        A(f"s_cmp_lt_u32 s36, s42")
        A(f"s_cselect_b32 s37, s37, s43")
        A(f"s_add_u32 s36, s36, s37")
        A(f"s_lshl_b32 s36, s36, 10")
        A(f"s_add_u32 s36, s36, s30")
        A(f"s_waitcnt lgkmcnt({min(15, 16-2*T)})")
        A(f"buffer_store_dwordx4 {vr(32+4*T,4)}, v20, s[16:19], s36 offen")
    dbg_mark(A, 90, 0, 2, 80, 120)
    A("s_endpgm")
    return dict(name=name, vgpr=128, sgpr=100, accum=128, grid=KA_GRID, block=256, lds=KA_LDS)
```

```python
from asmlib import *
S, D, F = 2048, 576, 4608
KA_X, KA_SRE, KA_SIM, KA_HRE, KA_HIM, KA_BX, KA_W1, KA_W2, KA_C, KA_WMOD, KA_OUT, KA_DBG, KA_WS = [8 * i for i in range(13)]
WS_MOD = 0
WS_CS = 0x4000
WS_Z = 0x10000
SZ_ACT = S * D * 2
WS_X1 = WS_Z + SZ_ACT
WS_X1S = WS_X1 + SZ_ACT
WS_STAT = WS_X1S + SZ_ACT
SZ_STAT = 2048 * 64
WS_G = WS_STAT + SZ_STAT
SZ_G = 3 * 2 * F * 4
WS_H1 = WS_G + 0x20000
SZ_H1 = S * F * 2
WS_PART = WS_H1 + SZ_H1
SZ_PART = 4 * S * D * 4

def srd(A, d, base, size, off=0):
    if off:
        A(f"s_add_u32 s{d}, s{base}, {off}")
        A(f"s_addc_u32 s{d+1}, s{base+1}, 0")
        A(f"s_and_b32 s{d+1}, s{d+1}, 0xffff")
    else:
        A(f"s_mov_b32 s{d}, s{base}")
        A(f"s_and_b32 s{d+1}, s{base+1}, 0xffff")
    A(f"s_mov_b32 s{d+2}, {size}")
    A(f"s_mov_b32 s{d+3}, 0x20000")

def vr(a, n=1, t="v"):
    return f"{t}{a}" if n == 1 else f"{t}[{a}:{a+n-1}]"

import os
PROF = os.environ.get("PROF", "0") == "1"
WS_PROF = 200 << 20
class Prof:
    def __init__(self, A, base, slot):
        self.A, self.base, self.n, self.slot = A, base, 0, slot
    def stamp(self):
        if not PROF: return
        op = "s_memrealtime" if os.environ.get("RT", "0") == "1" else "s_memtime"
        self.A(f"{op} s[{self.base+2*self.n}:{self.base+2*self.n+1}]")
        self.n += 1
    def rt(self):
        if not PROF: return
        self.A(f"s_memrealtime s[{self.base+2*self.n}:{self.base+2*self.n+1}]")
        self.n += 1
    def flush(self, ws_sgpr, wave_sgpr, srd_base, vtmp):
        if not PROF: return
        A = self.A
        A("s_waitcnt lgkmcnt(0)")
        srd(A, srd_base, ws_sgpr, 1 << 24, WS_PROF + self.slot * (1 << 20))
        A(f"s_lshl_b32 s{srd_base+4}, s2, 3")
        A(f"s_add_u32 s{srd_base+4}, s{srd_base+4}, s{wave_sgpr}")
        A(f"s_lshl_b32 s{srd_base+4}, s{srd_base+4}, 7")
        A(f"s_mov_b64 exec, 1")
        A(f"v_mov_b32 v{vtmp+1}, 0")
        for i in range(self.n):
            A(f"v_mov_b32 v{vtmp}, s{self.base+2*i}")
            A(f"buffer_store_dword v{vtmp}, v{vtmp+1}, s[{srd_base}:{srd_base+3}], s{srd_base+4} offen offset:{4*i}")

WS_WDP = WS_PART + SZ_PART + (4 << 20)
SZ_WDP = 2 * 36 * 18 * 1024
WS_FL1 = WS_WDP + SZ_WDP
WS_FL2 = WS_FL1 + 256 * 128
SZ_FL = 2 * 256 * 128
SZ_PART2 = 64 * 4 * 4 * 4 * 5 * 1024
assert SZ_PART2 <= SZ_PART + (4 << 20)
import struct
f2h = lambda f: hex(struct.unpack("<I", struct.pack("<f", f))[0])

class Cnt:
    def __init__(self, maxn):
        self.order = []; self.done = 0; self.maxn = maxn
    def issue(self, tag): self.order.append(tag)
    def need(self, pred):
        idx = [i for i, t in enumerate(self.order) if pred(t)]
        if not idx: return None
        last = idx[-1]
        if last < self.done: return None
        n = len(self.order) - 1 - last
        if n > self.maxn: n = self.maxn; last = len(self.order) - 1 - n
        self.done = max(self.done, last + 1)
        return n
    def complete(self, pred):
        return all(i < self.done for i, t in enumerate(self.order) if pred(t))
WS_W1P = WS_FL1 + SZ_FL
SZ_WP = D * F * 2
WS_W2P = WS_W1P + SZ_WP
SZ_PART3 = 64 * 4 * 9 * 2 * 4 * 1024
assert SZ_PART3 <= SZ_PART + (4 << 20)
ROT = [2, 4, 6, 0]

PARTS = [int(x) for x in os.environ.get('PARTS', '8,6,4').split(',')]
PST = [sum(PARTS[:i]) for i in range(len(PARTS) + 1)]

DBGT = os.environ.get("DBGT", "0") == "1"
def dbg_start(A, sreg):
    if not DBGT: return
    A(f"s_memrealtime s[{sreg}:{sreg+1}]")
    A(f"s_load_dwordx2 s[{sreg+2}:{sreg+3}], s[0:1], {KA_DBG}")
def dbg_mark(A, sreg, launch, idx, tmp_srd, vt, start=False, extra=None):
    if not DBGT: return
    A("s_waitcnt vmcnt(0) lgkmcnt(0)")
    A(f"s_memrealtime s[{tmp_srd+4}:{tmp_srd+5}]")
    A(f"s_add_u32 s{tmp_srd}, s{sreg+2}, {512*(int(os.environ.get('DBGL', '2'))-launch)}")
    A(f"s_addc_u32 s{tmp_srd+1}, s{sreg+3}, 0")
    A(f"s_and_b32 s{tmp_srd+1}, s{tmp_srd+1}, 0xffff")
    A(f"s_mov_b32 s{tmp_srd+2}, 256")
    A(f"s_mov_b32 s{tmp_srd+3}, 0x20000")
    A("s_waitcnt lgkmcnt(0)")
    A(f"s_mov_b64 s[{tmp_srd+6}:{tmp_srd+7}], exec")
    A(f"s_and_b32 s{tmp_srd+5}, s2, 31")
    A(f"v_or_b32 v{vt}, s{tmp_srd+5}, v0")
    A(f"v_cmp_eq_u32 vcc, 0, v{vt}")
    A("s_and_b64 exec, exec, vcc")
    A(f"v_mov_b32 v{vt}, s{tmp_srd+4}")
    A(f"v_mov_b32 v{vt+1}, 0")
    A(f"buffer_atomic_umax v{vt}, v{vt+1}, s[{tmp_srd}:{tmp_srd+3}], 0 offen offset:{4*idx}")
    if start:
        A(f"s_not_b32 s{tmp_srd+4}, s{sreg}")
        A(f"v_mov_b32 v{vt+2}, s{tmp_srd+4}")
        A(f"buffer_atomic_umax v{vt+2}, v{vt+1}, s[{tmp_srd}:{tmp_srd+3}], 0 offen offset:{4*idx-4}")
    if extra is not None:
        A(f"v_mov_b32 v{vt+2}, s{extra[0]}")
        A(f"buffer_atomic_umax v{vt+2}, v{vt+1}, s[{tmp_srd}:{tmp_srd+3}], 0 offen offset:{4*extra[1]}")
    A(f"s_mov_b64 exec, s[{tmp_srd+6}:{tmp_srd+7}]")

WS_F2P = WS_W2P + SZ_WP
SZ_F2P = 33 * 4096
WS_CSB = WS_F2P + SZ_F2P + 4096
WS_GF = WS_CSB + 4096
SZ_GF = F * 16
WS_FLB = WS_GF + SZ_GF
FL_X = 2 * 256 * 128
FL_S = FL_X + 64 * 128
FL_W = FL_S + 256
SZ_FLB = FL_W + 16 * 256
```

```python
from common import *
STG = 36864
NSLOT = 4
F_GL = NSLOT * STG
F_LDS = F_GL + 4608
E = lambda k, d: int(os.environ.get(k, str(d)))
DIST = E('DIST', 10)
RING = E('RING', 13)
NTM = E('NTM', 2)
NP = len(PARTS)
LST = [x // 2 for x in PST]
P2 = [(0, l) for l in range(9)] + [(d, l) for p in range(NP) for d in (1, 2, 3) for l in range(LST[p], LST[p+1])]
partof = lambda l: max(p for p in range(NP) if LST[p] <= l)

def stats_to_ms(A, vst, vm, vsig, tmp):
    for a, b in ((0, 2), (4, 6), (8, 10), (0, 4), (0, 8)):
        A(f"v_add_f32 v{vst+a}, v{vst+a}, v{vst+b}")
        A(f"v_add_f32 v{vst+a+1}, v{vst+a+1}, v{vst+b+1}")
    A(f"v_mul_f32 v{vm}, {f2h(-1.0/576)}, v{vst}")
    A(f"v_mul_f32 v{tmp}, {f2h(1.0/576)}, v{vst+1}")
    A(f"v_fma_f32 v{tmp}, -v{vm}, v{vm}, v{tmp}")
    A(f"v_max_f32 v{tmp}, 0, v{tmp}")
    A(f"v_add_f32 v{tmp}, {f2h(1e-5)}, v{tmp}")
    A(f"v_sqrt_f32 v{vsig}, v{tmp}")

class Rec:
    def __init__(self): self.l = []
    def __call__(self, t):
        for x in t.strip().split("\n"):
            x = x.split(";")[0].strip()
            if x: self.l.append(x)

def gen_ffn_body(A):
    P = Prof(A, 70, 2)
    P.rt(); P.stamp()
    A(f"""
    s_load_dwordx2 s[60:61], s[0:1], {KA_WS}
    s_load_dwordx2 s[62:63], s[0:1], {KA_OUT}
    s_and_b32 s20, s2, 7                 ; xcd
    s_lshr_b32 s21, s2, 3                ; idx
    s_and_b32 s22, s20, 1
    s_lshl_b32 s22, s22, 3
    s_lshr_b32 s23, s21, 2
    s_add_u32 s22, s22, s23              ; taub
    s_lshr_b32 s23, s20, 1               ; q
    s_and_b32 s21, s21, 3                ; j
    s_lshl_b32 s25, s23, 2
    s_add_u32 s25, s25, s21              ; fb = 4q + j
    s_mul_i32 s29, s21, 9
    s_lshr_b32 s29, s29, 1
    v_and_b32 v1, 63, v0
    v_lshrrev_b32 v2, 6, v0
    v_lshlrev_b32 v26, 4, v1             ; lane*16
    v_readfirstlane_b32 s24, v2          ; wave
    v_mov_b32 v30, 0x7ffffff0
    v_add_u32 v25, {18*1024}, v26
    s_mul_i32 s30, s25, {36*9216}
    s_mul_i32 s26, s24, 9216
    s_add_u32 s31, s30, {SZ_WP}
    s_add_u32 s30, s30, s26
    s_lshl_b32 s27, s22, 2
    s_add_u32 s27, s27, s24              ; beta
    s_mul_i32 s28, s27, {36*1024}
    s_add_u32 s5, s28, {18*1024}
    s_lshl_b32 s4, s29, 10
    s_add_u32 s4, s4, s28
    s_lshl_b32 s65, s24, 3               ; 8*w
    v_and_b32 v6, 15, v1                 ; tok
    v_lshrrev_b32 v7, 4, v1              ; g
    s_waitcnt lgkmcnt(0)
    """)
    srd(A, 8, 60, 2*SZ_WP, WS_W1P)
    srd(A, 16, 60, SZ_ACT, WS_X1S)
    VM = Cnt(63); LG = Cnt(15)
    ABL = os.environ.get('ABL', '').split(',')
    cur = [0]
    def vm(tag, txt):
        key = tag[0] if isinstance(tag, tuple) else tag
        if key in ABL: txt = txt.replace("v26,", "v30,").replace("v25,", "v30,")
        A(txt); VM.issue(tag)
    def lg(tag, txt): A(txt); LG.issue(tag)
    def waitvm(pred):
        n = VM.need(pred)
        if n is not None: A(f"s_waitcnt vmcnt({n})")
    def waitlg(pred):
        n = LG.need(pred)
        if n is not None: A(f"s_waitcnt lgkmcnt({n})")
    def dma_group(g):
        ops = []
        sreg = 68 + (g & 1)
        if g < 9:
            pre = [f"s_add_u32 s{sreg}, s30, {g*STG}"]
        else:
            lit = 0
            for w in range(4):
                d, l = P2[4*(g-9) + w]
                lit |= (d*16 + l) << (8*w)
            pre = [f"s_lshr_b32 s66, {hex(lit)}, s65", "s_lshr_b32 s67, s66, 4", "s_add_u32 s67, s67, s21", "s_and_b32 s67, s67, 3",
                   "s_mul_i32 s67, s67, 9", "s_and_b32 s66, s66, 15", "s_add_u32 s66, s66, s67",
                   f"s_mul_i32 s66, s66, 9216", f"s_add_u32 s{sreg}, s66, s31"]
        for n in range(9):
            op = [(None, x) for x in pre] if n == 0 else []
            if n % 4 == 0:
                if n: op.append((None, f"s_add_u32 s{sreg}, s{sreg}, 4096"))
                op.append((None, f"s_add_u32 m0, s26, {(g % NSLOT)*STG + 1024*n}"))
            op.append((("dma", g), f"buffer_load_dwordx4 v26, s[8:11], s{sreg} offen offset:{1024*(n%4)}{' sc1' if g >= 9 else ''} lds"))
            ops.append(op)
        return ops
    def xfr(kk, tt): return vr(8*kk + 4*tt, 4, 'a')
    def x1s_op(kk, tt):
        op = [(("x1s", kk), f"buffer_load_dwordx4 {xfr(kk,tt)}, v{26-tt}, s[16:19], s4 offen sc1")]
        if tt == 1 and kk < 17:
            op += [(None, x) for x in ("s_add_u32 s4, s4, 1024", "s_cmp_eq_u32 s4, s5", "s_cselect_b32 s4, s28, s4")]
        return op
    def emit(op):
        for tag, txt in op:
            if tag is None: A(txt)
            else: vm(tag, txt)
    ST = 208
    FLG = 252
    srd(A, 36, 60, SZ_FLB, WS_FLB)
    npoll = [0]
    def poll_txt(vo, so, off): return f"buffer_load_dword v{FLG}, v{vo}, s[36:39], {so} offen offset:{off} sc1"
    def poll_spin(vo, so, off, sleep=True):
        n = npoll[0]; npoll[0] += 1
        A(f"""
        s_mov_b32 s67, 400000
        ffn_pc{n}:
        v_cmp_eq_u32 vcc, 1, v{FLG}
        s_cmp_eq_u64 vcc, exec
        s_cbranch_scc1 ffn_ok{n}
        s_sub_u32 s67, s67, 1
        s_cbranch_scc1 ffn_ok{n}
        {'s_sleep 1' if sleep else ''}
        {poll_txt(vo, so, off)}
        s_waitcnt vmcnt(0)
        s_branch ffn_pc{n}
        ffn_ok{n}:
        """)
    A(f"""
    v_min_u32 v16, 11, v1
    v_lshlrev_b32 v16, 2, v16
    s_lshl_b32 s66, s27, 7
    s_add_u32 s66, s66, {FL_X}
    {poll_txt(16, 's66', 0)}
    v_min_u32 v5, 3, v1
    v_lshlrev_b32 v5, 2, v5
    v_min_u32 v17, 57, v1
    v_lshlrev_b32 v17, 2, v17
    s_mov_b32 s7, {FL_S}
    """)
    srd(A, 32, 60, SZ_H1, WS_H1)
    srd(A, 40, 60, SZ_STAT, WS_STAT)
    srd(A, 44, 60, SZ_GF, WS_GF)
    srd(A, 12, 60, SZ_PART3, WS_PART)
    A(f"""
    s_lshl_b32 s64, s27, 5
    v_add_u32 v253, s64, v6
    v_lshlrev_b32 v253, 6, v253
    v_add_u32 v27, {STG}, v26
    v_add_u32 v28, {2*STG}, v26
    v_add_u32 v29, {3*STG}, v26
    v_lshlrev_b32 v31, 4, v6
    v_add_u32 v31, {F_GL}, v31
    s_mul_i32 s48, s27, {2*144*1024}
    s_mul_i32 s64, s25, {9*1024}
    s_add_u32 s50, s48, s64
    s_add_u32 s51, s50, {144*1024}
    s_add_u32 s52, s50, 4096
    s_add_u32 s53, s51, 4096
    s_add_u32 s54, s50, 8192
    s_add_u32 s55, s51, 8192
    s_mul_i32 s64, s23, {36*1024}
    s_add_u32 s48, s48, s64              ; cluster base (beta, q), tt=0
    s_lshl_b32 s56, s27, 2
    s_add_u32 s57, s56, s23
    s_lshl_b32 s57, s57, 7
    s_add_u32 s58, s56, s21
    s_mul_i32 s56, s58, {9*4*1024}
    s_lshl_b32 s58, s58, 7
    s_add_u32 s58, s58, {256*128}
    s_lshl_b32 s59, s21, 2
    v_mov_b32 v2, s59                    ; 4j
    v_mov_b32 v3, 1
    s_mov_b32 s6, 0xffff0000
    s_mul_i32 s64, s25, 4608
    s_mul_i32 s49, s24, 1152
    s_add_u32 s64, s64, s49
    s_add_u32 s49, s49, {F_GL}
    s_waitcnt vmcnt(0)
    """)
    A("v_mov_b32 v18, 0")
    A("buffer_store_dword v3, v18, s[36:39], s3 offen sc1")
    poll_spin(16, 's66', 0, False)
    VM.issue("flag")
    P.stamp()
    XP = E('XP', 5)
    for kk in range(XP):
        for tt in range(2): emit(x1s_op(kk, tt))
    early = []
    for tt in range(2):
        for k in range(3):
            early.append([("st", f"buffer_load_dwordx4 {vr(ST+12*tt+4*k,4)}, v253, s[40:43], 0 offen offset:{1024*tt+16*k} sc1")])
    ACC = 32
    def aring(s):
        if s < 8: return vr(176 + 4*s, 4)
        if s == 8: return vr(244, 4)
        return vr(240 + 4*(s-9), 4, 'a')
    def acc1(t, tt): return ACC + 8*t + 4*tt
    def acc2(T, tt): return acc1(2*T+1, tt)
    SIG, NM = 248, 250
    SF = 8
    def hbase(k2):
        n = k2 - 9
        return 144 + 8*n if n < 12 else 8*(n - 12)
    def hfrag(k2, tt):
        d, l = P2[k2]
        if d == 0: return vr(acc1(2*l, tt), 4)
        return vr(hbase(k2) + 4*tt, 4, 'a')
    seq = []; PE = []; nf = 0
    for p in range(NP):
        for kk in range(18):
            for t in range(PST[p], PST[p+1]):
                seq.append((('w', nf), t, ('x', kk), kk == 0)); nf += 1
        for t in range(PST[p], PST[p+1]): seq.append((('g', t), t, ('s', 0), False))
        PE.append(len(seq))
    S2 = len(seq)
    KT = 36 - 4*NTM
    o2 = [(k2, T) for k2 in range(KT) for T in range(9)] + [(k2, T) for T in range(9) for k2 in range(KT, 36)]
    for k2, T in o2: seq.append((('w', 324 + 9*k2 + T), 2*T+1, ('h', k2), k2 == 0))
    NS = len(seq)
    TM0 = S2 + KT*9
    first_read = {}
    for i, e in enumerate(seq):
        if e[0][0] == 'w': first_read.setdefault(min(e[0][1] // 36, 18 - NTM), i)
    bar_at = {i: g for g, i in first_read.items() if g > 0}
    Bpos = lambda g: first_read[min(g, 18 - NTM)] - DIST
    xlast = {kk: max(i for i, e in enumerate(seq) if e[2] == ('x', kk)) for kk in range(18)}
    xfirst = {kk: min(i for i, e in enumerate(seq) if e[2] == ('x', kk)) for kk in range(18)}
    hfirst = {k2: min(i for i, e in enumerate(seq) if e[2] == ('h', k2)) for k2 in range(36)}
    def read1(i):
        kind, f = seq[i][0]
        if kind == 'w':
            g, r = divmod(f, 36)
            lg(("a", i), f"ds_read_b128 {aring(i % RING)}, v{26 + g % NSLOT} offset:{1024*r}")
        else:
            lg(("a", i), f"ds_read_b128 {aring(i % RING)}, v31 offset:{256*f}")
    Q = []
    CAT = [None]
    KEEP = os.environ.get('KEEP')
    def add(ready, fns, deadline=10**9):
        if KEEP is not None and CAT[0] not in KEEP.split(','): return
        for fn in fns: Q.append([ready, len(Q), deadline, fn])
    def I(txt): return lambda: A(txt)
    def opfns(op): return [(lambda tag=tag, txt=txt: A(txt) if tag is None else vm(tag, txt)) for tag, txt in op]
    def spread(ops, slots, deadline=10**9):
        n = len(ops); slots = list(slots)
        for k, op in enumerate(ops):
            add(slots[len(slots) * k // n], opfns(op), deadline)
    DW = E('DW', 30)
    CAT[0] = 'dma'
    XL = E('XL', 44)
    for kk in range(XP, 18):
        for tt in range(2): add(max(0, xfirst[kk] - XL + 3*tt), opfns(x1s_op(kk, tt)), xfirst[kk] - 8)
    spread(dma_group(2), range(2, 24), Bpos(2) - 2)
    spread(early, range(24, 60))
    for g in range(3, 18):
        lo = Bpos(g-2) + 1
        w = DW
        if g > 18 - NTM: w = 16
        spread(dma_group(g), range(lo, lo + w), Bpos(g) - 2)
    CAT[0] = 'bias'
    GBAR = 3
    add(30, [lambda: vm("pollg", poll_txt(17, 's7', 0))])
    def gload():
        waitvm(lambda t: t == "pollg")
        poll_spin(17, 's7', 0)
        A("s_mov_b32 s67, m0")
        A("s_mov_b32 m0, s49")
        vm("gf", "buffer_load_dwordx4 v26, s[44:47], s64 offen sc1 lds")
        vm("gf", "buffer_load_dwordx4 v26, s[44:47], s64 offen offset:128 sc1 lds")
        A("s_mov_b32 m0, s67")
    add(56, [gload], Bpos(GBAR) - 20)
    add(Bpos(7) - 44, [I("v_min_u32 v16, 35, v1"), I("v_lshlrev_b32 v16, 2, v16"), I("s_lshl_b32 s3, s25, 8"), I(f"s_add_u32 s3, s3, {FL_W}"),
                       lambda: vm("pollw", poll_txt(16, 's3', 0))])
    add(Bpos(7) - 4, [lambda: (waitvm(lambda t: t == "pollw"), poll_spin(16, 's3', 0))], Bpos(7))
    add(99, [lambda: waitvm(lambda t: t == "st")])
    for tt in range(2):
        R = Rec(); stats_to_ms(R, ST+12*tt, NM+tt, SIG+tt, 240)
        o = SF + 4*tt
        R(f"""
        v_cvt_pk_bf16_f32 v{o+1}, v{NM+tt}, v{SIG+tt}
        v_lshlrev_b32 v240, 16, v{o+1}
        v_and_b32 v241, s6, v{o+1}
        v_sub_f32 v242, v{NM+tt}, v240
        v_sub_f32 v243, v{SIG+tt}, v241
        v_cvt_pk_bf16_f32 v{o}, v240, v242
        v_cvt_pk_bf16_f32 v{o+2}, v243, v241
        v_cmp_eq_u32 vcc, 0, v7
        v_mov_b32 v{o+3}, 0
        v_cndmask_b32 v{o}, 0, v{o}, vcc
        v_cndmask_b32 v{o+1}, 0, v{o+1}, vcc
        v_cndmask_b32 v{o+2}, 0, v{o+2}, vcc
        """)
        add(100 + 16*tt, [I(x) for x in R.l], PE[0] - PARTS[0] - 2)
    assert PE[0] - PARTS[0] - DIST > Bpos(GBAR)
    CAT[0] = 'conv'
    def conv(l, tt):
        a, b = acc1(2*l, tt), acc1(2*l+1, tt)
        fns = [I(f"v_cvt_pk_bf16_f32 v{a}, v{a}, v{a+1}"), I(f"v_cvt_pk_bf16_f32 v{a+1}, v{a+2}, v{a+3}"),
               I(f"v_cvt_pk_bf16_f32 v{a+2}, v{b}, v{b+1}"), I(f"v_cvt_pk_bf16_f32 v{a+3}, v{b+2}, v{b+3}")]
        fns += [I(f"v_pk_max_i16 v{a+k}, v{a+k}, 0") for k in range(4)]
        fns.append(lambda: vm(("h1st", partof(l)), f"buffer_store_dwordx4 {vr(a,4)}, v26, s[32:35], s{50 + 2*(l//4) + tt} offen offset:{1024*(l%4)} sc1"))
        return fns
    SG = E('SG', 6)
    fw = {}
    for p in range(NP):
        n = 0
        for l in range(LST[p], LST[p+1]):
            done = PE[p] - (PST[p+1] - (2*l+1))
            for tt in range(2):
                if p < NP - 1:
                    add(max(done + 2, PE[p] - 2 + SG*n), conv(l, tt))
                else:
                    c = conv(l, tt)
                    add(done + 2, c[:-1], S2 + l - 1)
                    add(max(S2 + 9, PE[p] + 8 + SG*n), c[-1:])
                n += 1
        fw[p] = PE[p] + 8 + SG*n + E('FWD', 40)
    def poll_issue(part): vm(("poll", part), poll_txt(5, 's57', 16*part))
    def poll_check(part):
        waitvm(lambda t: t == ("poll", part))
        poll_spin(5, 's57', 16*part)
    PD, PL = E('PD', 24), E('PL', 30)
    avail = {}
    CAT[0] = 'poll'
    for p in range(NP):
        add(fw[p] + PD, [lambda p=p: poll_issue(p)])
        add(fw[p] + PD + PL, [lambda p=p: poll_check(p)])
        avail[p] = fw[p] + PD + PL + 1
    CAT[0] = 'h1'
    HL = E('HL', 40)
    a0, a1 = avail[0], TM0 - HL
    prev = 0
    for n, k2 in enumerate(range(9, 36)):
        d, l = P2[k2]
        for tt in range(2):
            op = []
            if tt == 0:
                if l == LST[partof(l)]:
                    op += [(None, x) for x in (f"s_add_u32 s64, s21, {d}", "s_and_b32 s64, s64, 3", f"s_mul_i32 s64, s64, {9*1024}",
                           "s_add_u32 s64, s64, s48", f"s_add_u32 s64, s64, {4096*(l//4)}", f"s_add_u32 s49, s64, {144*1024}")]
                elif l % 4 == 0:
                    op += [(None, "s_add_u32 s64, s64, 4096"), (None, "s_add_u32 s49, s49, 4096")]
            op.append((("h1", k2), f"buffer_load_dwordx4 {hfrag(k2,tt)}, v26, s[32:35], s{64 if tt == 0 else 49} offen offset:{1024*(l%4)} sc1"))
            s = a0 + (a1 - a0) * (2*n + tt) // 54
            s = min(s, hfirst[k2] - HL)
            s = max(s, avail[partof(l)], prev + 1)
            if hbase(k2) < 144: s = max(s, xlast[hbase(k2) // 8] + 1)
            assert s < hfirst[k2] - 8, (k2, s, hfirst[k2])
            prev = s
            add(s, opfns(op), hfirst[k2] - 4)
    XT, GB = 208, 220
    R = Rec()
    srd(R, 40, 60, SZ_ACT, WS_X1)
    srd(R, 44, 60, 13824, WS_MOD)
    R(f"""
        s_lshl_b32 s22, s23, 1
        s_add_u32 s20, s22, 2
        s_cmp_eq_u32 s23, 3
        s_cselect_b32 s20, 0, s20            ; rot
        s_cselect_b32 s22, 7, s22            ; A0
        s_cselect_b32 s67, 1, 0
        s_mul_i32 s29, s21, 9
        s_add_u32 s29, s29, s22
        s_sub_u32 s29, s29, s67              ; first tile loaded (A0-1 when q==3)
        s_mul_i32 s28, s27, 72
        s_add_u32 s28, s28, s29
        s_lshl_b32 s28, s28, 9
        s_add_u32 s30, s28, {36*512}         ; tt=1
        s_lshl_b32 s29, s29, 6
        s_add_u32 s29, s29, {2880*4}
        s_lshl_b32 s67, s23, 10
        s_add_u32 s59, s56, s67
        v_lshlrev_b32 v240, 3, v1
        v_lshlrev_b32 v241, 4, v7""")
    CAT[0] = 'always'
    add(S2 + 40, [I(x) for x in R.l])
    CAT[0] = 'fin'
    fl = []
    for k in range(3):
        for tt in range(2):
            fl.append([("fin", f"buffer_load_dwordx2 {vr(XT+4*k+2*tt,2)}, v240, s[40:43], s{28+2*tt} offen offset:{512*k} sc1")])
        fl.append([("fin", f"buffer_load_dwordx4 {vr(GB+4*k,4)}, v241, s[44:47], s29 offen offset:{64*k}")])
    spread(fl, range(TM0 - 10, TM0 + 26))
    nk = 36 - KT
    CAT[0] = 'pst'
    for T in range(7):
        pre = [f"s_add_u32 s66, s20, {T}", "s_cmp_ge_u32 s66, 9", "s_cselect_b32 s67, 9, 0", "s_sub_u32 s66, s66, s67",
               "s_lshl_b32 s66, s66, 12", "s_add_u32 s66, s66, s59"]
        a_ = acc2(T, 0)
        cv = [f"v_cvt_pk_bf16_f32 v{a_+k}, v{a_+2*k}, v{a_+2*k+1}" for k in range(4)]
        add(TM0 + nk*(T+1) - 2, [I(x) for x in pre])
        add(TM0 + nk*(T+1) + 2, [I(x) for x in cv] + [lambda a_=a_: vm("pst", f"buffer_store_dwordx4 {vr(a_,4)}, v26, s[12:15], s66 offen sc1")])
    flagged = {}
    def try_flags():
        for part in range(NP):
            if part in flagged: continue
            if sum(t == ("h1st", part) for t in VM.order) == PARTS[part] and VM.complete(lambda t: t == ("h1st", part)):
                vm("flag", f"buffer_store_dword v3, v2, s[36:39], s57 offen offset:{16*part} sc1")
                flagged[part] = cur[0]
    CAT[0] = 'conv'
    for p in range(NP):
        add(fw[p], [lambda p=p: (waitvm(lambda t: t == ("h1st", p)), try_flags())])
    Q.sort(key=lambda e: (e[0], e[1]))
    NOSIDE = E('NOSIDE', 0)
    def pump(slot, k):
        n = 0
        while Q and Q[0][0] <= slot and n < k:
            Q.pop(0)[3](); n += 1
    def flush_deadlines(slot):
        idx = [i for i, e in enumerate(Q) if e[2] <= slot]
        if idx:
            for _ in range(idx[-1] + 1):
                assert Q[0][0] <= slot, (Q[0], slot)
                Q.pop(0)[3]()
    WG = E('WG', 4)
    for _ in range(9): VM.order.insert(0, ("dma", 1))
    VM.done += 9
    A("s_barrier")
    P.stamp()
    if PROF: A("s_waitcnt lgkmcnt(0)")
    for i in range(DIST): read1(i)
    seen = set()
    for i in range(NS):
        cur[0] = i
        asrc, t, bsrc, first = seq[i]
        flush_deadlines(i)
        if bsrc not in seen:
            seen.add(bsrc)
            tag = ("x1s", bsrc[1]) if bsrc[0] == 'x' else ("h1", bsrc[1])
            if bsrc[0] == 'x' or (bsrc[0] == 'h' and bsrc[1] >= 9):
                assert NOSIDE or sum(x == tag for x in VM.order) == 2, tag
                waitvm(lambda x: x == tag)
            try_flags()
        if i % WG == 0:
            waitlg(lambda x: isinstance(x, tuple) and x[0] == "a" and x[1] < i + WG)
        nx = i + DIST
        for tt in range(2):
            d = vr(acc1(t, tt), 4)
            B = xfr(bsrc[1], tt) if bsrc[0] == 'x' else hfrag(bsrc[1], tt) if bsrc[0] == 'h' else vr(SF + 4*tt, 4)
            A(f"v_mfma_f32_16x16x32_bf16 {d}, {aring(i % RING)}, {B}, {'0' if first else d}")
            if nx < NS and tt == 0:
                if nx in bar_at:
                    g = bar_at[nx]
                    gs = [g] if g < 18 - NTM else list(range(g, 18))
                    if g == GBAR: waitvm(lambda x: x == "gf")
                    for gg in gs: assert NOSIDE or sum(x == ("dma", gg) for x in VM.order) == 9, gg
                    waitvm(lambda x: x[0] == "dma" and x[1] in gs)
                    A("s_barrier")
                    if PROF and g % 3 == 0:
                        P.stamp(); A("s_waitcnt lgkmcnt(0)"); LG.done = len(LG.order)
                    try_flags()
                read1(nx)
            backlog = sum(1 for e in Q if e[0] <= i)
            if tt == 0: pump(i, 1 if backlog > E('BL', 10) else 0)
            else: pump(i, 1 if (i + 1) % WG == 0 else 2)
    assert not Q, Q
    assert NOSIDE or len(flagged) == NP
    print("flags at slots", flagged, "avail", avail, "PE", PE, "TM0", TM0, "NS", NS)
    P.stamp()
    srd(A, 16, 62, SZ_ACT)
    A(f"""
    s_lshl_b32 s66, s23, 2
    v_mov_b32 v2, s66
    v_rcp_f32 v242, v{SIG}
    v_rcp_f32 v246, v{SIG+1}
    v_sub_u32 v9, 31, v6
    s_mov_b32 s67, {16*64*1152}
    s_cmp_gt_u32 s27, 32
    s_cselect_b64 vcc, -1, 0
    s_cselect_b32 s67, {(-16*64*1152) & 0xffffffff}, s67
    v_cndmask_b32 v8, v6, v9, vcc
    v_lshlrev_b32 v8, 6, v8
    v_add_u32 v8, s27, v8
    v_mul_u32_u24 v8, 1152, v8
    v_lshl_add_u32 v8, v7, 3, v8
    v_add_u32 v9, s67, v8                 ; tt=1
    s_mul_i32 s64, s21, 288
    s_lshl_b32 s49, s22, 5
    s_add_u32 s64, s64, s49
    s_lshl_b32 s66, s22, 12
    s_add_u32 s66, s66, s56
    s_waitcnt vmcnt(0)
    buffer_store_dword v3, v2, s[36:39], s58 offen sc1
    """)
    P.stamp()
    A(poll_txt(5, 's58', 0))
    A("s_waitcnt vmcnt(0)")
    poll_spin(5, 's58', 0, False)
    P.stamp()
    PR = 32
    for d in (1, 2, 3):
        A(f"""
        s_add_u32 s67, s23, {d}
        s_and_b32 s67, s67, 3
        s_lshl_b32 s67, s67, 10
        s_add_u32 s67, s67, s66
        s_add_u32 s4, s67, 4096
        """)
        for k in range(2):
            A(f"buffer_load_dwordx4 {vr(PR+8*(d-1)+4*k,4)}, v26, s[12:15], {'s67' if k == 0 else 's4'} offen sc1")
    def fin(r, srcs, x, gb, tt, off):
        rc = 242 if tt == 0 else 246
        for hh in range(2):
            rr = r + 2*hh
            for sreg in srcs:
                A(f"v_lshlrev_b32 v10, 16, v{sreg+hh}")
                A(f"v_and_b32 v11, s6, v{sreg+hh}")
                A(f"v_pk_add_f32 {vr(rr,2)}, {vr(rr,2)}, v[10:11]")
            A(f"v_pk_mul_f32 {vr(rr,2)}, {vr(rr,2)}, v[{rc}:{rc+1}] op_sel_hi:[1,0]")
            A(f"v_lshlrev_b32 v10, 16, v{x+hh}")
            A(f"v_and_b32 v11, s6, v{x+hh}")
            A(f"v_pk_fma_f32 {vr(rr,2)}, {vr(rr,2)}, {vr(gb+2*hh,2)}, v[10:11]")
            A(f"v_cvt_pk_bf16_f32 v{x+hh}, v{rr}, v{rr+1}")
        A(f"buffer_store_dwordx2 {vr(x,2)}, v{8+tt}, s[16:19], s64 offen offset:{off}")
    A("s_cmp_eq_u32 s23, 3")
    A("s_cbranch_scc1 ffn_q3")
    A("s_waitcnt vmcnt(0)")
    for k in range(2):
        for tt in range(2):
            fin(acc2(7+k, tt), [PR+8*d+4*k+2*tt for d in range(3)], XT+4*k+2*tt, GB+4*k, tt, 32*k)
    A("s_branch ffn_end")
    A("ffn_q3:")
    A("s_sub_u32 s67, s66, 4096")
    for s_ in range(4):
        A(f"buffer_load_dwordx4 {vr(56+4*s_,4)}, v26, s[12:15], s67 offen offset:{1024*s_} sc1")
    A("s_sub_u32 s64, s64, 32")
    for k in range(8): A(f"v_mov_b32 v{72+k}, 0")
    A("s_waitcnt vmcnt(4)")
    for k in range(2):
        for tt in range(2):
            fin(acc2(7+k, tt), [PR+8*d+4*k+2*tt for d in range(3)], XT+4*(k+1)+2*tt, GB+4*(k+1), tt, 32*(k+1))
    A("s_waitcnt vmcnt(4)")
    for tt in range(2):
        fin(72+4*tt, [56+4*s_+2*tt for s_ in range(4)], XT+2*tt, GB, tt, 0)
    A("ffn_end:")
    if PROF:
        A("s_waitcnt vmcnt(0)")
        P.stamp(); P.rt()
        P.flush(60, 24, 40, 8)
    A("ffn_done:\ns_endpgm")
```

```python
from common import *

KA_NLN = 192
KA_NMOD = 54
KA_NPK = 54
KA_W0 = 304
KA_GRID = KA_W0 + (288 if int(os.environ.get('W2KA', '0')) else 144)
KA_LDS = 36864

def gen_ka(A, name="ka_kernel"):
    A.raw(kernel_header(name))
    P = Prof(A, 56, 0)
    A(f"""
    s_cmp_ge_u32 s2, {KA_GRID}
    s_cbranch_scc1 ka_done
    """)
    dbg_start(A, 90)
    P.rt()
    P.stamp()
    if PROF:
        A("v_lshrrev_b32 v2, 6, v0")
        A("s_nop 1")
        A("v_readfirstlane_b32 s52, v2")
    A(f"""
    s_cmp_ge_u32 s2, {KA_W0}
    s_cbranch_scc1 ka_wpack
    s_cmp_ge_u32 s2, {KA_NLN + KA_NMOD + KA_NPK}
    s_cbranch_scc1 ka_done
    s_cmp_ge_u32 s2, {KA_NLN + KA_NMOD}
    s_cbranch_scc1 ka_pack
    s_cmp_ge_u32 s2, {KA_NLN}
    s_cbranch_scc1 ka_mod
    s_load_dwordx4 s[4:7], s[0:1], {KA_X}
    s_load_dwordx2 s[8:9], s[0:1], {KA_SIM}
    s_load_dwordx2 s[10:11], s[0:1], {KA_WS}
    s_and_b32 s20, s2, 7
    s_lshr_b32 s21, s2, 3
    s_mul_i32 s23, s21, 43
    s_lshr_b32 s23, s23, 8            ; idx/6
    s_lshl_b32 s20, s20, 2
    s_add_u32 s20, s20, s23           ; s2v
    s_mul_i32 s23, s23, 6
    s_sub_u32 s21, s21, s23           ; cg
    s_mov_b32 s22, {8*32*1152}
    v_and_b32 v1, 63, v0              ; lane
    v_lshrrev_b32 v2, 6, v0           ; wave
    v_lshrrev_b32 v3, 3, v1           ; r
    v_and_b32 v4, 7, v1               ; c
    v_lshl_add_u32 v5, v2, 4, v3      ; s1 = 16w + r
    v_lshlrev_b32 v6, 5, v5
    v_add_u32 v6, s20, v6
    v_mul_u32_u24 v6, 1152, v6
    s_mul_i32 s24, s21, 12
    v_add_u32 v7, s24, v4             ; c + 12 cg
    """)
    for i in range(9):
        if i: A(f"v_add_u32 v7, 8, v7")
        A(f"v_subrev_u32 v17, 72, v7")
        A(f"v_min_u32 v17, v17, v7")
        A(f"v_lshl_add_u32 v{8+i}, v17, 4, v6")
    A("s_waitcnt lgkmcnt(0)")
    srd(A, 12, 4, SZ_ACT)
    P.stamp()
    X0, X1 = 32, 68
    for i in range(9):
        A(f"buffer_load_dwordx4 {vr(X0+4*i,4)}, v{8+i}, s[12:15], 0 offen")
    for i in range(9):
        A(f"buffer_load_dwordx4 {vr(X1+4*i,4)}, v{8+i}, s[12:15], s22 offen")
    A(f"""
    v_and_b32 v18, 15, v1
    v_lshrrev_b32 v19, 4, v1          ; g
    v_lshl_add_u32 v20, v2, 4, v18    ; j
    v_cmp_lt_u32 vcc, 32, v20         ; j > 32 -> imag
    v_subrev_u32 v21, 32, v20
    v_mov_b32 v22, s6
    v_mov_b32 v23, s7
    v_mov_b32 v24, s8
    v_mov_b32 v25, s9
    v_cndmask_b32 v21, v20, v21, vcc
    v_cndmask_b32 v22, v22, v24, vcc
    v_cndmask_b32 v23, v23, v25, vcc
    v_lshlrev_b32 v21, 17, v21        ; *32*4096
    v_lshl_add_u32 v21, v19, 4, v21   ; + 16 g
    v_add_co_u32 v22, vcc, v22, v21
    v_addc_co_u32 v23, vcc, 0, v23, vcc
    global_load_dwordx4 v[104:107], v[22:23], off
    global_load_dwordx4 v[108:111], v[22:23], off offset:64
    """)
    srd(A, 16, 10, SZ_ACT, WS_Z)
    A("s_mov_b32 s25, 0x3f803f80")
    for r in range(4): A(f"v_mov_b32 v{24+r}, 0")
    for p, X in enumerate((X0, X1)):
        for i in range(9):
            A(f"s_waitcnt vmcnt({2 + 17 - (9*p + i)})")
            for k in range(4):
                A(f"v_dot2_f32_bf16 v{24+2*p}, v{X+4*i+k}, s25, v{24+2*p}")
                A(f"v_dot2_f32_bf16 v{25+2*p}, v{X+4*i+k}, v{X+4*i+k}, v{25+2*p}")
    P.stamp()
    for mode in ("quad_perm:[1,0,3,2]", "quad_perm:[2,3,0,1]", "row_half_mirror"):
        for r in range(4):
            A(f"v_add_f32_dpp v{24+r}, v{24+r}, v{24+r} {mode} row_mask:0xf bank_mask:0xf")
    inv = "0x3ae38e39"
    import struct
    inv = hex(struct.unpack("<I", struct.pack("<f", 1.0/576))[0])
    eps = hex(struct.unpack("<I", struct.pack("<f", 1e-5))[0])
    for p in range(2):
        s_, q_ = 24+2*p, 25+2*p
        rs, nb = 28+2*p, 112+2*p
        A(f"v_mul_f32 v{s_}, {inv}, v{s_}")
        A(f"v_mul_f32 v{q_}, {inv}, v{q_}")
        A(f"v_fma_f32 v{q_}, -v{s_}, v{s_}, v{q_}")
        A(f"v_max_f32 v{q_}, 0, v{q_}")
        A(f"v_add_f32 v{q_}, {eps}, v{q_}")
        A(f"v_rsq_f32 v{rs}, v{q_}")
        A(f"v_mul_f32 v{nb}, v{s_}, v{rs}")
        A(f"v_sub_f32 v{nb}, 0, v{nb}")
    A("v_mul_u32_u24 v8, 192, v5")
    A("v_lshl_add_u32 v8, v4, 4, v8")
    A("s_mov_b32 s26, 0xffff0000")
    for p, X in enumerate((X0, X1)):
        rs, nb = 28+2*p, 112+2*p
        for i in range(2):
            for k in range(4):
                src = X+4*i+k
                A(f"v_lshlrev_b32 v116, 16, v{src}")
                A(f"v_and_b32 v117, s26, v{src}")
                A(f"v_pk_fma_f32 v[116:117], v[116:117], v[{rs}:{rs+1}], v[{nb}:{nb+1}] op_sel_hi:[1,0,0]")
                A(f"v_cvt_pk_bf16_f32 v{src}, v116, v117")
    A(f"ds_write_b128 v8, {vr(X0,4)}")
    A(f"ds_write_b128 v8, {vr(X1,4)} offset:{8*192}")
    A("v_cmp_gt_u32 vcc, 4, v4")
    A("s_and_saveexec_b64 s[28:29], vcc")
    A(f"ds_write_b128 v8, {vr(X0+4,4)} offset:128")
    A(f"ds_write_b128 v8, {vr(X1+4,4)} offset:{8*192+128}")
    A("s_mov_b64 exec, s[28:29]")
    A(f"""
    v_bfe_u32 v9, v1, 2, 2            ; r'
    v_lshl_add_u32 v9, v19, 3, v9
    v_mul_u32_u24 v9, 192, v9
    v_and_b32 v10, 1, v1
    v_lshl_add_u32 v9, v10, 5, v9
    v_bfe_u32 v10, v1, 1, 1
    v_lshl_add_u32 v9, v10, 3, v9
    v_lshlrev_b32 v11, 5, v20
    v_add_u32 v11, s20, v11
    v_mul_u32_u24 v11, 1152, v11
    s_mul_i32 s27, s21, 12
    s_and_b32 s30, s20, 6
    v_add_u32 v12, s27, v19
    v_add_u32 v13, 4, v12
    v_add_u32 v14, 8, v12
    v_xor_b32 v12, s30, v12
    v_xor_b32 v13, s30, v13
    v_xor_b32 v14, s30, v14
    v_lshl_add_u32 v12, v12, 4, v11
    v_lshl_add_u32 v13, v13, 4, v11
    v_lshl_add_u32 v14, v14, 4, v11
    s_waitcnt lgkmcnt(0)
    s_barrier
    """)
    P.stamp()
    AF = 32
    ACC = 80
    n = 0
    for ks in range(2):
        for T in range(6):
            for h in range(2):
                off = (32*ks + 4*h) * 192 + 64*(T >> 1) + 16*(T & 1)
                A(f"ds_read_b64_tr_b16 {vr(AF+4*(6*ks+T)+2*h,2)}, v9 offset:{off}")
    A("s_waitcnt vmcnt(0)")
    for ks in range(2):
        for T in range(6):
            idx = 6*ks+T
            A(f"s_waitcnt lgkmcnt({min(15, 2*(11-idx))})")
            c = "0" if ks == 0 else vr(ACC+4*T,4)
            A(f"v_mfma_f32_16x16x32_bf16 {vr(ACC+4*T,4)}, {vr(AF+4*idx,4)}, {vr(104+4*ks,4)}, {c}")
    for b in range(3):
        a0 = ACC + 8*b
        o = 32 + 4*b
        for k in range(4):
            A(f"v_cvt_pk_bf16_f32 v{o+k}, v{a0+2*k}, v{a0+2*k+1}")
        A(f"buffer_store_dwordx4 {vr(o,4)}, v{12+b}, s[16:19], 0 offen")
    if PROF:
        A("s_waitcnt vmcnt(0)")
        P.stamp()
        P.rt()
    P.flush(10, 52, 44, 8)
    dbg_mark(A, 90, 0, 1, 80, 120, True)
    A("s_endpgm")
    P.n = 2

    A.label("ka_mod")
    A(f"""
    s_load_dwordx4 s[4:7], s[0:1], {KA_C}      ; c, w_mod
    s_load_dwordx2 s[10:11], s[0:1], {KA_WS}
    s_sub_u32 s20, s2, {KA_NLN}                ; m
    v_and_b32 v1, 63, v0
    v_lshrrev_b32 v2, 6, v0
    v_lshrrev_b32 v3, 3, v1                    ; r
    v_and_b32 v4, 7, v1                        ; cc
    v_mul_u32_u24 v5, 144, v2
    v_add_u32 v5, v5, v3                       ; 144w + r
    v_mul_u32_u24 v6, 6912, v5
    v_lshl_add_u32 v6, v4, 4, v6
    v_lshlrev_b32 v7, 1, v0
    s_lshl_b32 s21, s20, 7
    s_waitcnt lgkmcnt(0)
    """)
    srd(A, 12, 4, 1152)
    srd(A, 16, 6, 576*6912)
    for k in range(3):
        A(f"buffer_load_ushort v{8+k}, v7, s[12:15], 0 offen offset:{512*k}")
    W = 32
    for i in range(18):
        A(f"buffer_load_dwordx4 {vr(W+4*i,4)}, v6, s[16:19], s21 offen")
        if i < 17: A(f"s_add_u32 s21, s21, {8*6912}")
    srd(A, 24, 10, 0x8000, WS_MOD)
    A("s_waitcnt vmcnt(18)")
    A("v_lshlrev_b32 v7, 2, v0")
    log2e = "0x3fb8aa3b"
    for k in range(3):
        A(f"""
        v_lshlrev_b32 v{8+k}, 16, v{8+k}
        v_mul_f32 v11, {log2e}, v{8+k}
        v_exp_f32 v11, -v11
        v_add_f32 v11, 1.0, v11
        v_rcp_f32 v11, v11
        v_mul_f32 v11, v11, v{8+k}
        v_cvt_pk_bf16_f32 v11, v11, v11
        v_lshlrev_b32 v11, 16, v11
        ds_write_b32 v7, v11 offset:{1024*k}
        """)
    A("""
    v_lshlrev_b32 v5, 2, v5
    s_waitcnt lgkmcnt(0)
    s_barrier
    """)
    SV = 104
    for i in range(18):
        A(f"ds_read_b32 v{SV+i}, v5 offset:{32*i}")
    for k in range(8): A(f"v_mov_b32 v{16+k}, 0")
    A("s_mov_b32 s22, 0xffff0000")
    A("s_waitcnt lgkmcnt(0)")
    for i in range(18):
        A(f"s_waitcnt vmcnt({17-i})")
        for k in range(4):
            A(f"v_lshlrev_b32 v12, 16, v{W+4*i+k}")
            A(f"v_and_b32 v13, s22, v{W+4*i+k}")
            A(f"v_fmac_f32 v{16+2*k}, v12, v{SV+i}")
            A(f"v_fmac_f32 v{17+2*k}, v13, v{SV+i}")
    P.stamp()
    P.stamp()
    P.stamp()
    P.stamp()
    P.rt()
    P.flush(10, 52, 44, 8)
    if PROF: A("s_mov_b64 exec, -1")
    dbg_mark(A, 90, 0, 3, 80, 120)
    A(f"""
    v_lshrrev_b32 v12, 3, v0                   ; w*8 + r
    v_lshlrev_b32 v12, 8, v12
    v_lshl_add_u32 v12, v4, 5, v12
    ds_write_b128 v12, v[16:19] offset:3072
    ds_write_b128 v12, v[20:23] offset:3088
    s_waitcnt lgkmcnt(0)
    s_barrier
    v_cmp_gt_u32 vcc, 64, v0
    s_and_saveexec_b64 s[28:29], vcc
    s_cbranch_execz ka_done
    """)
    for i in range(32):
        A(f"ds_read_b32 v{W+i}, v7 offset:{3072+256*i}")
    A("s_waitcnt lgkmcnt(0)")
    st = 16
    while st >= 1:
        for i in range(st):
            A(f"v_add_f32 v{W+i}, v{W+i}, v{W+i+st}")
        st //= 2
    A(f"""
    v_cvt_pk_bf16_f32 v{W}, v{W}, v{W}
    v_lshlrev_b32 v{W}, 16, v{W}
    s_mul_i32 s23, s20, 57
    s_lshr_b32 s23, s23, 9                     ; chunk = m/9
    s_cmp_eq_u32 s23, 1
    s_cbranch_scc1 ka_mod_plus1
    s_cmp_eq_u32 s23, 4
    s_cbranch_scc0 ka_mod_store
    ka_mod_plus1:
    v_add_f32 v{W}, 1.0, v{W}
    v_cvt_pk_bf16_f32 v{W}, v{W}, v{W}
    v_lshlrev_b32 v{W}, 16, v{W}
    ka_mod_store:
    s_lshl_b32 s21, s20, 8
    buffer_store_dword v{W}, v7, s[24:27], s21 offen
    ; bf16 copy CSB[row][col%576]: row 0 = 1+cb (chunk 4), row 1 = sb (chunk 3)
    s_sub_u32 s30, s23, 3
    s_cmp_gt_u32 s30, 1
    s_cbranch_scc1 ka_done
    s_mul_i32 s31, s23, 9
    s_sub_u32 s31, s20, s31                    ; m % 9
    s_lshl_b32 s31, s31, 7
    s_xor_b32 s30, s30, 1
    s_mul_i32 s30, s30, 1152
    s_add_u32 s31, s31, s30
    s_add_u32 s24, s10, {WS_CSB}
    s_addc_u32 s25, s11, 0
    s_and_b32 s25, s25, 0xffff
    v_lshlrev_b32 v7, 1, v0
    buffer_store_short_d16_hi v{W}, v7, s[24:27], s31 offen
    ka_done:
    s_endpgm
    """)
    A.label("ka_pack")
    A(f"""
    s_load_dwordx4 s[4:7], s[0:1], {KA_HRE}
    s_load_dwordx2 s[10:11], s[0:1], {KA_WS}
    s_load_dwordx4 s[36:39], s[0:1], {KA_SRE}
    v_and_b32 v1, 63, v0
    v_lshrrev_b32 v2, 6, v0
    s_nop 0
    v_readfirstlane_b32 s24, v2
    s_sub_u32 s20, s2, {KA_NLN + KA_NMOD}
    s_lshl_b32 s21, s20, 2
    s_add_u32 s21, s21, s24                    ; u
    s_mul_i32 s22, s21, 171
    s_lshr_b32 s22, s22, 9                     ; u/3
    s_mul_i32 s23, s22, 3
    s_sub_u32 s23, s21, s23                    ; u%3
    s_cmp_ge_u32 s22, 36
    s_cselect_b32 s25, 36, 0
    s_sub_u32 s25, s22, s25                    ; eps
    v_and_b32 v3, 15, v1
    v_lshrrev_b32 v4, 4, v1
    v_mul_u32_u24 v3, 1152, v3
    v_lshl_add_u32 v3, v4, 4, v3
    s_mul_i32 s25, s25, {16*1152}
    s_mul_i32 s26, s23, 384
    s_add_u32 s25, s25, s26
    s_mul_i32 s27, s21, 6144
    s_add_u32 s28, s27, 4096
    v_lshlrev_b32 v5, 4, v1
    s_waitcnt lgkmcnt(0)
    s_cmp_ge_u32 s22, 36
    s_cselect_b32 s12, s6, s4
    s_cselect_b32 s13, s7, s5
    s_and_b32 s13, s13, 0xffff
    s_mov_b32 s14, {D*D*2}
    s_mov_b32 s15, 0x20000
    """)
    for k in range(6):
        A(f"buffer_load_dwordx4 {vr(8+4*k,4)}, v3, s[12:15], s25 offen offset:{64*k}")
    A(f"""
    s_bitcmp1_b32 s21, 1
    s_cselect_b32 s40, s38, s36
    s_cselect_b32 s41, s39, s37
    s_and_b32 s41, s41, 0xffff
    s_cmp_lt_u32 s21, 132
    s_cselect_b32 s42, {S*S*2}, 0
    s_mov_b32 s43, 0x20000
    s_lshr_b32 s44, s21, 2
    s_and_b32 s45, s21, 1
    s_lshl_b32 s45, s45, 10
    s_add_u32 s44, s44, s45
    s_lshl_b32 s44, s44, 12
    v_and_b32 v6, 15, v1
    v_lshlrev_b32 v6, 18, v6
    v_lshl_add_u32 v6, v4, 3, v6
    buffer_load_dwordx2 v[36:37], v6, s[40:43], s44 offen
    buffer_load_dwordx2 v[38:39], v6, s[40:43], s44 offen offset:32
    """)
    srd(A, 48, 10, SZ_F2P, WS_F2P)
    srd(A, 16, 10, SZ_WDP, WS_WDP)
    srd(A, 32, 10, SZ_FLB, WS_FLB)
    A(f"""
    v_mov_b32 v32, 0
    v_mov_b32 v33, 0
    v_mov_b32 v34, 0
    v_mov_b32 v35, 0
    s_lshl_b32 s29, s21, 10
    buffer_store_dwordx4 v[32:35], v5, s[32:35], s29 offen
    """)
    A("s_waitcnt vmcnt(3)")
    for k in range(6):
        so = "s27" if k < 4 else "s28"
        A(f"buffer_store_dwordx4 {vr(8+4*k,4)}, v5, s[16:19], {so} offen offset:{1024*(k%4)}")
    A("s_waitcnt vmcnt(7)")
    A("buffer_store_dwordx4 v[36:39], v5, s[48:51], s29 offen")
    A("s_endpgm")
    A.label("ka_wpack")
    A(f"""
    s_load_dwordx4 s[4:7], s[0:1], {KA_W1}
    s_load_dwordx2 s[10:11], s[0:1], {KA_WS}
    v_and_b32 v1, 63, v0
    v_lshrrev_b32 v2, 6, v0
    s_nop 0
    v_readfirstlane_b32 s24, v2
    s_sub_u32 s20, s2, {KA_W0}
    s_and_b32 s21, s20, 7                      ; x
    s_lshr_b32 s22, s20, 3                     ; v
    s_lshr_b32 s25, s21, 1                     ; q
    s_and_b32 s26, s21, 1                      ; jh
    v_lshlrev_b32 v20, 4, v1
    v_lshrrev_b32 v21, 2, v1
    v_and_b32 v22, 3, v1
    s_mul_i32 s27, s24, 9216
    """)
    if int(os.environ.get('CPF', '1')):
        A(f"""
        s_lshl_b32 s46, s22, 2
        s_add_u32 s46, s46, s24
        s_lshl_b32 s46, s46, 10
        s_cmp_ge_u32 s46, code_end-kbf_kernel
        s_cbranch_scc1 ka_nopf
        s_getpc_b64 s[44:45]
        ka_pc:
        s_add_u32 s44, s44, kbf_kernel-ka_pc
        s_addc_u32 s45, s45, 0
        v_add_u32 v100, s46, v20
        global_load_dwordx4 v[112:115], v100, s[44:45]
        ka_nopf:
        """)
    A(f"""
    s_cmp_ge_u32 s22, 18
    s_cbranch_scc1 ka_wp2
    """)
    def dma_offs(cpr, mul, pitch):
        for n in range(9):
            A(f"""
            v_add_u32 v3, {64*n}, v1
            v_mul_u32_u24 v4, {mul}, v3
            v_lshrrev_b32 v4, 16, v4
            v_mul_u32_u24 v5, {cpr}, v4
            v_sub_u32 v3, v3, v5
            v_lshlrev_b32 v3, 4, v3
            v_mul_u32_u24 v5, {pitch}, v4
            v_add_u32 v{8+n}, v3, v5
            """)
    dma_offs(72, 911, 9216)
    A(f"""
    s_lshl_b32 s28, s22, 5
    s_lshl_b32 s29, s24, 3
    s_add_u32 s28, s28, s29
    s_mul_i32 s28, s28, 9216
    s_mul_i32 s29, s21, 1152
    s_add_u32 s28, s28, s29
    v_mul_u32_u24 v23, 1152, v21
    v_lshl_add_u32 v23, v22, 3, v23
    s_mul_i32 s29, s24, 288
    v_add_u32 v23, s29, v23
    v_add_u32 v24, {16*1152}, v23
    s_lshl_b32 s30, s21, 1
    s_lshr_b32 s31, s24, 1
    s_add_u32 s30, s30, s31                    ; fb
    s_and_b32 s31, s30, 3
    s_mul_i32 s31, s31, 9
    s_lshr_b32 s31, s31, 1
    s_sub_u32 s22, s22, s31
    s_cselect_b32 s31, 18, 0
    s_add_u32 s22, s22, s31
    s_mul_i32 s30, s30, {36*9216}
    s_and_b32 s38, s24, 1
    s_mul_i32 s38, s38, 9                      ; t0
    s_mov_b32 s39, {PST[1]}                    ; thr1
    s_mov_b32 s42, {PST[2]}                    ; thr2
    s_mul_i32 s40, s22, {PARTS[0]}             ; c0
    s_mul_i32 s41, s22, {PARTS[1]}
    s_add_u32 s41, s41, {18*PST[1] - PST[1]}   ; c1
    s_mul_i32 s43, s22, {PARTS[2]}
    s_add_u32 s43, s43, {18*PST[2] - PST[2]}   ; c2
    s_waitcnt lgkmcnt(0)
    s_mov_b32 s12, s4
    s_mov_b32 s13, s5
    s_branch ka_wp3
    ka_wp2:
    """)
    dma_offs(36, 1821, 1152)
    A(f"""
    s_sub_u32 s22, s22, 18
    s_mul_i32 s28, s25, 1152
    s_lshl_b32 s29, s22, 6
    s_add_u32 s28, s28, s29
    s_lshl_b32 s29, s24, 4
    s_add_u32 s28, s28, s29
    s_mul_i32 s28, s28, 1152
    s_mul_i32 s29, s26, 576
    s_add_u32 s28, s28, s29
    v_mul_u32_u24 v23, 576, v21
    v_lshl_add_u32 v23, v22, 3, v23
    s_lshr_b32 s31, s24, 1
    s_mul_i32 s29, s31, {32*576}
    s_and_b32 s32, s24, 1
    s_mul_i32 s33, s32, 288
    s_add_u32 s29, s29, s33
    v_add_u32 v23, s29, v23
    v_add_u32 v24, {16*576}, v23
    s_lshl_b32 s30, s21, 1
    s_add_u32 s30, s30, s32                    ; q*4 + j
    s_mul_i32 s30, s30, {36*9216}
    s_add_u32 s30, s30, {SZ_WP}
    s_lshl_b32 s33, s22, 1
    s_add_u32 s33, s33, s31                    ; kstep
    s_mul_i32 s33, s33, 9
    s_lshl_b32 s39, s25, 1
    s_add_u32 s39, s39, 2
    s_cmp_eq_u32 s25, 3
    s_cselect_b32 s39, 0, s39
    s_mov_b32 s38, 0
    s_sub_u32 s41, s33, s39                    ; cB
    s_add_u32 s40, s41, 9                      ; cA
    s_mov_b32 s42, 100
    s_mov_b32 s43, 0
    s_waitcnt lgkmcnt(0)
    s_mov_b32 s12, s6
    s_mov_b32 s13, s7
    ka_wp3:
    s_and_b32 s13, s13, 0xffff
    s_mov_b32 s14, {D*F*2}
    s_mov_b32 s15, 0x20000
    """)
    P.n = 2; P.slot = 4
    P.stamp()
    for n in range(9):
        A(f"s_add_u32 m0, s27, {1024*n}")
        A(f"buffer_load_dwordx4 v{8+n}, s[12:15], s28 offen lds")
    srd(A, 16, 10, 2*SZ_WP, WS_W1P)
    NPF = 9 if int(os.environ.get('W2PF', '0')) else 0
    if NPF:
        srd(A, 48, 6, D*F*2)
        A("s_lshl_b32 s52, s20, 2\ns_add_u32 s52, s52, s24\ns_mul_i32 s52, s52, 9216")
        for n in range(9):
            A(f"buffer_load_dwordx4 {vr(72+4*n,4)}, v20, s[48:51], s52 offen offset:{1024*(n%4)}")
            if n % 4 == 3: A("s_add_u32 s52, s52, 4096")
    A(f"s_waitcnt vmcnt({NPF})")
    A("s_barrier")
    P.stamp()
    if PROF: A("s_waitcnt lgkmcnt(0)")
    for T in range(9):
        A(f"ds_read_b64_tr_b16 {vr(32+4*T,2)}, v23 offset:{32*T}")
        A(f"ds_read_b64_tr_b16 {vr(34+4*T,2)}, v24 offset:{32*T}")
    for T in range(9):
        A(f"s_add_u32 s36, s38, {T}")
        A(f"s_cmp_lt_u32 s36, s39")
        A(f"s_cselect_b32 s37, s40, s41")
        A(f"s_cmp_lt_u32 s36, s42")
        A(f"s_cselect_b32 s37, s37, s43")
        A(f"s_add_u32 s36, s36, s37")
        A(f"s_lshl_b32 s36, s36, 10")
        A(f"s_add_u32 s36, s36, s30")
        A(f"s_waitcnt lgkmcnt({min(15, 16-2*T)})")
        A(f"buffer_store_dwordx4 {vr(32+4*T,4)}, v20, s[16:19], s36 offen")
    P.stamp()
    if PROF:
        A("s_waitcnt vmcnt(0)")
        P.stamp(); P.rt()
        A("s_sub_u32 s2, s2, 304")
        P.flush(10, 24, 44, 8)
    A("s_endpgm")
    return dict(name=name, vgpr=128, sgpr=100, accum=128, grid=KA_GRID, block=256, lds=KA_LDS)
```

```python
from common import *
import ffn
from ffn import E, STG

KZ = 2 * STG
KB_MODL = KZ + 73728
KBF_LDS = KB_MODL + 14336

def w1_prefetch(A, sw, stmp, ssrd):
    srd(A, ssrd, 14, 2*SZ_WP, WS_W1P)
    A(f"""
    s_and_b32 s{stmp}, s2, 6
    s_lshl_b32 s{stmp}, s{stmp}, 1
    s_bfe_u32 s{stmp+1}, s2, 0x20003
    s_add_u32 s{stmp}, s{stmp}, s{stmp+1}          ; fb
    s_mul_i32 s{stmp}, s{stmp}, {36*9216}
    s_mul_i32 s{stmp+1}, s{sw}, 9216
    s_add_u32 s{stmp}, s{stmp}, s{stmp+1}
    v_lshlrev_b32 v3, 4, v1
    """)
    for g in range(2):
        for n in range(9):
            if n % 4 == 0:
                A(f"s_add_u32 s{stmp+2}, s{stmp}, {g*STG + 1024*n}")
                A(f"s_add_u32 m0, s{stmp+1}, {g*STG + 1024*n}")
            A(f"buffer_load_dwordx4 v3, s[{ssrd}:{ssrd+3}], s{stmp+2} offen offset:{1024*(n%4)} lds")

def l2_prefetch(A, vdst):
    if not E('L2PF', 0): return 0
    srd(A, 8, 14, SZ_WDP, WS_WDP)
    A(f"""
    s_lshl_b32 s12, s21, 2
    s_add_u32 s12, s12, s24
    s_mul_i32 s12, s12, 10368
    """)
    for n in range(11):
        off = 1024*(n % 4) if n < 10 else 1152
        A(f"buffer_load_dwordx4 {vr(vdst + 4*n, 4)}, v15, s[8:11], s12 offen offset:{off}")
        if n in (3, 7): A("s_add_u32 s12, s12, 4096")
    return 11

def gen_kbf(A, name="kbf_kernel"):
    A.raw(kernel_header(name))
    P = Prof(A, 84, 1)
    A(f"""
    s_cmp_ge_u32 s2, 256
    s_cbranch_scc1 ffn_done
    """)
    P.rt()
    P.stamp()
    A(f"""
    s_load_dwordx2 s[4:5], s[0:1], {KA_X}
    s_load_dwordx2 s[14:15], s[0:1], {KA_WS}
    s_load_dwordx2 s[18:19], s[0:1], {KA_W2}
    s_and_b32 s20, s2, 7                          ; xcd
    s_lshr_b32 s21, s2, 3                         ; idx
    s_mul_i32 s22, s21, 43
    s_lshr_b32 s22, s22, 8                        ; idx/6
    s_mul_i32 s23, s22, 6
    s_sub_u32 s23, s21, s23                       ; et
    s_lshl_b32 s22, s22, 3
    s_add_u32 s22, s22, s20                       ; class
    v_and_b32 v1, 63, v0
    v_lshrrev_b32 v2, 6, v0
    v_lshlrev_b32 v15, 4, v1
    v_readfirstlane_b32 s24, v2                   ; wave
    s_cmp_gt_u32 s22, 32
    s_cbranch_scc1 kb_side
    s_lshr_b32 s25, s24, 1                        ; p
    s_and_b32 s26, s24, 1                         ; dh
    s_and_b32 s27, s22, 31
    s_cmp_lg_u32 s27, 0
    s_cselect_b32 s27, -1, 0
    s_and_b32 s28, s27, 32
    s_add_u32 s28, s28, s22                       ; j_im
    s_cmp_lg_u32 s25, 0
    s_cselect_b32 s29, s28, s22
    s_mul_i32 s29, s29, 36864
    s_mul_i32 s30, s26, 18432
    s_add_u32 s29, s29, s30                       ; Z soffset
    s_mul_i32 s31, s24, 18432
    s_add_u32 s31, s31, {KZ}
    s_waitcnt lgkmcnt(0)
    """)
    VM = Cnt(63)
    def vm(tag, txt): A(txt); VM.issue(tag)
    def waitvm(pred):
        n = VM.need(pred)
        if n is not None: A(f"s_waitcnt vmcnt({n})")
    for _ in range(l2_prefetch(A, 160)): VM.issue("pf")
    srd(A, 32, 14, SZ_ACT, WS_Z)
    A("s_mul_i32 s40, s23, 3072")
    for c in range(6):
        A("s_add_u32 s41, s29, s40")
        A("s_add_u32 m0, s31, s40")
        for n in range(3):
            vm("z", f"buffer_load_dwordx4 v15, s[32:35], s41 offen offset:{1024*n} lds")
        if c < 5:
            A("s_add_u32 s40, s40, 3072")
            A("s_cmp_eq_u32 s40, 18432")
            A("s_cselect_b32 s40, 0, s40")
    srd(A, 44, 14, SZ_F2P, WS_F2P)
    B1, B2 = 20, 28
    A(f"""
    s_lshl_b32 s40, s22, 12
    s_lshl_b32 s41, s25, 11
    s_add_u32 s42, s40, s41                       ; B1: m = p
    s_xor_b32 s41, s41, 2048
    s_add_u32 s43, s40, s41                       ; B2: m = 1-p
    """)
    for tt in range(2):
        vm("z", f"buffer_load_dwordx4 {vr(B1+4*tt,4)}, v15, s[44:47], s42 offen offset:{1024*tt}")
        vm("z", f"buffer_load_dwordx4 {vr(B2+4*tt,4)}, v15, s[44:47], s43 offen offset:{1024*tt}")
    srd(A, 36, 14, 13824, WS_MOD)
    A(f"""
    s_mul_i32 s40, s24, 3424
    s_add_u32 m0, s40, {KB_MODL}
    """)
    for k in range(4):
        vm("z", f"buffer_load_dwordx4 v15, s[36:39], s40 offen offset:{1024*k if k < 3 else 2528} lds")
    srd(A, 52, 14, SZ_WDP if not E('NOWD', 0) else 0, WS_WDP)
    A(f"""
    v_add_u32 v16, 4096, v15
    v_add_u32 v17, 8192, v15
    s_mul_i32 s62, s25, 36
    s_mul_i32 s63, s23, 6
    s_add_u32 s62, s62, s63
    s_mul_i32 s62, s62, 18
    s_mul_i32 s63, s26, 9
    s_add_u32 s62, s62, s63
    s_lshl_b32 s62, s62, 10
    """)
    for Et in range(6):
        A(f"s_add_u32 s{56+Et}, s62, {18*1024*Et}")
    def wd(a):
        for Et in range(6):
            vm(("wd", a), f"buffer_load_dwordx4 {vr(4*(6*a+Et),4,'a')}, v{15+a//4}, s[52:55], s{56+Et} offen offset:{1024*(a%4)}")
    WPRE = E('WPRE', 1)
    for a in range(WPRE): wd(a)
    A(f"""
    v_and_b32 v4, 15, v1                          ; tok
    v_lshrrev_b32 v5, 4, v1                       ; g
    v_lshlrev_b32 v6, 6, v4
    v_add_u32 v6, s22, v6                         ; t (tt=0)
    s_cmp_lg_u32 s25, 0
    s_cselect_b32 s42, 0x80008000, 0              ; m1
    v_bfe_u32 v12, v1, 2, 2                       ; r'
    v_lshl_add_u32 v12, v5, 2, v12                ; row = 4g + r'
    v_and_b32 v13, 6, v12
    v_lshlrev_b32 v13, 4, v13                     ; F = 32*((row>>1)&3)
    v_mul_u32_u24 v12, 1152, v12
    v_and_b32 v14, 3, v1
    v_lshl_add_u32 v12, v14, 3, v12               ; + 8c'
    s_lshl_b32 s64, s26, 9                        ; 512 dh
    s_add_u32 s64, s64, {KZ}
    v_add_u32 v12, s64, v12
    s_lshl_b32 s65, s26, 1                        ; 2 dh
    """)
    for k in range(4):
        A(f"""
        s_add_u32 s66, s65, {k}
        s_lshr_b32 s67, s66, 2
        s_lshl_b32 s67, s67, 7
        s_and_b32 s66, s66, 3
        s_lshl_b32 s66, s66, 5
        v_xor_b32 v14, s66, v13
        v_add3_u32 v{8+k}, v12, v14, s67
        """)
    A(f"""
    s_mul_i32 s66, s26, 1152
    s_add_u32 s66, s66, {KB_MODL}
    v_lshlrev_b32 v18, 5, v5
    v_add_u32 v18, s66, v18
    s_or_b32 s67, s22, s25
    s_cmp_eq_u32 s67, 0
    s_cselect_b32 s67, {f2h(2048.0)}, 0
    v_mov_b32 v36, s67
    v_cmp_eq_u32 vcc, 0, v4
    v_cndmask_b32 v36, 0, v36, vcc
    s_lshr_b32 s68, s24, 1                        ; dir
    s_and_b32 s69, s24, 1                         ; tt
    s_lshl_b32 s70, s69, 10                       ; 64*16*tt
    v_add_u32 v38, s70, v6                        ; t
    v_sub_u32 v39, 2048, v38
    s_cmp_lg_u32 s68, 0
    s_cselect_b64 vcc, -1, 0
    v_cndmask_b32 v38, v38, v39, vcc
    v_mul_u32_u24 v38, 1152, v38
    v_lshl_add_u32 v38, v5, 3, v38
    s_mul_i32 s71, s23, 192
    """)
    srd(A, 72, 4, SZ_ACT)
    W2SETUP = len(A.items)
    P.stamp()
    waitvm(lambda t: t == "z")
    A("s_mov_b32 s66, 0x80008000")
    for k in range(8):
        A(f"v_xor_b32 v{B1+k}, s42, v{B1+k}")
        A(f"v_xor_b32 v{B2+k}, s66, v{B2+k}")
        A(f"v_and_b32 v{B2+k}, s27, v{B2+k}")
    A("s_barrier")
    P.stamp()
    if PROF: A("s_waitcnt lgkmcnt(0)")
    YACC, AF, A2, HF, SC, XR = 40, 88, 120, 152, 168, 200
    def read_ops(a):
        s = a & 1
        o = []
        for Ti in range(2):
            T = 2*a + Ti
            for ks in range(2):
                for h in range(2):
                    off = 128*(T >> 2) + 18432*h + 36864*ks
                    o.append(f"ds_read_b64_tr_b16 {vr(AF+16*s+4*(2*Ti+ks)+2*h,2)}, v{8+(T&3)} offset:{off}")
        for k in range(2):
            o.append(f"ds_read_b128 {vr(SC+16*s+4*k,4)}, v18 offset:{2304+128*a+16*k}")
            o.append(f"ds_read_b128 {vr(SC+16*s+8+4*k,4)}, v18 offset:{128*a+16*k}")
        return o
    def reads(a):
        for x in read_ops(a): A(x)
    def s2mfma(a, fill=()):
        s = a & 1
        fill = list(fill)
        for ks in range(2):
            for Ti in range(2):
                for tt in range(2):
                    d = vr(A2+16*s+4*(2*Ti+tt),4)
                    c = "0" if ks == 0 else d
                    B = (B1 if ks == 0 else B2) + 4*tt
                    A(f"v_mfma_f32_16x16x32_bf16 {d}, {vr(AF+16*s+4*(2*Ti+ks),4)}, {vr(B,4)}, {c}")
                    for f in fill[:2]: f()
                    fill = fill[2:]
        for f in fill: f()
    def scale_ops(a):
        s = a & 1
        sc = SC + 16*s
        o = []
        for tt in (1, 0):
            for Ti in range(2):
                for k in range(4):
                    r = A2+16*s+4*(2*Ti+tt)+k
                    o.append(f"v_mul_f32 v{r}, v{r}, v{sc+4*Ti+k}")
            if tt == 0:
                blk = [f"s_cbranch_scc0 kb_nd{a}"]
                for Ti in range(2):
                    for k in range(4):
                        blk.append(f"v_fmac_f32 v{A2+16*s+8*Ti+k}, v{sc+8+4*Ti+k}, v36")
                blk.append(f"kb_nd{a}:")
                o.append("s_cmp_lg_u32 s67, 0\n" + "\n".join(blk))
            for Ti in range(2):
                for k in range(2):
                    r = A2+16*s+4*(2*Ti+tt)+2*k
                    o.append(f"v_cvt_pk_bf16_f32 v{HF+8*s+4*tt+2*Ti+k}, v{r}, v{r+1}")
        return o
    def dft(a, fill):
        s = a & 1
        n = 0
        for Et in range(6):
            for tt in range(2):
                d = vr(YACC+4*(2*Et+tt),4)
                c = "0" if a == 0 else d
                A(f"v_mfma_f32_16x16x32_bf16 {d}, {vr(4*(6*a+Et),4,'a')}, {vr(HF+8*s+4*tt,4)}, {c}")
                n += 1
                if n >= 1:
                    for x in fill[:2]: A(x)
                    fill = fill[2:]
        for x in fill: A(x)
    def xloads():
        for k in range(6):
            vm("x", f"buffer_load_dwordx2 {vr(XR+2*k,2)}, v38, s[72:75], s71 offen offset:{32*k}")
    WA = E('WA', 4)
    def w2unit():
        for n in range(9):
            A(f"""
            v_add_u32 v3, {64*n}, v1
            v_mul_u32_u24 v7, 1821, v3
            v_lshrrev_b32 v7, 16, v7
            v_mul_u32_u24 v37, 36, v7
            v_sub_u32 v3, v3, v37
            v_lshlrev_b32 v3, 4, v3
            v_mul_u32_u24 v37, 1152, v7
            v_add_u32 v{224+n}, v3, v37
            """)
        srd(A, 8, 18, D*F*2)
        A(f"""
        s_mul_i32 s13, s22, 6
        s_add_u32 s13, s13, s23                   ; u
        s_lshr_b32 s40, s13, 3
        s_bfe_u32 s41, s13, 0x20001
        s_mul_i32 s12, s41, 1152
        s_lshl_b32 s40, s40, 6
        s_add_u32 s12, s12, s40
        s_lshl_b32 s40, s24, 4
        s_add_u32 s12, s12, s40
        s_mul_i32 s12, s12, 1152
        s_and_b32 s40, s13, 1
        s_mul_i32 s40, s40, 576
        s_add_u32 s12, s12, s40
        s_cmp_lt_u32 s13, 144
        s_cselect_b32 s12, s12, 0x70000000
        s_mul_i32 s40, s24, 9216
        """)
    def w2dma(n):
        A(f"s_add_u32 m0, s40, {STG + 1024*n}")
        vm("w2u", f"buffer_load_dwordx4 v{224+n}, s[8:11], s12 offen lds")
    tail = A.items[W2SETUP:]; del A.items[W2SETUP:]
    w2unit()
    A.items += tail
    reads(0)
    reads(1)
    for a in range(WPRE, WA): wd(a)
    A("s_waitcnt lgkmcnt(12)")
    s2mfma(0)
    for x in scale_ops(0): A(x)
    for a in range(9):
        fill = []
        if a + 2 < 9: fill += [(lambda x=x: A(x)) for x in read_ops(a+2)]
        if a + WA < 9:
            fill += [(lambda Et=Et, aa=a+WA: vm(("wd", aa), f"buffer_load_dwordx4 {vr(4*(6*aa+Et),4,'a')}, v{15+aa//4}, s[52:55], s{56+Et} offen offset:{1024*(aa%4)}")) for Et in range(6)]
        if a + WA == 9: fill.append(xloads)
        if a + WA == 10: fill += [(lambda n=n: w2dma(n)) for n in range(9)]
        if a + 1 < 9:
            A("s_waitcnt lgkmcnt(0)")
            s2mfma(a+1, fill)
        waitvm(lambda t: t == ("wd", a))
        dft(a, scale_ops(a+1) if a + 1 < 9 else [])
    P.stamp()
    A("s_barrier")
    A(f"""
    s_mul_i32 s76, s24, 12288
    s_add_u32 s76, s76, {KZ}
    v_add_u32 v9, s76, v15
    """)
    for i in range(12):
        A(f"ds_write_b128 v9, {vr(YACC+4*i,4)} offset:{1024*i}")
    GA, CB = 136, 160
    A(f"""
    s_mul_i32 s76, s23, 384
    s_add_u32 s76, s76, {KB_MODL}
    v_lshlrev_b32 v10, 4, v5
    v_add_u32 v10, s76, v10
    """)
    for k in range(6):
        A(f"ds_read_b128 {vr(GA+4*k,4)}, v10 offset:{1152*4+64*k}")
        A(f"ds_read_b128 {vr(CB+4*k,4)}, v10 offset:{2304*4+64*k}")
    A(f"""
    s_cmp_lg_u32 s68, 0
    s_cselect_b32 s76, -1.0, 1.0
    v_mov_b32 v12, s76
    s_sub_u32 s77, 64, s22
    s_cmp_lg_u32 s68, 0
    s_cselect_b32 s77, s77, s22                   ; beta
    s_lshl_b32 s78, s69, 4
    v_add_u32 v13, s78, v4                        ; tau%32
    s_lshl_b32 s79, s77, 5
    v_add_u32 v14, s79, v13                       ; tau
    v_lshlrev_b32 v16, 3, v1
    s_lshl_b32 s79, s77, 1
    s_add_u32 s79, s79, s69                       ; tau16
    s_mul_i32 s80, s23, 3
    s_mul_i32 s79, s79, 18
    s_add_u32 s79, s79, s80
    s_lshl_b32 s79, s79, 10
    v_lshlrev_b32 v17, 6, v14
    s_lshl_b32 s80, s23, 3
    s_mov_b32 s81, 0xffff0000
    s_lshl_b32 s76, s69, 10
    s_add_u32 s76, s76, {KZ}
    v_add_u32 v9, s76, v15
    s_lshl_b32 s83, s77, 7
    s_add_u32 s83, s83, s80
    s_lshl_b32 s76, s69, 2
    s_add_u32 s83, s83, s76
    s_add_u32 s83, s83, {FL_X}
    """)
    srd(A, 32, 14, SZ_ACT, WS_X1)
    srd(A, 36, 14, SZ_ACT, WS_X1S)
    srd(A, 44, 14, SZ_STAT, WS_STAT)
    srd(A, 52, 14, SZ_FLB, WS_FLB)
    A(f"""
    v_lshrrev_b32 v6, 2, v1
    v_mul_u32_u24 v6, 576, v6
    v_and_b32 v7, 3, v1
    v_lshl_add_u32 v6, v7, 3, v6
    s_mul_i32 s40, s68, {32*576}
    s_mul_i32 s41, s69, 288
    s_add_u32 s40, s40, s41
    s_add_u32 s40, s40, {STG}
    v_add_u32 v6, s40, v6
    """)
    waitvm(lambda t: t == "w2u")
    A(f"""
    s_waitcnt lgkmcnt(0)
    s_barrier
    """)
    for T in range(9):
        A(f"ds_read_b64_tr_b16 {vr(4*T,2,'a')}, v6 offset:{32*T}")
        A(f"ds_read_b64_tr_b16 {vr(4*T+2,2,'a')}, v6 offset:{32*T + 16*576}")
    A(f"""
    s_and_b32 s76, s68, s27
    s_cmp_lg_u32 s76, s68
    s_cbranch_scc0 kb_epi
    s_mov_b32 s83, 0x70000000
    s_branch kb_fin
    kb_epi:
    """)
    PR = 40
    for Et in range(6):
        for w in range(4):
            A(f"ds_read_b128 {vr(PR+24*w+4*Et,4)}, v9 offset:{12288*w+2048*Et}")
    A("v_mov_b32 v18, 0")
    A("v_mov_b32 v19, 0")
    A("s_mov_b32 s82, 0x3f803f80")
    waitvm(lambda t: t == "x")
    P.stamp()
    for k in range(12):
        if k % 2 == 0: A(f"s_waitcnt lgkmcnt({min(15, 20 - 2*k)})" if not PROF else "s_waitcnt lgkmcnt(0)")
        r = PR + 2*k
        A(f"v_pk_add_f32 {vr(r,2)}, {vr(r,2)}, {vr(r+24,2)}")
        A(f"v_pk_add_f32 {vr(r+48,2)}, {vr(r+48,2)}, {vr(r+72,2)}")
        A(f"v_lshlrev_b32 v20, 16, v{XR+k}")
        A(f"v_pk_fma_f32 {vr(r,2)}, {vr(r+48,2)}, v[12:13], {vr(r,2)} op_sel_hi:[1,0,1]")
        A(f"v_and_b32 v21, s81, v{XR+k}")
        A(f"v_pk_fma_f32 {vr(r,2)}, {vr(r,2)}, {vr(GA+2*k,2)}, v[20:21]")
        A(f"v_cvt_pk_bf16_f32 v{XR+k}, v{r}, v{r+1}")
        A(f"v_lshlrev_b32 v22, 16, v{XR+k}")
        A(f"v_and_b32 v23, s81, v{XR+k}")
        A(f"v_dot2_f32_bf16 v18, v{XR+k}, s82, v18")
        A(f"v_dot2_f32_bf16 v19, v{XR+k}, v{XR+k}, v19")
        A(f"v_pk_mul_f32 v[22:23], v[22:23], {vr(CB+2*k,2)}")
        A(f"v_cvt_pk_bf16_f32 v{212+k}, v22, v23")
        if k % 4 == 3:
            A(f"buffer_store_dwordx4 {vr(212+k-3,4)}, v15, s[36:39], s79 offen offset:{1024*(k//4)} sc1")
    for sw in ("v_permlane16_swap_b32", "v_permlane32_swap_b32"):
        A(f"""
        v_mov_b32 v20, v18
        v_mov_b32 v21, v19
        {sw} v18, v20
        {sw} v19, v21
        v_add_f32 v18, v18, v20
        v_add_f32 v19, v19, v21
        """)
    A(f"""
    v_cmp_gt_u32 vcc, 16, v1
    s_and_saveexec_b64 s[48:49], vcc
    buffer_store_dwordx2 v[18:19], v17, s[44:47], s80 offen sc1
    s_mov_b64 exec, s[48:49]
    """)
    for k in range(6):
        A(f"buffer_store_dwordx2 {vr(XR+2*k,2)}, v16, s[32:35], s79 offen offset:{512*k} sc1")
    A("kb_fin:")
    srd(A, 8, 14, 2*SZ_WP, WS_W1P)
    A(f"""
    s_and_b32 s57, s13, 7
    s_lshl_b32 s57, s57, 1
    s_add_u32 s57, s57, s69                       ; 4q + j
    s_lshr_b32 s58, s13, 3
    s_lshl_b32 s58, s58, 1
    s_add_u32 s58, s58, s68                       ; kstep
    s_lshl_b32 s3, s57, 6
    s_add_u32 s3, s3, s58
    s_lshl_b32 s3, s3, 2
    s_add_u32 s3, s3, {FL_W}
    s_mul_i32 s57, s57, {36*9216}
    s_add_u32 s57, s57, {SZ_WP}
    s_cmp_lt_u32 s13, 144
    s_cselect_b32 s57, s57, 0x70000000
    s_cselect_b32 s3, s3, 0x70000000
    s_mul_i32 s58, s58, 9
    s_bfe_u32 s59, s13, 0x20001                   ; q
    s_lshl_b32 s60, s59, 1
    s_add_u32 s60, s60, 2
    s_cmp_eq_u32 s59, 3
    s_cselect_b32 s60, 0, s60                     ; rot
    s_sub_u32 s61, s58, s60
    s_add_u32 s62, s61, 9
    s_waitcnt lgkmcnt(0)
    s_barrier
    """)
    for T in range(9):
        A(f"s_cmp_gt_u32 s60, {T}")
        A(f"s_cselect_b32 s63, s62, s61")
        A(f"s_add_u32 s63, s63, {T}")
        A(f"s_lshl_b32 s63, s63, 10")
        A(f"s_add_u32 s63, s63, s57")
        A(f"buffer_store_dwordx4 {vr(4*T,4,'a')}, v15, s[8:11], s63 offen sc1")
    A(f"""
    v_mov_b32 v20, 1
    v_mov_b32 v21, 0
    s_waitcnt vmcnt(9)
    buffer_store_dword v20, v21, s[52:55], s83 offen sc1
    """)
    w1_prefetch(A, 24, 76, 80)
    if PROF:
        P.stamp(); P.rt()
        A("s_mov_b64 s[48:49], exec")
        P.flush(14, 24, 52, 8)
        A("s_mov_b64 exec, -1")
    A("s_branch ffn_start")
    P.n = 2

    A.label("kb_side")
    A(f"""
    s_sub_u32 s25, s21, 24
    s_mul_i32 s26, s25, 7
    s_add_u32 s26, s26, s20
    s_sub_u32 s26, s26, 1
    s_sub_u32 s27, s21, 30
    s_lshl_b32 s27, s27, 3
    s_add_u32 s27, s27, s20
    s_add_u32 s27, s27, 42
    s_cmp_ge_u32 s21, 30
    s_cselect_b32 s26, s27, s26                   ; sid 0..57
    v_and_b32 v4, 15, v1
    v_lshrrev_b32 v5, 4, v1
    """)
    A("s_waitcnt lgkmcnt(0)")
    srd(A, 36, 14, 2*SZ_WP, WS_W1P)
    srd(A, 40, 14, 2304, WS_CSB)
    srd(A, 44, 14, SZ_GF, WS_GF)
    srd(A, 52, 14, SZ_FLB, WS_FLB)
    srd(A, 32, 18, D*F*2)
    A(f"""
    s_mov_b32 s3, 0x70000000
    s_lshl_b32 s29, s26, 2
    s_add_u32 s29, s29, s24                       ; wid
    s_mul_i32 s28, s29, {23*1024}
    s_mov_b32 s6, 0xffff0000
    v_mul_u32_u24 v6, 1152, v4
    v_lshl_add_u32 v6, v5, 3, v6
    v_cmp_lt_u32 vcc, 1, v4
    v_mov_b32 v7, 0x7ffffff0
    v_cndmask_b32 v6, v6, v7, vcc
    """)
    def gtile_loads(it):
        A(f"""
        s_add_u32 s68, s29, {232*it}              ; ft
        s_mul_i32 s30, s68, 3641
        s_lshr_b32 s30, s30, 16                   ; fb
        s_mul_i32 s31, s30, 18
        s_sub_u32 s31, s68, s31                   ; t
        s_and_b32 s62, s30, 3
        s_mul_i32 s62, s62, 9
        s_lshr_b32 s62, s62, 1                    ; rot
        s_cmp_lt_u32 s31, {PST[1]}
        s_cselect_b32 s63, {PARTS[0]}, {PARTS[1]}
        s_cselect_b32 s64, 0, {17*PST[1]}
        s_cmp_lt_u32 s31, {PST[2]}
        s_cselect_b32 s63, s63, {PARTS[2]}
        s_cselect_b32 s64, s64, {17*PST[2]}
        s_add_u32 s64, s64, s31
        s_mul_i32 s65, s30, 324
        s_add_u32 s64, s64, s65
        s_lshl_b32 s64, s64, 10
        s_cmp_lt_u32 s68, 288
        s_cselect_b32 s64, s64, 0x70000000
        s_lshl_b32 s63, s63, 10
        s_sub_u32 s65, 18, s62
        s_mul_i32 s65, s65, s63
        s_add_u32 s65, s65, s64
        s_mul_i32 s66, s63, 18
        s_add_u32 s66, s66, s64
        """)
        for kk in range(18):
            A("s_cmp_eq_u32 s65, s66")
            A("s_cselect_b32 s65, s64, s65")
            A(f"buffer_load_dwordx4 {vr(72+72*it+4*kk,4,'a')}, v15, s[36:39], s65 offen")
            A("s_add_u32 s65, s65, s63")
    gtile_loads(0)
    for kk in range(18):
        A(f"buffer_load_dwordx2 {vr(4*kk,2,'a')}, v6, s[40:43], 0 offen offset:{64*kk}")
        A(f"buffer_load_dwordx2 {vr(4*kk+2,2,'a')}, v6, s[40:43], 0 offen offset:{64*kk+32}")
    gtile_loads(1)
    for n in range(23):
        A(f"buffer_load_dwordx4 {vr(160+4*n,4)}, v15, s[32:35], s28 offen offset:{1024*(n%4)}")
        if n % 4 == 3: A("s_add_u32 s28, s28, 4096")
    A("v_lshlrev_b32 v29, 6, v5")
    for it in range(2):
        A(f"s_waitcnt vmcnt({23 + 18 if it == 0 else 23 + 4})")
        for kk in range(18):
            A(f"v_mfma_f32_16x16x32_bf16 v[20:23], {vr(72+72*it+4*kk,4,'a')}, {vr(4*kk,4,'a')}, {'0' if kk == 0 else 'v[20:23]'}")
        for r in range(4):
            A(f"v_mov_b32_dpp v{24+r}, v{20+r} row_shl:1 row_mask:0xf bank_mask:0xf")
        for r in range(4):
            g1, g2, o = 20 + r, 24 + r, 64 + 16*it + 4*r
            A(f"""
            v_cvt_pk_bf16_f32 v{o}, v{g1}, v{g1}
            v_cvt_pk_bf16_f32 v28, v{g2}, v{g2}
            v_and_b32 v{o+3}, s6, v{o}
            v_and_b32 v28, s6, v28
            v_sub_f32 v{o+3}, v{g1}, v{o+3}
            v_sub_f32 v28, v{g2}, v28
            v_cvt_pk_bf16_f32 v{o+1}, v{o+3}, v{g2}
            v_cvt_pk_bf16_f32 v{o+2}, v{g2}, v28
            v_mov_b32 v{o+3}, 0
            """)
        A(f"""
        s_add_u32 s67, s29, {232*it}
        s_lshl_b32 s67, s67, 8
        v_cmp_eq_u32 vcc, 0, v4
        s_and_saveexec_b64 s[48:49], vcc
        """)
        for r in range(4):
            A(f"buffer_store_dwordx4 {vr(64+16*it+4*r,4)}, v29, s[44:47], s67 offen offset:{16*r} sc1")
        A("s_mov_b64 exec, s[48:49]")
    P.stamp()
    w1_prefetch(A, 24, 76, 80)
    A(f"""
    s_waitcnt vmcnt(18)
    s_barrier
    """)
    P.stamp()
    A(f"""
    v_mov_b32 v20, 1
    v_mov_b32 v21, 0
    s_lshl_b32 s67, s26, 2
    s_add_u32 s67, s67, {FL_S}
    buffer_store_dword v20, v21, s[52:55], s67 offen sc1
    """)
    if PROF:
        for _ in range(3): P.stamp()
        P.rt()
        P.slot = 3
        P.flush(14, 24, 52, 8)
        A("s_mov_b64 exec, -1")
    A.label("ffn_start")
    ffn.gen_ffn_body(A)
    return dict(name=name, vgpr=512, sgpr=102, accum=256, grid=256, block=256, lds=KBF_LDS)
```

```python
from common import *
STG = 36864
NSLOT = 4
F_GL = NSLOT * STG
F_LDS = F_GL + 4608
E = lambda k, d: int(os.environ.get(k, str(d)))
DIST = E('DIST', 10)
RING = E('RING', 13)
NTM = E('NTM', 2)
NP = len(PARTS)
PKV = [18, 19, 20, 21, 22, 23, 24, 254, 255]
LST = [x // 2 for x in PST]
P2 = [(0, l) for l in range(9)] + [(d, l) for p in range(NP) for d in (1, 2, 3) for l in range(LST[p], LST[p+1])]
partof = lambda l: max(p for p in range(NP) if LST[p] <= l)
NK = E('NK', 10)
KT = 36 - NK
O2 = [(k2, T) for k2 in range(KT) for T in range(7)] + [(k2, T) for T in range(7) for k2 in range(KT, 36)] \
     + [(k2, T) for k2 in range(36) for T in (7, 8)]

def stats_to_ms(A, vst, vm, vsig, tmp):
    for a, b in ((0, 2), (4, 6), (8, 10), (0, 4), (0, 8)):
        A(f"v_add_f32 v{vst+a}, v{vst+a}, v{vst+b}")
        A(f"v_add_f32 v{vst+a+1}, v{vst+a+1}, v{vst+b+1}")
    A(f"v_mul_f32 v{vm}, {f2h(-1.0/576)}, v{vst}")
    A(f"v_mul_f32 v{tmp}, {f2h(1.0/576)}, v{vst+1}")
    A(f"v_fma_f32 v{tmp}, -v{vm}, v{vm}, v{tmp}")
    A(f"v_max_f32 v{tmp}, 0, v{tmp}")
    A(f"v_add_f32 v{tmp}, {f2h(1e-5)}, v{tmp}")
    A(f"v_sqrt_f32 v{vsig}, v{tmp}")

class Rec:
    def __init__(self): self.l = []
    def __call__(self, t):
        for x in t.strip().split("\n"):
            x = x.split(";")[0].strip()
            if x: self.l.append(x)

def gen_ffn_body(A):
    P = Prof(A, 70, 2)
    P.rt(); P.stamp()
    A(f"""
    s_load_dwordx2 s[60:61], s[0:1], {KA_WS}
    s_load_dwordx2 s[62:63], s[0:1], {KA_OUT}
    s_and_b32 s20, s2, 7                 ; xcd
    s_lshr_b32 s21, s2, 3                ; idx
    s_and_b32 s22, s20, 1
    s_lshl_b32 s22, s22, 3
    s_lshr_b32 s23, s21, 2
    s_add_u32 s22, s22, s23              ; taub
    s_lshr_b32 s23, s20, 1               ; q
    s_and_b32 s21, s21, 3                ; j
    s_lshl_b32 s25, s23, 2
    s_add_u32 s25, s25, s21              ; fb = 4q + j
    s_mul_i32 s29, s21, 9
    s_lshr_b32 s29, s29, 1
    v_and_b32 v1, 63, v0
    v_lshrrev_b32 v2, 6, v0
    v_lshlrev_b32 v26, 4, v1             ; lane*16
    v_readfirstlane_b32 s24, v2          ; wave
    v_mov_b32 v30, 0x7ffffff0
    v_add_u32 v25, {18*1024}, v26
    s_mul_i32 s30, s25, {36*9216}
    s_mul_i32 s26, s24, 9216
    s_add_u32 s30, s30, s26
    s_add_u32 s31, s30, {SZ_WP}
    s_lshl_b32 s27, s22, 2
    s_add_u32 s27, s27, s24              ; beta
    s_mul_i32 s28, s27, {36*1024}
    s_add_u32 s28, s28, {SZ_ACT}
    s_add_u32 s5, s28, {18*1024}
    s_lshl_b32 s4, s29, 10
    s_add_u32 s4, s4, s28
    s_lshl_b32 s65, s24, 3               ; 8*w
    v_and_b32 v6, 15, v1                 ; tok
    v_lshrrev_b32 v7, 4, v1              ; g
    s_waitcnt lgkmcnt(0)
    """)
    srd(A, 8, 60, 2*SZ_WP, WS_W1P)
    srd(A, 16, 60, 2*SZ_ACT, WS_X1)
    VM = Cnt(63); LG = Cnt(15)
    ABL = os.environ.get('ABL', '').split(',')
    cur = [0]
    def vm(tag, txt):
        key = tag[0] if isinstance(tag, tuple) else tag
        if key in ABL:
            txt = txt.replace("v26,", "v30,").replace("v25,", "v30,")
            for r in PKV: txt = txt.replace(f"], v{r},", "], v30,")
        A(txt); VM.issue(tag)
    def lg(tag, txt): A(txt); LG.issue(tag)
    def waitvm(pred):
        n = VM.need(pred)
        if n is not None: A(f"s_waitcnt vmcnt({n})")
    def waitlg(pred):
        n = LG.need(pred)
        if n is not None: A(f"s_waitcnt lgkmcnt({n})")
    def dma_group(g):
        ops = []
        sreg = 68 + (g & 1)
        pre = [f"s_add_u32 s{sreg}, s{30 if g < 9 else 31}, {(g % 9)*STG}"]
        for n in range(9):
            op = [(None, x) for x in pre] if n == 0 else []
            if n % 4 == 0:
                if n: op.append((None, f"s_add_u32 s{sreg}, s{sreg}, 4096"))
                op.append((None, f"s_add_u32 m0, s26, {(g % NSLOT)*STG + 1024*n}"))
            op.append((("dma", g), f"buffer_load_dwordx4 v26, s[8:11], s{sreg} offen offset:{1024*(n%4)}{' sc1' if g >= 9 else ''} lds"))
            ops.append(op)
        return ops
    def xfr(kk, tt): return vr(8*kk + 4*tt, 4, 'a')
    def x1s_op(kk, tt):
        op = [(("x1s", kk), f"buffer_load_dwordx4 {xfr(kk,tt)}, v{26-tt}, s[16:19], s4 offen sc1")]
        if tt == 1 and kk < 17:
            op += [(None, x) for x in ("s_add_u32 s4, s4, 1024", "s_cmp_eq_u32 s4, s5", "s_cselect_b32 s4, s28, s4")]
        return op
    def emit(op):
        for tag, txt in op:
            if tag is None: A(txt)
            else: vm(tag, txt)
    ST = 208
    FLG = 252
    srd(A, 36, 60, SZ_FLB, WS_FLB)
    npoll = [0]
    def poll_txt(vo, so, off): return f"buffer_load_dword v{FLG}, v{vo}, s[36:39], {so} offen offset:{off} sc1"
    def poll_spin(vo, so, off, sleep=True):
        n = npoll[0]; npoll[0] += 1
        A(f"""
        s_mov_b32 s67, 400000
        ffn_pc{n}:
        v_cmp_eq_u32 vcc, 1, v{FLG}
        s_cmp_eq_u64 vcc, exec
        s_cbranch_scc1 ffn_ok{n}
        s_sub_u32 s67, s67, 1
        s_cbranch_scc1 ffn_ok{n}
        {'s_sleep 1' if sleep else ''}
        {poll_txt(vo, so, off)}
        s_waitcnt vmcnt(0)
        s_branch ffn_pc{n}
        ffn_ok{n}:
        """)
    A(f"""
    v_min_u32 v16, 11, v1
    v_lshlrev_b32 v16, 2, v16
    s_lshl_b32 s66, s27, 7
    s_add_u32 s66, s66, {FL_X}
    {poll_txt(16, 's66', 0)}
    v_min_u32 v5, 3, v1
    v_lshlrev_b32 v5, 2, v5
    v_min_u32 v17, 57, v1
    v_lshlrev_b32 v17, 2, v17
    s_mov_b32 s7, {FL_S}
    """)
    srd(A, 32, 60, SZ_H1, WS_H1)
    srd(A, 40, 60, SZ_STAT, WS_STAT)
    srd(A, 44, 60, SZ_GF, WS_GF)
    srd(A, 12, 60, SZ_PART3, WS_PART)
    A(f"""
    s_lshl_b32 s64, s27, 5
    v_add_u32 v253, s64, v6
    v_lshlrev_b32 v253, 6, v253
    v_add_u32 v27, {STG}, v26
    v_add_u32 v28, {2*STG}, v26
    v_add_u32 v29, {3*STG}, v26
    v_lshlrev_b32 v31, 4, v6
    v_add_u32 v31, {F_GL}, v31
    s_mul_i32 s48, s27, {2*144*1024}
    s_mul_i32 s64, s25, {9*1024}
    s_add_u32 s50, s48, s64
    s_add_u32 s51, s50, {144*1024}
    s_add_u32 s52, s50, 4096
    s_add_u32 s53, s51, 4096
    s_add_u32 s54, s50, 8192
    s_add_u32 s55, s51, 8192
    s_mul_i32 s64, s23, {36*1024}
    s_add_u32 s48, s48, s64              ; cluster base (beta, q), tt=0
    s_lshl_b32 s56, s27, 2
    s_add_u32 s57, s56, s23
    s_lshl_b32 s57, s57, 7
    s_add_u32 s58, s56, s21
    s_mul_i32 s56, s58, {9*4*1024}
    s_lshl_b32 s58, s58, 7
    s_add_u32 s58, s58, {256*128}
    s_lshl_b32 s59, s21, 2
    v_mov_b32 v2, s59                    ; 4j
    v_mov_b32 v3, 1
    s_mov_b32 s6, 0xffff0000
    s_mul_i32 s64, s25, 4608
    s_mul_i32 s49, s24, 1152
    s_add_u32 s64, s64, s49
    s_add_u32 s49, s49, {F_GL}
    s_waitcnt vmcnt(0)
    """)
    poll_spin(16, 's66', 0, False)
    P.stamp()
    XP = E('XP', 5)
    for kk in range(XP):
        for tt in range(2): emit(x1s_op(kk, tt))
    early = []
    for tt in range(2):
        for k in range(3):
            early.append([("st", f"buffer_load_dwordx4 {vr(ST+12*tt+4*k,4)}, v253, s[40:43], 0 offen offset:{1024*tt+16*k} sc1")])
    ACC = 32
    def aring(s):
        if s < 8: return vr(176 + 4*s, 4)
        if s == 8: return vr(244, 4)
        return vr(240 + 4*(s-9), 4, 'a')
    def acc1(t, tt): return ACC + 8*t + 4*tt
    def acc2(T, tt): return acc1(2*T+1, tt)
    SIG, NM = 248, 250
    SF = 8
    def hbase(k2):
        n = k2 - 9
        return 144 + 8*n if n < 12 else 8*(n - 12)
    def hfrag(k2, tt):
        d, l = P2[k2]
        if d == 0: return vr(acc1(2*l, tt), 4)
        return vr(hbase(k2) + 4*tt, 4, 'a')
    seq = []; PE = []; nf = 0
    for p in range(NP):
        for kk in range(18):
            for t in range(PST[p], PST[p+1]):
                seq.append((('w', nf), t, ('x', kk), kk == 0)); nf += 1
        for t in range(PST[p], PST[p+1]): seq.append((('g', t), t, ('s', 0), False))
        PE.append(len(seq))
    S2 = len(seq)
    for n, (k2, T) in enumerate(O2): seq.append((('w', 324 + n), 2*T+1, ('h', k2), k2 == 0))
    NS = len(seq)
    TM0 = S2 + KT*7
    PB0 = S2 + 252
    first_read = {}
    for i, e in enumerate(seq):
        if e[0][0] == 'w': first_read.setdefault(e[0][1] // 36, i)
    bar_at = {i: g for g, i in first_read.items() if g > 0}
    Bpos = lambda g: first_read[g] - DIST
    xlast = {kk: max(i for i, e in enumerate(seq) if e[2] == ('x', kk)) for kk in range(18)}
    xfirst = {kk: min(i for i, e in enumerate(seq) if e[2] == ('x', kk)) for kk in range(18)}
    hfirst = {k2: min(i for i, e in enumerate(seq) if e[2] == ('h', k2)) for k2 in range(36)}
    def read1(i):
        kind, f = seq[i][0]
        if kind == 'w':
            g, r = divmod(f, 36)
            lg(("a", i), f"ds_read_b128 {aring(i % RING)}, v{26 + g % NSLOT} offset:{1024*r}")
        else:
            lg(("a", i), f"ds_read_b128 {aring(i % RING)}, v31 offset:{256*f}")
    Q = []
    CAT = [None]
    KEEP = os.environ.get('KEEP')
    def add(ready, fns, deadline=10**9):
        if KEEP is not None and CAT[0] not in KEEP.split(','): return
        for fn in fns: Q.append([ready, len(Q), deadline, fn])
    def I(txt): return lambda: A(txt)
    def opfns(op): return [(lambda tag=tag, txt=txt: A(txt) if tag is None else vm(tag, txt)) for tag, txt in op]
    def spread(ops, slots, deadline=10**9):
        n = len(ops); slots = list(slots)
        for k, op in enumerate(ops):
            add(slots[len(slots) * k // n], opfns(op), deadline)
    DW = E('DW', 30)
    CAT[0] = 'dma'
    XL = E('XL', 44)
    for kk in range(XP, 18):
        for tt in range(2): add(max(0, xfirst[kk] - XL + 3*tt), opfns(x1s_op(kk, tt)), xfirst[kk] - 8)
    spread(dma_group(2), range(2, 24), Bpos(2) - 2)
    spread(early, range(24, 60))
    for g in range(3, 18):
        lo = Bpos(g-2) + 1
        w = DW
        spread(dma_group(g), range(lo, lo + w), Bpos(g) - 2)
    dst = [[("dst", f"buffer_store_dwordx4 {vr(232+4*k,4)}, v26, s[16:19], s100 offen offset:{1024*k} sc1")] for k in range(3)]
    dst += [[("dst", f"buffer_store_dwordx4 {vr(144+4*T,4,'a')}, v{PKV[T]}, s[8:11], 0 offen sc1")] for T in range(9)]
    D0, D1 = E('D0', 30), E('D1', 120)
    spread(dst, range(D0, D1))
    add(D1 + 40, [lambda: waitvm(lambda t: t == "dst"),
                  lambda: vm("flag", "buffer_store_dword v3, off, s[36:39], s3 sc1"),
                  lambda: vm("flag", "buffer_store_dword v3, off, s[36:39], s101 sc1")])
    assert D1 + 40 < Bpos(7) - E('PWL', 60)
    CAT[0] = 'bias'
    GBAR = 3
    add(30, [lambda: vm("pollg", poll_txt(17, 's7', 0))])
    def gload():
        waitvm(lambda t: t == "pollg")
        poll_spin(17, 's7', 0)
        A("s_mov_b32 s67, m0")
        A("s_mov_b32 m0, s49")
        vm("gf", "buffer_load_dwordx4 v26, s[44:47], s64 offen sc1 lds")
        vm("gf", "buffer_load_dwordx4 v26, s[44:47], s64 offen offset:128 sc1 lds")
        A("s_mov_b32 m0, s67")
    add(56, [gload], Bpos(GBAR) - 20)
    PWL = E('PWL', 60)
    add(Bpos(7) - PWL, [I("v_min_u32 v16, 35, v1"), I("v_lshlrev_b32 v16, 2, v16"), I("s_lshl_b32 s3, s25, 8"), I(f"s_add_u32 s3, s3, {FL_W}"),
                       lambda: vm("pollw", poll_txt(16, 's3', 0))])
    add(Bpos(7) - PWL + 30, [lambda: (waitvm(lambda t: t == "pollw"), poll_spin(16, 's3', 0))], Bpos(7))
    if E('WPF', 0):
        R = Rec()
        R(f"""
        s_lshr_b32 s67, s2, 5
        s_lshl_b32 s67, s67, 2
        s_add_u32 s67, s67, s24
        s_lshl_b32 s67, s67, 7
        v_lshlrev_b32 v232, 12, v1
        v_add_u32 v232, s67, v232
        v_add_u32 v233, {64*4096}, v232
        v_cmp_lt_u32 vcc, 16, v1
        v_cndmask_b32 v233, v233, v30, vcc
        """)
        add(Bpos(7) - PWL + 31, [I(x) for x in R.l] + [lambda: vm("pf", "buffer_load_dword v234, v232, s[8:11], s31 offen sc1"),
                                                      lambda: vm("pf", "buffer_load_dword v235, v233, s[8:11], s31 offen sc1")])
    add(99, [lambda: waitvm(lambda t: t == "st")])
    for tt in range(2):
        R = Rec(); stats_to_ms(R, ST+12*tt, NM+tt, SIG+tt, 240)
        o = SF + 4*tt
        R(f"""
        v_cvt_pk_bf16_f32 v{o+1}, v{NM+tt}, v{SIG+tt}
        v_lshlrev_b32 v240, 16, v{o+1}
        v_and_b32 v241, s6, v{o+1}
        v_sub_f32 v242, v{NM+tt}, v240
        v_sub_f32 v243, v{SIG+tt}, v241
        v_cvt_pk_bf16_f32 v{o}, v240, v242
        v_cvt_pk_bf16_f32 v{o+2}, v243, v241
        v_cmp_eq_u32 vcc, 0, v7
        v_mov_b32 v{o+3}, 0
        v_cndmask_b32 v{o}, 0, v{o}, vcc
        v_cndmask_b32 v{o+1}, 0, v{o+1}, vcc
        v_cndmask_b32 v{o+2}, 0, v{o+2}, vcc
        """)
        add(100 + 16*tt, [I(x) for x in R.l], PE[0] - PARTS[0] - 2)
    assert PE[0] - PARTS[0] - DIST > Bpos(GBAR)
    CAT[0] = 'conv'
    def conv(l, tt):
        a, b = acc1(2*l, tt), acc1(2*l+1, tt)
        fns = [I(f"v_cvt_pk_bf16_f32 v{a}, v{a}, v{a+1}"), I(f"v_cvt_pk_bf16_f32 v{a+1}, v{a+2}, v{a+3}"),
               I(f"v_cvt_pk_bf16_f32 v{a+2}, v{b}, v{b+1}"), I(f"v_cvt_pk_bf16_f32 v{a+3}, v{b+2}, v{b+3}")]
        fns += [I(f"v_pk_max_i16 v{a+k}, v{a+k}, 0") for k in range(4)]
        fns.append(lambda: vm(("h1st", partof(l)), f"buffer_store_dwordx4 {vr(a,4)}, v26, s[32:35], s{50 + 2*(l//4) + tt} offen offset:{1024*(l%4)} sc1"))
        return fns
    SG = E('SG', 6)
    fw = {}
    for p in range(NP):
        n = 0
        for l in range(LST[p], LST[p+1]):
            done = PE[p] - (PST[p+1] - (2*l+1))
            for tt in range(2):
                if p < NP - 1:
                    add(max(done + 2, PE[p] - 2 + SG*n), conv(l, tt))
                else:
                    c = conv(l, tt)
                    add(done + 2, c[:-1], S2 + l - 1)
                    add(max(S2 + 9, PE[p] + 8 + SG*n), c[-1:])
                n += 1
        fw[p] = PE[p] + 8 + SG*n + E('FWD', 24)
    def poll_issue(part): vm(("poll", part), poll_txt(5, 's57', 16*part))
    def poll_check(part):
        waitvm(lambda t: t == ("poll", part))
        poll_spin(5, 's57', 16*part)
    PD, PL = E('PD', 16), E('PL', 24)
    avail = {}
    CAT[0] = 'poll'
    for p in range(NP):
        add(fw[p] + PD, [lambda p=p: poll_issue(p)])
        add(fw[p] + PD + PL, [lambda p=p: poll_check(p)])
        avail[p] = fw[p] + PD + PL + 1
    CAT[0] = 'h1'
    HL = E('HL', 40)
    a0, a1 = avail[0], TM0 - HL
    prev = 0
    for n, k2 in enumerate(range(9, 36)):
        d, l = P2[k2]
        for tt in range(2):
            op = []
            if tt == 0:
                if l == LST[partof(l)]:
                    op += [(None, x) for x in (f"s_add_u32 s64, s21, {d}", "s_and_b32 s64, s64, 3", f"s_mul_i32 s64, s64, {9*1024}",
                           "s_add_u32 s64, s64, s48", f"s_add_u32 s64, s64, {4096*(l//4)}", f"s_add_u32 s49, s64, {144*1024}")]
                elif l % 4 == 0:
                    op += [(None, "s_add_u32 s64, s64, 4096"), (None, "s_add_u32 s49, s49, 4096")]
            op.append((("h1", k2), f"buffer_load_dwordx4 {hfrag(k2,tt)}, v26, s[32:35], s{64 if tt == 0 else 49} offen offset:{1024*(l%4)} sc1"))
            s = a0 + (a1 - a0) * (2*n + tt) // 54
            s = min(s, hfirst[k2] - HL)
            s = max(s, avail[partof(l)], prev + 1)
            if hbase(k2) < 144: s = max(s, xlast[hbase(k2) // 8] + 1)
            assert s < hfirst[k2] - 8, (k2, s, hfirst[k2])
            prev = s
            add(s, opfns(op), hfirst[k2] - 4)
    XT, GB = 208, 220
    R = Rec()
    srd(R, 44, 60, 13824, WS_MOD)
    R(f"""
        s_lshl_b32 s22, s23, 1
        s_add_u32 s20, s22, 2
        s_cmp_eq_u32 s23, 3
        s_cselect_b32 s20, 0, s20            ; rot
        s_cselect_b32 s22, 7, s22            ; A0
        s_cselect_b32 s67, 1, 0
        s_mul_i32 s29, s21, 9
        s_add_u32 s29, s29, s22
        s_sub_u32 s29, s29, s67              ; first tile loaded (A0-1 when q==3)
        s_mul_i32 s28, s27, {36*1024}
        """)
    for k in range(3):
        R(f"""
        s_add_u32 s67, s29, {k}
        s_lshr_b32 s{40+k}, s67, 1
        s_lshl_b32 s{40+k}, s{40+k}, 10
        s_and_b32 s67, s67, 1
        s_lshl_b32 s67, s67, 3
        s_add_u32 s{40+k}, s{40+k}, s67
        s_add_u32 s{40+k}, s{40+k}, s28
        """)
    R(f"""
        s_lshl_b32 s29, s29, 6
        s_add_u32 s29, s29, {2880*4}
        s_lshl_b32 s67, s23, 10
        s_add_u32 s59, s56, s67
        v_lshlrev_b32 v241, 4, v7
        v_min_u32 v16, 11, v1
        v_lshlrev_b32 v16, 2, v16
        s_lshl_b32 s3, s27, 7
        s_add_u32 s3, s3, {FL_X + 64}""")
    CAT[0] = 'always'
    add(S2 + 40, [I(x) for x in R.l])
    CAT[0] = 'fin'
    add(TM0 - 30, [lambda: vm("pollx", poll_txt(16, 's3', 0))])
    add(TM0 + 4, [lambda: (waitvm(lambda t: t == "pollx"), poll_spin(16, 's3', 0))])
    assert avail[NP-1] < TM0 - 30, (avail, TM0)
    fl = []
    for k in range(3):
        for tt in range(2):
            fl.append([("fin", f"buffer_load_dwordx2 {vr(XT+4*k+2*tt,2)}, v{26-tt}, s[16:19], s{40+k} offen sc1")])
        fl.append([("fin", f"buffer_load_dwordx4 {vr(GB+4*k,4)}, v241, s[44:47], s29 offen offset:{64*k}")])
    spread(fl, range(TM0 + 6, TM0 + 50))
    nk = NK
    CAT[0] = 'pst'
    for T in range(7):
        pre = [f"s_add_u32 s66, s20, {T}", "s_cmp_ge_u32 s66, 9", "s_cselect_b32 s67, 9, 0", "s_sub_u32 s66, s66, s67",
               "s_lshl_b32 s66, s66, 12", "s_add_u32 s66, s66, s59"]
        a_ = acc2(T, 0)
        cv = [f"v_cvt_pk_bf16_f32 v{a_+k}, v{a_+2*k}, v{a_+2*k+1}" for k in range(4)]
        add(TM0 + nk*(T+1) - 2, [I(x) for x in pre])
        add(TM0 + nk*(T+1) + 2, [I(x) for x in cv] + [lambda a_=a_: vm("pst", f"buffer_store_dwordx4 {vr(a_,4)}, v26, s[12:15], s66 offen sc1")])
    PR = 40
    prr = lambda d, k: acc2(2*(d-1) + k, 1)
    FS = E('FS', 16)
    R = Rec()
    R(f"""
        s_lshl_b32 s66, s23, 2
        v_mov_b32 v2, s66
        s_lshl_b32 s64, s22, 12
        s_add_u32 s64, s64, s56
        """)
    add(PB0 + FS, [I(x) for x in R.l] + [lambda: waitvm(lambda t: t == "pst"),
                   lambda: vm("flag", "buffer_store_dword v3, v2, s[36:39], s58 offen sc1")])
    P3 = E('P3', 36)
    add(PB0 + P3, [lambda: vm("poll3", poll_txt(5, 's58', 0))])
    def recv():
        waitvm(lambda t: t == "poll3")
        poll_spin(5, 's58', 0, False)
        for d in (1, 2, 3):
            A(f"""
            s_add_u32 s67, s23, {d}
            s_and_b32 s67, s67, 3
            s_lshl_b32 s67, s67, 10
            s_add_u32 s67, s67, s64
            s_add_u32 s4, s67, 4096
            """)
            for k in range(2):
                vm("rcv", f"buffer_load_dwordx4 {vr(prr(d,k),4)}, v26, s[12:15], {'s67' if k == 0 else 's4'} offen sc1")
        A("s_sub_u32 s67, s64, 4096")
        A("s_cmp_eq_u32 s23, 3")
        A("s_cselect_b32 s67, s67, 0x70000000")
        for s_ in range(4):
            vm("rcv", f"buffer_load_dwordx4 {vr(acc2(s_,0),4)}, v26, s[12:15], s67 offen offset:{1024*s_} sc1")
    add(PB0 + P3 + E('P3L', 20), [recv])
    flagged = {}
    def try_flags():
        for part in range(NP):
            if part in flagged: continue
            if sum(t == ("h1st", part) for t in VM.order) == PARTS[part] and VM.complete(lambda t: t == ("h1st", part)):
                vm("flag", f"buffer_store_dword v3, v2, s[36:39], s57 offen offset:{16*part} sc1")
                flagged[part] = cur[0]
    CAT[0] = 'conv'
    for p in range(NP):
        add(fw[p], [lambda p=p: (waitvm(lambda t: t == ("h1st", p)), try_flags())])
    Q.sort(key=lambda e: (e[0], e[1]))
    NOSIDE = E('NOSIDE', 0)
    def pump(slot, k):
        n = 0
        while Q and Q[0][0] <= slot and n < k:
            Q.pop(0)[3](); n += 1
    def flush_deadlines(slot):
        idx = [i for i, e in enumerate(Q) if e[2] <= slot]
        if idx:
            for _ in range(idx[-1] + 1):
                assert Q[0][0] <= slot, (Q[0], slot)
                Q.pop(0)[3]()
    WG = E('WG', 4)
    for _ in range(9): VM.order.insert(0, ("dma", 1))
    VM.done += 9
    A("s_barrier")
    P.stamp()
    if PROF: A("s_waitcnt lgkmcnt(0)")
    for i in range(DIST): read1(i)
    seen = set()
    for i in range(NS):
        cur[0] = i
        asrc, t, bsrc, first = seq[i]
        flush_deadlines(i)
        if bsrc not in seen:
            seen.add(bsrc)
            tag = ("x1s", bsrc[1]) if bsrc[0] == 'x' else ("h1", bsrc[1])
            if bsrc[0] == 'x' or (bsrc[0] == 'h' and bsrc[1] >= 9):
                assert NOSIDE or sum(x == tag for x in VM.order) == 2, tag
                waitvm(lambda x: x == tag)
            try_flags()
        if i % WG == 0:
            waitlg(lambda x: isinstance(x, tuple) and x[0] == "a" and x[1] < i + WG)
        nx = i + DIST
        for tt in range(2):
            d = vr(acc1(t, tt), 4)
            B = xfr(bsrc[1], tt) if bsrc[0] == 'x' else hfrag(bsrc[1], tt) if bsrc[0] == 'h' else vr(SF + 4*tt, 4)
            A(f"v_mfma_f32_16x16x32_bf16 {d}, {aring(i % RING)}, {B}, {'0' if first else d}")
            if nx < NS and tt == 0:
                if nx in bar_at:
                    g = bar_at[nx]
                    gs = [g]
                    if g == GBAR: waitvm(lambda x: x == "gf")
                    for gg in gs: assert NOSIDE or sum(x == ("dma", gg) for x in VM.order) == 9, gg
                    waitvm(lambda x: x[0] == "dma" and x[1] in gs)
                    A("s_barrier")
                    if PROF and g % 3 == 0:
                        P.stamp(); A("s_waitcnt lgkmcnt(0)"); LG.done = len(LG.order)
                    try_flags()
                read1(nx)
            backlog = sum(1 for e in Q if e[0] <= i)
            if tt == 0: pump(i, 1 if backlog > E('BL', 10) else 0)
            else: pump(i, 1 if (i + 1) % WG == 0 else 2)
    assert not Q, Q
    assert NOSIDE or len(flagged) == NP
    print("flags at slots", flagged, "avail", avail, "PE", PE, "TM0", TM0, "NS", NS)
    P.stamp()
    srd(A, 16, 62, SZ_ACT)
    A(f"""
    v_rcp_f32 v242, v{SIG}
    v_rcp_f32 v246, v{SIG+1}
    v_sub_u32 v9, 31, v6
    s_mov_b32 s67, {16*64*1152}
    s_cmp_gt_u32 s27, 32
    s_cselect_b64 vcc, -1, 0
    s_cselect_b32 s67, {(-16*64*1152) & 0xffffffff}, s67
    v_cndmask_b32 v8, v6, v9, vcc
    v_lshlrev_b32 v8, 6, v8
    v_add_u32 v8, s27, v8
    v_mul_u32_u24 v8, 1152, v8
    v_lshl_add_u32 v8, v7, 3, v8
    v_add_u32 v9, s67, v8                 ; tt=1
    s_mul_i32 s64, s21, 288
    s_lshl_b32 s49, s22, 5
    s_add_u32 s64, s64, s49
    s_waitcnt vmcnt(0)
    """)
    P.stamp()
    def fin(r, srcs, x, gb, tt, off):
        rc = 242 if tt == 0 else 246
        for hh in range(2):
            rr = r + 2*hh
            for sreg in srcs:
                A(f"v_lshlrev_b32 v10, 16, v{sreg+hh}")
                A(f"v_and_b32 v11, s6, v{sreg+hh}")
                A(f"v_pk_add_f32 {vr(rr,2)}, {vr(rr,2)}, v[10:11]")
            A(f"v_pk_mul_f32 {vr(rr,2)}, {vr(rr,2)}, v[{rc}:{rc+1}] op_sel_hi:[1,0]")
            A(f"v_lshlrev_b32 v10, 16, v{x+hh}")
            A(f"v_and_b32 v11, s6, v{x+hh}")
            A(f"v_pk_fma_f32 {vr(rr,2)}, {vr(rr,2)}, {vr(gb+2*hh,2)}, v[10:11]")
            A(f"v_cvt_pk_bf16_f32 v{x+hh}, v{rr}, v{rr+1}")
        A(f"buffer_store_dwordx2 {vr(x,2)}, v{8+tt}, s[16:19], s64 offen offset:{off}")
    A("s_cmp_eq_u32 s23, 3")
    A("s_cbranch_scc1 ffn_q3")
    for k in range(2):
        for tt in range(2):
            fin(acc2(7+k, tt), [prr(d, k) + 2*tt for d in (1, 2, 3)], XT+4*k+2*tt, GB+4*k, tt, 32*k)
    A("s_branch ffn_end")
    A("ffn_q3:")
    A("s_sub_u32 s64, s64, 32")
    for k in range(8): A(f"v_mov_b32 v{176+k}, 0")
    for k in range(2):
        for tt in range(2):
            fin(acc2(7+k, tt), [prr(d, k) + 2*tt for d in (1, 2, 3)], XT+4*(k+1)+2*tt, GB+4*(k+1), tt, 32*(k+1))
    for tt in range(2):
        fin(176+4*tt, [acc2(s_, 0) + 2*tt for s_ in range(4)], XT+2*tt, GB, tt, 0)
    A("ffn_end:")
    if PROF:
        A("s_waitcnt vmcnt(0)")
        P.stamp(); P.rt()
        P.flush(60, 24, 40, 8)
    A("ffn_done:\ns_endpgm")
```

```python
from common import *
E = lambda k, d: int(os.environ.get(k, str(d)))
KA_NLN, KA_NMOD, KA_NPK = 96, 54, 54
KA_M0, KA_L0, KA_P0 = 144, 200, 296
KA_GRID = KA_P0 + KA_NPK
KA_LDS = 36864

def gen_ka(A, name="ka_kernel"):
    A.raw(kernel_header(name))
    P = Prof(A, 70, 0)
    A(f"""
    s_load_dwordx16 s[4:19], s[0:1], 0
    s_load_dwordx4 s[20:23], s[0:1], {KA_C}
    s_load_dwordx2 s[24:25], s[0:1], {KA_WS}
    """)
    P.rt(); P.stamp()
    if E('SPF', 1):
        A(f"""
        s_cmp_ge_u32 s2, {E('SPFN', 16)}
        s_cbranch_scc1 ka_nspf
        s_getpc_b64 s[44:45]
        v_lshlrev_b32 v5, 7, v0
        v_cmp_gt_u32 vcc, kbf_kernel-ka_kernel, v5
        s_and_saveexec_b64 s[46:47], vcc
        s_cbranch_execz ka_spf2
        global_load_dword v126, v5, s[44:45]
        ka_spf2:
        s_mov_b64 exec, s[46:47]
        ka_nspf:
        """)
    A(f"""
    v_and_b32 v1, 63, v0              ; lane
    v_lshrrev_b32 v2, 6, v0           ; wave
    v_lshrrev_b32 v3, 3, v1           ; r
    v_and_b32 v4, 7, v1               ; c
    v_readfirstlane_b32 s26, v2
    s_mov_b32 s31, 0x20000
    """)
    if E('LNF', 1):
        A(f"""
        s_add_u32 s27, s2, {KA_L0}
        s_add_u32 s28, s2, {KA_M0 - KA_NLN}
        s_cmp_lt_u32 s2, {KA_NLN}
        s_cselect_b32 s27, s27, s28
        s_sub_u32 s28, s2, {KA_NLN + 56}
        s_cmp_lt_u32 s2, {KA_NLN + 56}
        s_cselect_b32 s27, s27, s28
        s_cmp_lt_u32 s2, {KA_P0}
        s_cselect_b32 s2, s27, s2
        """)
    A(f"""
    s_cmp_ge_u32 s2, {KA_M0}
    s_cbranch_scc1 ka_h1
    s_and_b32 s32, s2, 7
    s_lshr_b32 s33, s2, 3
    v_mul_u32_u24 v5, 9216, v3
    v_lshl_add_u32 v5, v4, 4, v5
    s_lshl_b32 s34, s33, 2
    s_add_u32 s34, s34, s26
    s_mul_i32 s34, s34, {8*9216}
    s_mul_i32 s35, s32, 1152
    s_add_u32 s34, s34, s35
    s_mul_i32 m0, s26, 9216
    s_mov_b32 s30, {D*F*2}
    s_waitcnt lgkmcnt(0)
    s_mov_b32 s28, s16
    s_and_b32 s29, s17, 0xffff
    """)
    for n in range(9):
        A(f"buffer_load_dwordx4 v5, s[28:31], s34 offen lds")
        if n < 8:
            A("s_add_u32 m0, m0, 1024")
            A("s_add_u32 s34, s34, 128")
    A(f"""
    s_branch ka_wpack
    ka_h1:
    s_cmp_ge_u32 s2, {KA_L0}
    s_cbranch_scc1 ka_h2
    s_cmp_ge_u32 s2, {KA_M0 + KA_NMOD}
    s_cbranch_scc1 ka_done
    s_sub_u32 s32, s2, {KA_M0}                 ; m
    v_mul_u32_u24 v5, 144, v2
    v_add_u32 v5, v5, v3                       ; 144w + r
    v_mul_u32_u24 v6, 6912, v5
    v_lshl_add_u32 v6, v4, 4, v6
    v_lshlrev_b32 v7, 1, v0
    s_lshl_b32 s33, s32, 7
    s_mov_b32 s30, {576*6912}
    s_mov_b32 s38, 1152
    s_mov_b32 s39, 0x20000
    s_waitcnt lgkmcnt(0)
    s_mov_b32 s28, s22
    s_and_b32 s29, s23, 0xffff
    s_mov_b32 s36, s20
    s_and_b32 s37, s21, 0xffff
    """)
    for k in range(3):
        A(f"buffer_load_ushort v{8+k}, v7, s[36:39], 0 offen offset:{512*k}")
    W = 32
    for i in range(18):
        A(f"buffer_load_dwordx4 {vr(W+4*i,4)}, v6, s[28:31], s33 offen")
        if i < 17: A(f"s_add_u32 s33, s33, {8*6912}")
    A(f"""
    s_branch ka_mod
    ka_h2:
    s_cmp_ge_u32 s2, {KA_P0}
    s_cbranch_scc1 ka_pack
    s_sub_u32 s27, s2, {KA_L0}
    s_and_b32 s32, s27, 7
    s_lshr_b32 s33, s27, 3
    s_mul_i32 s34, s33, 86
    s_lshr_b32 s34, s34, 8            ; idx/3
    s_lshl_b32 s32, s32, 2
    s_add_u32 s32, s32, s34           ; s2v
    s_mul_i32 s34, s34, 3
    s_sub_u32 s33, s33, s34           ; cg
    v_lshl_add_u32 v5, v2, 4, v3      ; s1 = 16w + r
    v_mul_u32_u24 v6, {32*1152}, v5
    v_lshl_add_u32 v6, v4, 4, v6
    v_add_u32 v7, {8*32*1152}, v6
    s_mul_i32 s45, s32, 1152
    s_mul_i32 s34, s33, 384
    s_add_u32 s35, s34, 384
    s_cmp_eq_u32 s33, 2
    s_cselect_b32 s35, 0, s35
    s_sub_u32 s36, s34, 384
    s_cmp_eq_u32 s33, 0
    s_cselect_b32 s36, 768, s36
    s_add_u32 s34, s34, s45
    s_add_u32 s35, s35, s45
    s_add_u32 s36, s36, s45
    s_mov_b32 s30, {SZ_ACT}
    s_waitcnt lgkmcnt(0)
    s_mov_b32 s28, s4
    s_and_b32 s29, s5, 0xffff
    """)
    P.stamp()
    X0, X1 = 32, 68
    for p, X in enumerate((X0, X1)):
        for i in range(9):
            A(f"buffer_load_dwordx4 {vr(X+4*i,4)}, v{6+p}, s[28:31], s{34+i//3} offen offset:{128*(i%3)}")
    A(f"""
    v_and_b32 v18, 15, v1
    v_lshrrev_b32 v19, 4, v1          ; g
    v_lshl_add_u32 v20, v2, 4, v18    ; j
    v_cmp_lt_u32 vcc, 32, v20         ; j > 32 -> imag
    v_subrev_u32 v21, 32, v20
    v_mov_b32 v22, s6
    v_mov_b32 v23, s7
    v_mov_b32 v24, s8
    v_mov_b32 v25, s9
    v_cndmask_b32 v21, v20, v21, vcc
    v_cndmask_b32 v22, v22, v24, vcc
    v_cndmask_b32 v23, v23, v25, vcc
    v_lshlrev_b32 v21, 17, v21
    v_lshl_add_u32 v21, v19, 4, v21
    v_add_co_u32 v22, vcc, v22, v21
    v_addc_co_u32 v23, vcc, 0, v23, vcc
    global_load_dwordx4 v[104:107], v[22:23], off
    global_load_dwordx4 v[108:111], v[22:23], off offset:64
    """)
    srd(A, 40, 24, SZ_ACT, WS_Z)
    LP = 400
    A(f"""
    s_mov_b32 s37, 0x3f803f80
    s_mov_b32 s38, 0xffff0000
    v_mul_u32_u24 v8, {LP}, v5
    v_lshl_add_u32 v8, v4, 4, v8
    v_bfe_u32 v9, v1, 2, 2            ; r'
    v_lshl_add_u32 v9, v19, 3, v9
    v_mul_u32_u24 v9, {LP}, v9
    v_and_b32 v10, 1, v1
    v_lshl_add_u32 v9, v10, 5, v9
    v_bfe_u32 v10, v1, 1, 1
    v_lshl_add_u32 v9, v10, 3, v9
    v_lshlrev_b32 v11, 5, v20
    v_add_u32 v11, s32, v11
    v_mul_u32_u24 v11, 1152, v11
    s_mul_i32 s39, s33, 384
    s_and_b32 s44, s32, 6
    v_add_u32 v13, 4, v19
    v_xor_b32 v12, s44, v19
    v_xor_b32 v13, s44, v13
    v_lshl_add_u32 v12, v12, 4, v11
    v_lshl_add_u32 v13, v13, 4, v11
    """)
    for r in range(4): A(f"v_mov_b32 v{24+r}, 0")
    for p, X in enumerate((X0, X1)):
        for i in range(9):
            if i % 3 == 0: A(f"s_waitcnt vmcnt({2 + 17 - (9*p + i + 2)})")
            for k in range(4):
                A(f"v_dot2_f32_bf16 v{24+2*p}, v{X+4*i+k}, s37, v{24+2*p}")
                A(f"v_dot2_f32_bf16 v{25+2*p}, v{X+4*i+k}, v{X+4*i+k}, v{25+2*p}")
    P.stamp()
    for mode in ("quad_perm:[1,0,3,2]", "quad_perm:[2,3,0,1]", "row_half_mirror"):
        for r in range(4):
            A(f"v_add_f32_dpp v{24+r}, v{24+r}, v{24+r} {mode} row_mask:0xf bank_mask:0xf")
    inv, eps = f2h(1.0/576), f2h(1e-5)
    for p in range(2):
        s_, q_ = 24+2*p, 25+2*p
        rs, nb = 28+2*p, 16+2*p
        A(f"""
        v_mul_f32 v{s_}, {inv}, v{s_}
        v_mul_f32 v{q_}, {inv}, v{q_}
        v_fma_f32 v{q_}, -v{s_}, v{s_}, v{q_}
        v_max_f32 v{q_}, 0, v{q_}
        v_add_f32 v{q_}, {eps}, v{q_}
        v_rsq_f32 v{rs}, v{q_}
        v_mul_f32 v{nb}, -v{s_}, v{rs}
        """)
    for p, X in enumerate((X0, X1)):
        rs, nb = 28+2*p, 16+2*p
        for k in range(12):
            src = X+k
            t = 112 + 2*(k & 3)
            A(f"v_lshlrev_b32 v{t}, 16, v{src}")
            A(f"v_and_b32 v{t+1}, s38, v{src}")
            A(f"v_pk_fma_f32 v[{t}:{t+1}], v[{t}:{t+1}], v[{rs}:{rs+1}], v[{nb}:{nb+1}] op_sel_hi:[1,0,0]")
            A(f"v_cvt_pk_bf16_f32 v{src}, v{t}, v{t+1}")
            if k % 4 == 3: A(f"ds_write_b128 v8, {vr(X+k-3,4)} offset:{8*LP*p + 128*(k//4)}")
    A("s_waitcnt lgkmcnt(0)\ns_barrier")
    P.stamp()
    if PROF: A("s_waitcnt lgkmcnt(0)")
    AF, ACC = 32, 80
    A("s_waitcnt vmcnt(0)")
    for hf in range(2):
        for ks in range(2):
            for T in range(6):
                for h in range(2):
                    off = (32*ks + 4*h) * LP + 192*hf + 64*(T >> 1) + 16*(T & 1)
                    A(f"ds_read_b64_tr_b16 {vr(AF+4*(6*ks+T)+2*h,2)}, v9 offset:{off}")
        for ks in range(2):
            for T in range(6):
                idx = 6*ks+T
                if idx % 2 == 0: A(f"s_waitcnt lgkmcnt({min(15, 2*(10-idx))})")
                c = "0" if ks == 0 else vr(ACC+4*T,4)
                A(f"v_mfma_f32_16x16x32_bf16 {vr(ACC+4*T,4)}, {vr(AF+4*idx,4)}, {vr(104+4*ks,4)}, {c}")
        for b in range(3):
            a0 = ACC + 8*b
            o = (112 if hf == 0 else 16) + 4*b
            bb = 3*hf + b
            for k in range(4):
                A(f"v_cvt_pk_bf16_f32 v{o+k}, v{a0+2*k}, v{a0+2*k+1}")
            A(f"buffer_store_dwordx4 {vr(o,4)}, v{12+(bb&1)}, s[40:43], s39 offen offset:{128*(bb>>1)}")
    if PROF:
        A("s_waitcnt vmcnt(0)")
        P.stamp(); P.rt()
    P.flush(24, 26, 44, 8)
    A("ka_done:\ns_endpgm")
    P.n = 2

    A.label("ka_wpack")
    P.slot = 4
    P.stamp()
    A(f"""
    v_lshlrev_b32 v20, 4, v1
    s_lshl_b32 s46, s33, 2
    s_add_u32 s46, s46, s26
    s_lshl_b32 s46, s46, 10
    s_cmp_ge_u32 s46, code_end-kbf_kernel
    s_cbranch_scc1 ka_nopf
    s_getpc_b64 s[44:45]
    ka_pc:
    s_add_u32 s44, s44, kbf_kernel-ka_pc
    s_addc_u32 s45, s45, 0
    v_add_u32 v100, s46, v20
    global_load_dwordx4 v[112:115], v100, s[44:45]
    s_waitcnt vmcnt(1)
    s_branch ka_pf
    ka_nopf:
    s_waitcnt vmcnt(0)
    ka_pf:
    """)
    tail_start = len(A.items)
    A(f"""
    v_lshrrev_b32 v21, 5, v1
    v_mul_u32_u24 v21, 9216, v21
    v_bfe_u32 v22, v1, 2, 3
    v_lshl_add_u32 v21, v22, 7, v21
    v_and_b32 v22, 3, v1
    v_lshl_add_u32 v21, v22, 3, v21
    s_mul_i32 s36, s26, 288
    """)
    for T in range(9):
        A(f"""
        s_add_u32 s37, s36, {32*T}
        s_lshr_b32 s38, s37, 7
        s_lshl_b32 s38, s38, 10
        s_and_b32 s37, s37, 127
        s_add_u32 s37, s37, s38
        v_add_u32 v{8+T}, s37, v21
        """)
    A(f"""
    s_lshl_b32 s48, s32, 1
    s_lshr_b32 s49, s26, 1
    s_add_u32 s48, s48, s49                    ; fb
    s_and_b32 s49, s48, 3
    s_mul_i32 s49, s49, 9
    s_lshr_b32 s49, s49, 1
    s_sub_u32 s33, s33, s49
    s_cselect_b32 s49, 18, 0
    s_add_u32 s33, s33, s49
    s_mul_i32 s48, s48, {36*9216}
    s_and_b32 s50, s26, 1
    s_mul_i32 s50, s50, 9                      ; t0
    s_mul_i32 s51, s33, {PARTS[0]}
    s_mul_i32 s52, s33, {PARTS[1]}
    s_add_u32 s52, s52, {17*PST[1]}
    s_mul_i32 s53, s33, {PARTS[2]}
    s_add_u32 s53, s53, {17*PST[2]}
    """)
    srd(A, 40, 24, 2*SZ_WP, WS_W1P)
    setup = A.items[tail_start:]; del A.items[tail_start:]
    idx = max(i for i, it in enumerate(A.items) if isinstance(it, str) and it == "ka_wpack:")
    A.items[idx+1:idx+1] = setup
    A("s_barrier")
    P.stamp()
    if PROF: A("s_waitcnt lgkmcnt(0)")
    for T in range(9):
        A(f"ds_read_b64_tr_b16 {vr(32+4*T,2)}, v{8+T}")
        A(f"ds_read_b64_tr_b16 {vr(34+4*T,2)}, v{8+T} offset:{2*9216}")
    for T in range(9):
        A(f"""
        s_add_u32 s36, s50, {T}
        s_cmp_lt_u32 s36, {PST[1]}
        s_cselect_b32 s37, s51, s52
        s_cmp_lt_u32 s36, {PST[2]}
        s_cselect_b32 s37, s37, s53
        s_add_u32 s36, s36, s37
        s_lshl_b32 s36, s36, 10
        s_add_u32 s36, s36, s48
        s_waitcnt lgkmcnt({min(15, 16-2*T)})
        buffer_store_dwordx4 {vr(32+4*T,4)}, v20, s[40:43], s36 offen
        """)
    P.stamp()
    if PROF:
        A("s_waitcnt vmcnt(0)")
        P.stamp(); P.rt()
        P.flush(24, 26, 44, 8)
    A("s_endpgm")
    P.n = 2

    A.label("ka_mod")
    P.slot = 5
    P.stamp()
    srd(A, 40, 24, 0x8000, WS_MOD)
    A("s_waitcnt vmcnt(18)")
    A("v_lshlrev_b32 v7, 2, v0")
    for k in range(3):
        A(f"""
        v_lshlrev_b32 v{8+k}, 16, v{8+k}
        v_mul_f32 v11, 0x3fb8aa3b, v{8+k}
        v_exp_f32 v11, -v11
        v_add_f32 v11, 1.0, v11
        v_rcp_f32 v11, v11
        v_mul_f32 v11, v11, v{8+k}
        v_cvt_pk_bf16_f32 v11, v11, v11
        v_lshlrev_b32 v11, 16, v11
        ds_write_b32 v7, v11 offset:{1024*k}
        """)
    A("v_lshlrev_b32 v5, 2, v5\ns_waitcnt lgkmcnt(0)\ns_barrier")
    SV = 104
    for i in range(18):
        A(f"ds_read_b32 v{SV+i}, v5 offset:{32*i}")
    for k in range(8): A(f"v_mov_b32 v{16+k}, 0")
    A("s_mov_b32 s34, 0xffff0000")
    A("s_waitcnt lgkmcnt(0)")
    for i in range(18):
        if i % 2 == 0: A(f"s_waitcnt vmcnt({16-i})")
        for k in range(4):
            A(f"v_lshlrev_b32 v12, 16, v{W+4*i+k}")
            A(f"v_and_b32 v13, s34, v{W+4*i+k}")
            A(f"v_fmac_f32 v{16+2*k}, v12, v{SV+i}")
            A(f"v_fmac_f32 v{17+2*k}, v13, v{SV+i}")
    P.stamp()
    for k in range(8):
        A(f"v_add_f32_dpp v{16+k}, v{16+k}, v{16+k} row_ror:8 row_mask:0xf bank_mask:0xf")
    for sw in ("v_permlane16_swap_b32", "v_permlane32_swap_b32"):
        for k in range(8): A(f"v_mov_b32 v{24+k}, v{16+k}")
        for k in range(8): A(f"{sw} v{16+k}, v{24+k}")
        for k in range(8): A(f"v_add_f32 v{16+k}, v{16+k}, v{24+k}")
    A(f"""
    v_lshlrev_b32 v12, 8, v2
    v_lshl_add_u32 v12, v4, 5, v12
    ds_write_b128 v12, v[16:19] offset:3072
    ds_write_b128 v12, v[20:23] offset:3088
    s_waitcnt lgkmcnt(0)
    s_barrier
    s_cmp_lg_u32 s26, 0
    s_cbranch_scc1 ka_done2
    """)
    for i in range(4):
        A(f"ds_read_b32 v{W+i}, v7 offset:{3072+256*i}")
    A(f"""
    s_mul_i32 s35, s32, 57
    s_lshr_b32 s35, s35, 9                     ; chunk = m/9
    s_waitcnt lgkmcnt(0)
    v_add_f32 v{W}, v{W}, v{W+1}
    v_add_f32 v{W+2}, v{W+2}, v{W+3}
    v_add_f32 v{W}, v{W}, v{W+2}
    v_cvt_pk_bf16_f32 v{W}, v{W}, v{W}
    v_lshlrev_b32 v{W}, 16, v{W}
    s_cmp_eq_u32 s35, 1
    s_cbranch_scc1 ka_mod_plus1
    s_cmp_eq_u32 s35, 4
    s_cbranch_scc0 ka_mod_store
    ka_mod_plus1:
    v_add_f32 v{W}, 1.0, v{W}
    v_cvt_pk_bf16_f32 v{W}, v{W}, v{W}
    v_lshlrev_b32 v{W}, 16, v{W}
    ka_mod_store:
    s_lshl_b32 s33, s32, 8
    buffer_store_dword v{W}, v7, s[40:43], s33 offen
    s_sub_u32 s36, s35, 3
    s_cmp_gt_u32 s36, 1
    s_cbranch_scc1 ka_done2
    s_mul_i32 s37, s35, 9
    s_sub_u32 s37, s32, s37                    ; m % 9
    s_lshl_b32 s37, s37, 7
    s_xor_b32 s36, s36, 1
    s_mul_i32 s36, s36, 1152
    s_add_u32 s37, s37, s36
    s_add_u32 s40, s24, {WS_CSB}
    s_addc_u32 s41, s25, 0
    s_and_b32 s41, s41, 0xffff
    v_lshlrev_b32 v7, 1, v0
    buffer_store_short_d16_hi v{W}, v7, s[40:43], s37 offen
    ka_done2:
    """)
    if PROF:
        A("s_waitcnt vmcnt(0)")
        P.stamp(); P.rt()
        P.flush(24, 26, 44, 8)
    A("s_endpgm")

    A.label("ka_pack")
    A(f"""
    s_cmp_ge_u32 s2, {KA_GRID}
    s_cbranch_scc1 ka_done3
    s_sub_u32 s32, s2, {KA_P0}
    s_lshl_b32 s33, s32, 2
    s_add_u32 s33, s33, s26                    ; u
    s_mul_i32 s34, s33, 171
    s_lshr_b32 s34, s34, 9                     ; u/3
    s_mul_i32 s35, s34, 3
    s_sub_u32 s35, s33, s35                    ; u%3
    s_cmp_ge_u32 s34, 36
    s_cselect_b32 s36, 36, 0
    s_sub_u32 s36, s34, s36                    ; eps
    v_and_b32 v3, 15, v1
    v_lshrrev_b32 v4, 4, v1
    v_lshlrev_b32 v6, 18, v3
    v_lshl_add_u32 v6, v4, 3, v6
    v_mul_u32_u24 v3, 1152, v3
    v_lshl_add_u32 v3, v4, 4, v3
    s_mul_i32 s36, s36, {16*1152}
    s_mul_i32 s37, s35, 384
    s_add_u32 s36, s36, s37
    s_mov_b32 s30, {D*D*2}
    s_waitcnt lgkmcnt(0)
    s_cmp_ge_u32 s34, 36
    s_cselect_b32 s28, s12, s10
    s_cselect_b32 s29, s13, s11
    s_and_b32 s29, s29, 0xffff
    """)
    for k in range(6):
        A(f"buffer_load_dwordx4 {vr(8+4*k,4)}, v3, s[28:31], s36 offen offset:{64*k}")
    A(f"""
    s_bitcmp1_b32 s33, 1
    s_cselect_b32 s40, s8, s6
    s_cselect_b32 s41, s9, s7
    s_and_b32 s41, s41, 0xffff
    s_cmp_lt_u32 s33, 132
    s_cselect_b32 s42, {S*S*2}, 0
    s_mov_b32 s43, 0x20000
    s_lshr_b32 s44, s33, 2
    s_and_b32 s45, s33, 1
    s_lshl_b32 s45, s45, 10
    s_add_u32 s44, s44, s45
    s_lshl_b32 s44, s44, 12
    buffer_load_dwordx2 v[36:37], v6, s[40:43], s44 offen
    buffer_load_dwordx2 v[38:39], v6, s[40:43], s44 offen offset:32
    s_mul_i32 s38, s33, 6144
    s_add_u32 s39, s38, 4096
    v_lshlrev_b32 v5, 4, v1
    """)
    srd(A, 48, 24, SZ_F2P, WS_F2P)
    srd(A, 52, 24, SZ_WDP, WS_WDP)
    srd(A, 56, 24, SZ_FLB, WS_FLB)
    A(f"""
    v_mov_b32 v32, 0
    v_mov_b32 v33, 0
    v_mov_b32 v34, 0
    v_mov_b32 v35, 0
    s_lshl_b32 s46, s33, 10
    buffer_store_dwordx4 v[32:35], v5, s[56:59], s46 offen
    s_waitcnt vmcnt(3)
    """)
    for k in range(6):
        so = "s38" if k < 4 else "s39"
        A(f"buffer_store_dwordx4 {vr(8+4*k,4)}, v5, s[52:55], {so} offen offset:{1024*(k%4)}")
    A("s_waitcnt vmcnt(7)")
    A("buffer_store_dwordx4 v[36:39], v5, s[48:51], s46 offen")
    A("ka_done3:\ns_endpgm")
    return dict(name=name, vgpr=128, sgpr=100, accum=128, grid=KA_GRID, block=256, lds=KA_LDS)
```

```python
from common import *
import ffn
from ffn import E, STG

KZ = 2 * STG
KB_MODL = KZ + 73728
KBF_LDS = KB_MODL + 14336

def w1_prefetch(A, sw, stmp, ssrd):
    srd(A, ssrd, 14, 2*SZ_WP, WS_W1P)
    A(f"""
    s_and_b32 s{stmp}, s2, 6
    s_lshl_b32 s{stmp}, s{stmp}, 1
    s_bfe_u32 s{stmp+1}, s2, 0x20003
    s_add_u32 s{stmp}, s{stmp}, s{stmp+1}          ; fb
    s_mul_i32 s{stmp}, s{stmp}, {36*9216}
    s_mul_i32 s{stmp+1}, s{sw}, 9216
    s_add_u32 s{stmp}, s{stmp}, s{stmp+1}
    v_lshlrev_b32 v3, 4, v1
    """)
    for g in range(2):
        for n in range(9):
            if n % 4 == 0:
                A(f"s_add_u32 s{stmp+2}, s{stmp}, {g*STG + 1024*n}")
                A(f"s_add_u32 m0, s{stmp+1}, {g*STG + 1024*n}")
            A(f"buffer_load_dwordx4 v3, s[{ssrd}:{ssrd+3}], s{stmp+2} offen offset:{1024*(n%4)} lds")

def wblock_prefetch_setup(A, sw, st, vo):
    A(f"""
    s_and_b32 s{st}, s2, 6
    s_lshl_b32 s{st}, s{st}, 1
    s_bfe_u32 s{st+1}, s2, 0x20003
    s_add_u32 s{st}, s{st}, s{st+1}
    s_mul_i32 s{st}, s{st}, {36*9216}
    s_lshr_b32 s{st+1}, s2, 5
    s_lshl_b32 s{st+1}, s{st+1}, 2
    s_add_u32 s{st+1}, s{st+1}, s{sw}
    s_lshl_b32 s{st+1}, s{st+1}, 7
    v_lshlrev_b32 v{vo}, 12, v1
    v_add_u32 v{vo}, s{st+1}, v{vo}
    v_add_u32 v{vo+1}, {64*4096}, v{vo}
    v_cmp_lt_u32 vcc, 16, v1
    v_mov_b32 v{vo+2}, 0x7ffffff0
    v_cndmask_b32 v{vo+1}, v{vo+1}, v{vo+2}, vcc
    """)

def l2_prefetch(A, vdst):
    if not E('L2PF', 0): return 0
    srd(A, 8, 14, SZ_WDP, WS_WDP)
    A(f"""
    s_lshl_b32 s12, s21, 2
    s_add_u32 s12, s12, s24
    s_mul_i32 s12, s12, 10368
    """)
    for n in range(11):
        off = 1024*(n % 4) if n < 10 else 1152
        A(f"buffer_load_dwordx4 {vr(vdst + 4*n, 4)}, v15, s[8:11], s12 offen offset:{off}")
        if n in (3, 7): A("s_add_u32 s12, s12, 4096")
    return 11

def gen_kbf(A, name="kbf_kernel"):
    A.raw(kernel_header(name))
    P = Prof(A, 84, 1)
    A(f"""
    s_cmp_ge_u32 s2, 256
    s_cbranch_scc1 ffn_done
    """)
    P.rt()
    P.stamp()
    A(f"""
    s_load_dwordx2 s[4:5], s[0:1], {KA_X}
    s_load_dwordx2 s[14:15], s[0:1], {KA_WS}
    s_load_dwordx2 s[18:19], s[0:1], {KA_W2}
    s_and_b32 s20, s2, 7                          ; xcd
    s_lshr_b32 s21, s2, 3                         ; idx
    s_mul_i32 s22, s21, 43
    s_lshr_b32 s22, s22, 8                        ; idx/6
    s_mul_i32 s23, s22, 6
    s_sub_u32 s23, s21, s23                       ; et
    s_lshl_b32 s22, s22, 3
    s_add_u32 s22, s22, s20                       ; class
    v_and_b32 v1, 63, v0
    v_lshrrev_b32 v2, 6, v0
    v_lshlrev_b32 v15, 4, v1
    v_readfirstlane_b32 s24, v2                   ; wave
    s_cmp_gt_u32 s22, 32
    s_cbranch_scc1 kb_side
    s_lshr_b32 s25, s24, 1                        ; p
    s_and_b32 s26, s24, 1                         ; dh
    s_and_b32 s27, s22, 31
    s_cmp_lg_u32 s27, 0
    s_cselect_b32 s27, -1, 0
    s_and_b32 s28, s27, 32
    s_add_u32 s28, s28, s22                       ; j_im
    s_cmp_lg_u32 s25, 0
    s_cselect_b32 s29, s28, s22
    s_mul_i32 s29, s29, 36864
    s_mul_i32 s30, s26, 18432
    s_add_u32 s29, s29, s30                       ; Z soffset
    s_mul_i32 s31, s24, 18432
    s_add_u32 s31, s31, {KZ}
    s_waitcnt lgkmcnt(0)
    """)
    VM = Cnt(63)
    def vm(tag, txt): A(txt); VM.issue(tag)
    def waitvm(pred):
        n = VM.need(pred)
        if n is not None: A(f"s_waitcnt vmcnt({n})")
    for _ in range(l2_prefetch(A, 160)): VM.issue("pf")
    srd(A, 32, 14, SZ_ACT, WS_Z)
    A("s_mul_i32 s40, s23, 3072")
    for c in range(6):
        A("s_add_u32 s41, s29, s40")
        A("s_add_u32 m0, s31, s40")
        for n in range(3):
            vm("z", f"buffer_load_dwordx4 v15, s[32:35], s41 offen offset:{1024*n} lds")
        if c < 5:
            A("s_add_u32 s40, s40, 3072")
            A("s_cmp_eq_u32 s40, 18432")
            A("s_cselect_b32 s40, 0, s40")
    srd(A, 44, 14, SZ_F2P, WS_F2P)
    B1, B2 = 20, 28
    A(f"""
    s_lshl_b32 s40, s22, 12
    s_lshl_b32 s41, s25, 11
    s_add_u32 s42, s40, s41                       ; B1: m = p
    s_xor_b32 s41, s41, 2048
    s_add_u32 s43, s40, s41                       ; B2: m = 1-p
    """)
    for tt in range(2):
        vm("z", f"buffer_load_dwordx4 {vr(B1+4*tt,4)}, v15, s[44:47], s42 offen offset:{1024*tt}")
        vm("z", f"buffer_load_dwordx4 {vr(B2+4*tt,4)}, v15, s[44:47], s43 offen offset:{1024*tt}")
    srd(A, 36, 14, 13824, WS_MOD)
    A(f"""
    s_mul_i32 s40, s24, 3424
    s_add_u32 m0, s40, {KB_MODL}
    """)
    for k in range(4):
        vm("z", f"buffer_load_dwordx4 v15, s[36:39], s40 offen offset:{1024*k if k < 3 else 2528} lds")
    srd(A, 52, 14, SZ_WDP if not E('NOWD', 0) else 0, WS_WDP)
    A(f"""
    v_add_u32 v16, 4096, v15
    v_add_u32 v17, 8192, v15
    s_mul_i32 s62, s25, 36
    s_mul_i32 s63, s23, 6
    s_add_u32 s62, s62, s63
    s_mul_i32 s62, s62, 18
    s_mul_i32 s63, s26, 9
    s_add_u32 s62, s62, s63
    s_lshl_b32 s62, s62, 10
    """)
    for Et in range(6):
        A(f"s_add_u32 s{56+Et}, s62, {18*1024*Et}")
    def wd(a):
        for Et in range(6):
            vm(("wd", a), f"buffer_load_dwordx4 {vr(4*(6*a+Et),4,'a')}, v{15+a//4}, s[52:55], s{56+Et} offen offset:{1024*(a%4)}")
    WPRE = E('WPRE', 1)
    for a in range(WPRE): wd(a)
    A(f"""
    v_and_b32 v4, 15, v1                          ; tok
    v_lshrrev_b32 v5, 4, v1                       ; g
    v_lshlrev_b32 v6, 6, v4
    v_add_u32 v6, s22, v6                         ; t (tt=0)
    s_cmp_lg_u32 s25, 0
    s_cselect_b32 s42, 0x80008000, 0              ; m1
    v_bfe_u32 v12, v1, 2, 2                       ; r'
    v_lshl_add_u32 v12, v5, 2, v12                ; row = 4g + r'
    v_and_b32 v13, 6, v12
    v_lshlrev_b32 v13, 4, v13                     ; F = 32*((row>>1)&3)
    v_mul_u32_u24 v12, 1152, v12
    v_and_b32 v14, 3, v1
    v_lshl_add_u32 v12, v14, 3, v12               ; + 8c'
    s_lshl_b32 s64, s26, 9                        ; 512 dh
    s_add_u32 s64, s64, {KZ}
    v_add_u32 v12, s64, v12
    s_lshl_b32 s65, s26, 1                        ; 2 dh
    """)
    for k in range(4):
        A(f"""
        s_add_u32 s66, s65, {k}
        s_lshr_b32 s67, s66, 2
        s_lshl_b32 s67, s67, 7
        s_and_b32 s66, s66, 3
        s_lshl_b32 s66, s66, 5
        v_xor_b32 v14, s66, v13
        v_add3_u32 v{8+k}, v12, v14, s67
        """)
    A(f"""
    s_mul_i32 s66, s26, 1152
    s_add_u32 s66, s66, {KB_MODL}
    v_lshlrev_b32 v18, 5, v5
    v_add_u32 v18, s66, v18
    s_or_b32 s67, s22, s25
    s_cmp_eq_u32 s67, 0
    s_cselect_b32 s67, {f2h(2048.0)}, 0
    v_mov_b32 v36, s67
    v_cmp_eq_u32 vcc, 0, v4
    v_cndmask_b32 v36, 0, v36, vcc
    s_lshr_b32 s68, s24, 1                        ; dir
    s_and_b32 s69, s24, 1                         ; tt
    s_lshl_b32 s70, s69, 10                       ; 64*16*tt
    s_add_u32 s70, s70, s22
    s_mul_i32 s71, s23, 192
    s_cmp_lg_u32 s68, 0
    s_cselect_b64 vcc, -1, 0
    """)
    for n in range(3):
        A(f"""
        v_add_u32 v3, {64*n}, v1
        v_mul_u32_u24 v7, 5462, v3
        v_lshrrev_b32 v7, 16, v7                  ; row = q/12
        v_mul_u32_u24 v37, 12, v7
        v_sub_u32 v3, v3, v37
        v_lshlrev_b32 v7, 6, v7
        v_add_u32 v7, s70, v7                     ; t
        v_sub_u32 v37, 2048, v7
        v_cndmask_b32 v7, v7, v37, vcc
        v_mul_u32_u24 v7, 1152, v7
        v_lshl_add_u32 v{233+n}, v3, 4, v7
        """)
    A(f"""
    s_mul_i32 s43, s24, 3072
    v_mul_u32_u24 v38, 192, v4
    v_lshl_add_u32 v38, v5, 3, v38
    v_add_u32 v38, s43, v38
    """)
    srd(A, 72, 4, SZ_ACT)
    W2SETUP = len(A.items)
    waitvm(lambda t: t == "z")
    A("s_mov_b32 s66, 0x80008000")
    for k in range(8):
        A(f"v_xor_b32 v{B1+k}, s42, v{B1+k}")
        A(f"v_xor_b32 v{B2+k}, s66, v{B2+k}")
        A(f"v_and_b32 v{B2+k}, s27, v{B2+k}")
    A("s_barrier")
    P.stamp()
    if PROF: A("s_waitcnt lgkmcnt(0)")
    YACC, AF, A2, HF, SC = 40, 88, 120, 152, 168
    GA, CB = 168, 192
    def read_ops(a):
        s = a & 1
        o = []
        for Ti in range(2):
            T = 2*a + Ti
            for ks in range(2):
                for h in range(2):
                    off = 128*(T >> 2) + 18432*h + 36864*ks
                    o.append(f"ds_read_b64_tr_b16 {vr(AF+16*s+4*(2*Ti+ks)+2*h,2)}, v{8+(T&3)} offset:{off}")
        for k in range(2):
            o.append(f"ds_read_b128 {vr(SC+16*s+4*k,4)}, v18 offset:{2304+128*a+16*k}")
            o.append(f"ds_read_b128 {vr(SC+16*s+8+4*k,4)}, v18 offset:{128*a+16*k}")
        return o
    def reads(a):
        for x in read_ops(a): A(x)
    def s2mfma(a, fill=()):
        s = a & 1
        fill = list(fill)
        for ks in range(2):
            for Ti in range(2):
                for tt in range(2):
                    d = vr(A2+16*s+4*(2*Ti+tt),4)
                    c = "0" if ks == 0 else d
                    B = (B1 if ks == 0 else B2) + 4*tt
                    A(f"v_mfma_f32_16x16x32_bf16 {d}, {vr(AF+16*s+4*(2*Ti+ks),4)}, {vr(B,4)}, {c}")
                    for f in fill[:2]: f()
                    fill = fill[2:]
        for f in fill: f()
    def scale_ops(a):
        s = a & 1
        sc = SC + 16*s
        o = []
        for tt in (1, 0):
            for Ti in range(2):
                for k in range(4):
                    r = A2+16*s+4*(2*Ti+tt)+k
                    o.append(f"v_mul_f32 v{r}, v{r}, v{sc+4*Ti+k}")
            if tt == 0:
                blk = [f"s_cbranch_scc0 kb_nd{a}"]
                for Ti in range(2):
                    for k in range(4):
                        blk.append(f"v_fmac_f32 v{A2+16*s+8*Ti+k}, v{sc+8+4*Ti+k}, v36")
                blk.append(f"kb_nd{a}:")
                o.append("s_cmp_lg_u32 s67, 0\n" + "\n".join(blk))
            for Ti in range(2):
                for k in range(2):
                    r = A2+16*s+4*(2*Ti+tt)+2*k
                    o.append(f"v_cvt_pk_bf16_f32 v{HF+8*s+4*tt+2*Ti+k}, v{r}, v{r+1}")
        return o
    def dft(a, fill):
        s = a & 1
        n = 0
        for Et in range(6):
            for tt in range(2):
                d = vr(YACC+4*(2*Et+tt),4)
                c = "0" if a == 0 else d
                A(f"v_mfma_f32_16x16x32_bf16 {d}, {vr(4*(6*a+Et),4,'a')}, {vr(HF+8*s+4*tt,4)}, {c}")
                n += 1
                if n >= 1:
                    for x in fill[:2]: A(x)
                    fill = fill[2:]
        for x in fill: A(x)
    def xloads():
        for n in range(3):
            A(f"s_add_u32 m0, s43, {1024*n}")
            vm("x", f"buffer_load_dwordx4 v{233+n}, s[72:75], s71 offen lds")
    WA = E('WA', 4)
    def w2unit():
        for n in range(9):
            A(f"""
            v_add_u32 v3, {64*n}, v1
            v_mul_u32_u24 v7, 1821, v3
            v_lshrrev_b32 v7, 16, v7
            v_mul_u32_u24 v37, 36, v7
            v_sub_u32 v3, v3, v37
            v_lshlrev_b32 v3, 4, v3
            v_mul_u32_u24 v37, 1152, v7
            v_add_u32 v{224+n}, v3, v37
            """)
        srd(A, 8, 18, D*F*2)
        A(f"""
        s_mul_i32 s13, s22, 6
        s_add_u32 s13, s13, s23                   ; u
        s_lshr_b32 s40, s13, 3
        s_bfe_u32 s41, s13, 0x20001
        s_mul_i32 s12, s41, 1152
        s_lshl_b32 s40, s40, 6
        s_add_u32 s12, s12, s40
        s_lshl_b32 s40, s24, 4
        s_add_u32 s12, s12, s40
        s_mul_i32 s12, s12, 1152
        s_and_b32 s40, s13, 1
        s_mul_i32 s40, s40, 576
        s_add_u32 s12, s12, s40
        s_cmp_lt_u32 s13, 144
        s_cselect_b32 s12, s12, 0x70000000
        s_mul_i32 s40, s24, 9216
        """)
    def w2dma(n):
        A(f"s_add_u32 m0, s40, {STG + 1024*n}")
        vm("w2u", f"buffer_load_dwordx4 v{224+n}, s[8:11], s12 offen lds")
    tail = A.items[W2SETUP:]; del A.items[W2SETUP:]
    w2unit()
    A(f"""
    s_mul_i32 s76, s24, 12288
    s_add_u32 s76, s76, {KZ}
    v_add_u32 v39, s76, v15
    s_mul_i32 s76, s23, 384
    s_add_u32 s76, s76, {KB_MODL}
    v_lshlrev_b32 v2, 4, v5
    v_add_u32 v2, s76, v2
    s_sub_u32 s77, 64, s22
    s_cmp_lg_u32 s68, 0
    s_cselect_b32 s77, s77, s22                   ; beta
    s_cselect_b32 s48, -1.0, 1.0
    s_lshl_b32 s79, s77, 1
    s_add_u32 s79, s79, s69                       ; tau16
    s_lshl_b32 s78, s79, 4
    v_add_u32 v244, s78, v4                       ; tau
    v_lshlrev_b32 v244, 6, v244
    s_mul_i32 s80, s23, 3
    s_mul_i32 s79, s79, 18
    s_add_u32 s79, s79, s80
    s_lshl_b32 s79, s79, 10
    s_lshl_b32 s80, s23, 3
    s_mov_b32 s81, 0xffff0000
    s_mov_b32 s82, 0x3f803f80
    s_lshl_b32 s76, s69, 10
    s_add_u32 s76, s76, {KZ}
    v_add_u32 v245, s76, v15
    s_lshl_b32 s83, s77, 7
    s_add_u32 s83, s83, s80
    s_lshl_b32 s76, s69, 2
    s_add_u32 s83, s83, s76
    s_add_u32 s83, s83, {FL_X}
    s_and_b32 s76, s68, s27
    s_cmp_lg_u32 s76, s68
    s_cselect_b32 s83, 0x70000000, s83
    v_lshrrev_b32 v6, 2, v1
    v_mul_u32_u24 v6, 576, v6
    v_and_b32 v7, 3, v1
    v_lshl_add_u32 v6, v7, 3, v6
    s_mul_i32 s76, s68, {32*576}
    s_mul_i32 s78, s69, 288
    s_add_u32 s76, s76, s78
    s_add_u32 s76, s76, {STG}
    v_add_u32 v6, s76, v6
    """)
    A.items += tail
    reads(0)
    reads(1)
    for a in range(WPRE, WA): wd(a)
    A("s_waitcnt lgkmcnt(12)")
    s2mfma(0)
    for x in scale_ops(0): A(x)
    for a in range(9):
        fill = []
        if a + 2 < 9: fill += [(lambda x=x: A(x)) for x in read_ops(a+2)]
        if a + WA < 9:
            fill += [(lambda Et=Et, aa=a+WA: vm(("wd", aa), f"buffer_load_dwordx4 {vr(4*(6*aa+Et),4,'a')}, v{15+aa//4}, s[52:55], s{56+Et} offen offset:{1024*(aa%4)}")) for Et in range(6)]
        if a + WA == 9: fill.append(xloads)
        if a == E('W1PFA', 2) and E('WPF', 0):
            def w1pf():
                srd(A, 32, 14, 2*SZ_WP, WS_W1P)
                wblock_prefetch_setup(A, 24, 28, 246)
                vm("pf", "buffer_load_dword v249, v246, s[32:35], s28 offen")
                vm("pf", "buffer_load_dword v250, v247, s[32:35], s28 offen")
            fill.append(w1pf)
        if a + WA == 10: fill += [(lambda n=n: w2dma(n)) for n in range(9)]
        if a + 1 < 9:
            A("s_waitcnt lgkmcnt(0)")
            s2mfma(a+1, fill)
        if a == 7: A("s_barrier")
        waitvm(lambda t: t == ("wd", a))
        if a < 8: dft(a, scale_ops(a+1))
        else:
            R = ffn.Rec()
            for k in range(6):
                R(f"ds_read_b128 {vr(GA+4*k,4)}, v2 offset:{1152*4+64*k}")
                R(f"ds_read_b128 {vr(CB+4*k,4)}, v2 offset:{2304*4+64*k}")
            R("v_mov_b32 v12, s48\nv_mov_b32 v17, v244\nv_mov_b32 v9, v245\nv_mov_b32 v18, 0\nv_mov_b32 v19, 0")
            srd(R, 36, 14, SZ_ACT, WS_X1S)
            srd(R, 44, 14, SZ_STAT, WS_STAT)
            srd(R, 52, 14, SZ_FLB, WS_FLB)
            dft(a, R.l)
    P.stamp()
    for i in range(12):
        A(f"ds_write_b128 v39, {vr(YACC+4*i,4)} offset:{1024*i}")
    waitvm(lambda t: t in ("w2u", "x"))
    X1R = 232
    for k in range(6):
        A(f"ds_read_b64 {vr(X1R+2*k,2)}, v38 offset:{32*k}")
    A(f"""
    s_waitcnt lgkmcnt(6)
    s_barrier
    s_cmp_lg_u32 s83, 0x70000000
    s_cbranch_scc0 kb_fin
    """)
    PR = 40
    for Et in range(6):
        for w in range(4):
            A(f"ds_read_b128 {vr(PR+24*w+4*Et,4)}, v9 offset:{12288*w+2048*Et}")
    for k in range(12):
        if k % 2 == 0: A(f"s_waitcnt lgkmcnt({min(15, 20 - 2*k)})" if not PROF else "s_waitcnt lgkmcnt(0)")
        r = PR + 2*k
        x = X1R + k
        A(f"v_pk_add_f32 {vr(r,2)}, {vr(r,2)}, {vr(r+24,2)}")
        A(f"v_pk_add_f32 {vr(r+48,2)}, {vr(r+48,2)}, {vr(r+72,2)}")
        A(f"v_lshlrev_b32 v20, 16, v{x}")
        A(f"v_pk_fma_f32 {vr(r,2)}, {vr(r+48,2)}, v[12:13], {vr(r,2)} op_sel_hi:[1,0,1]")
        A(f"v_and_b32 v21, s81, v{x}")
        A(f"v_pk_fma_f32 {vr(r,2)}, {vr(r,2)}, {vr(GA+2*k,2)}, v[20:21]")
        A(f"v_cvt_pk_bf16_f32 v{x}, v{r}, v{r+1}")
        A(f"v_lshlrev_b32 v22, 16, v{x}")
        A(f"v_and_b32 v23, s81, v{x}")
        A(f"v_dot2_f32_bf16 v18, v{x}, s82, v18")
        A(f"v_dot2_f32_bf16 v19, v{x}, v{x}, v19")
        A(f"v_pk_mul_f32 v[22:23], v[22:23], {vr(CB+2*k,2)}")
        A(f"v_cvt_pk_bf16_f32 v{24+k}, v22, v23")
        if k % 4 == 3:
            A(f"buffer_store_dwordx4 {vr(24+k-3,4)}, v15, s[36:39], s79 offen offset:{1024*(k//4)} sc1")
    for sw in ("v_permlane16_swap_b32", "v_permlane32_swap_b32"):
        A(f"""
        v_mov_b32 v20, v18
        v_mov_b32 v21, v19
        {sw} v18, v20
        {sw} v19, v21
        v_add_f32 v18, v18, v20
        v_add_f32 v19, v19, v21
        """)
    A(f"""
    v_cmp_gt_u32 vcc, 16, v1
    s_and_saveexec_b64 s[48:49], vcc
    buffer_store_dwordx2 v[18:19], v17, s[44:47], s80 offen sc1
    s_mov_b64 exec, s[48:49]
    kb_fin:
    """)
    P.stamp()
    for T in range(9):
        A(f"ds_read_b64_tr_b16 {vr(144+4*T,2,'a')}, v6 offset:{32*T}")
        A(f"ds_read_b64_tr_b16 {vr(144+4*T+2,2,'a')}, v6 offset:{32*T + 16*576}")
    A(f"""
    s_and_b32 s57, s13, 7
    s_lshl_b32 s57, s57, 1
    s_add_u32 s57, s57, s69                       ; 4q + j
    s_lshr_b32 s58, s13, 3
    s_lshl_b32 s58, s58, 1
    s_add_u32 s58, s58, s68                       ; kstep
    s_lshl_b32 s3, s57, 6
    s_add_u32 s3, s3, s58
    s_lshl_b32 s3, s3, 2
    s_add_u32 s3, s3, {FL_W}
    s_mul_i32 s57, s57, {36*9216}
    s_add_u32 s57, s57, {SZ_WP}
    s_cmp_lt_u32 s13, 144
    s_cselect_b32 s57, s57, 0x70000000
    s_cselect_b32 s3, s3, 0x70000000
    s_bfe_u32 s59, s13, 0x20001                   ; q
    s_lshl_b32 s60, s59, 1
    s_add_u32 s60, s60, 2
    s_cmp_eq_u32 s59, 3
    s_cselect_b32 s60, 0, s60                     ; rot
    s_mul_i32 s61, s58, 57
    s_lshr_b32 s61, s61, 9                        ; j' = kstep/9
    s_mul_i32 s62, s61, 9
    s_sub_u32 s62, s58, s62                       ; l
    s_and_b32 s63, s13, 1
    s_lshl_b32 s63, s63, 1
    s_add_u32 s63, s63, s69                       ; j
    s_sub_u32 s61, s61, s63
    s_and_b32 s61, s61, 3                         ; d
    s_cmp_lt_u32 s62, {ffn.LST[1]}
    s_cselect_b32 s63, {ffn.LST[1]-ffn.LST[0]}, {ffn.LST[2]-ffn.LST[1]}
    s_cselect_b32 s64, {9 + 2*ffn.LST[0]}, {9 + 2*ffn.LST[1]}
    s_cmp_lt_u32 s62, {ffn.LST[2]}
    s_cselect_b32 s63, s63, {ffn.LST[3]-ffn.LST[2]}
    s_cselect_b32 s64, s64, {9 + 2*ffn.LST[2]}
    s_sub_u32 s65, s61, 1
    s_mul_i32 s65, s65, s63
    s_add_u32 s64, s64, s65
    s_cmp_eq_u32 s61, 0
    s_cselect_b32 s64, 0, s64
    s_add_u32 s64, s64, s62                       ; k2
    s_mul_i32 s65, s64, 7
    s_add_u32 s66, s64, {7*ffn.KT - ffn.KT}
    s_cmp_lt_u32 s64, {ffn.KT}
    s_cselect_b32 s65, s65, s66                   ; base
    s_cselect_b32 s66, 1, {ffn.NK}                ; stride
    s_lshl_b32 s64, s64, 1
    s_add_u32 s64, s64, 245
    s_waitcnt lgkmcnt(0)
    s_barrier
    """)
    w1_prefetch(A, 24, 76, 8)
    A(f"""
    v_mov_b32 v3, 1
    s_waitcnt vmcnt(18)
    buffer_store_dword v3, off, s[52:55], s83 sc1
    """)
    for T in range(9):
        A(f"""
        s_sub_u32 s63, {T}, s60
        s_cselect_b32 s61, 9, 0
        s_add_u32 s63, s63, s61                   ; T'
        s_mul_i32 s61, s63, s66
        s_add_u32 s61, s61, s65
        s_add_u32 s62, s63, s64
        s_cmp_lt_u32 s63, 7
        s_cselect_b32 s63, s61, s62
        s_lshl_b32 s63, s63, 10
        s_add_u32 s63, s63, s57
        v_add_u32 v{ffn.PKV[T]}, s63, v15
        """)
    A(f"""
    s_cmp_lg_u32 s83, 0x70000000
    s_cselect_b32 s100, s79, s83
    s_add_u32 s101, s83, 64
    """)
    P.stamp()
    if PROF:
        P.stamp(); P.rt()
        A("s_mov_b64 s[48:49], exec")
        P.flush(14, 24, 52, 8)
        A("s_mov_b64 exec, -1")
    A("s_branch ffn_start")
    P.n = 2

    A.label("kb_side")
    A(f"""
    s_sub_u32 s25, s21, 24
    s_mul_i32 s26, s25, 7
    s_add_u32 s26, s26, s20
    s_sub_u32 s26, s26, 1
    s_sub_u32 s27, s21, 30
    s_lshl_b32 s27, s27, 3
    s_add_u32 s27, s27, s20
    s_add_u32 s27, s27, 42
    s_cmp_ge_u32 s21, 30
    s_cselect_b32 s26, s27, s26                   ; sid 0..57
    v_and_b32 v4, 15, v1
    v_lshrrev_b32 v5, 4, v1
    """)
    A("s_waitcnt lgkmcnt(0)")
    srd(A, 36, 14, 2*SZ_WP, WS_W1P)
    srd(A, 40, 14, 2304, WS_CSB)
    srd(A, 44, 14, SZ_GF, WS_GF)
    srd(A, 52, 14, SZ_FLB, WS_FLB)
    srd(A, 32, 18, D*F*2)
    A(f"""
    s_mov_b32 s3, 0x70000000
    s_mov_b32 s100, s3
    s_mov_b32 s101, s3
    s_lshl_b32 s29, s26, 2
    s_add_u32 s29, s29, s24                       ; wid
    s_mul_i32 s28, s29, {23*1024}
    s_mov_b32 s6, 0xffff0000
    v_mul_u32_u24 v6, 1152, v4
    v_lshl_add_u32 v6, v5, 3, v6
    v_cmp_lt_u32 vcc, 1, v4
    v_mov_b32 v7, 0x7ffffff0
    v_cndmask_b32 v6, v6, v7, vcc
    """)
    def gtile_loads(it):
        A(f"""
        s_add_u32 s68, s29, {232*it}              ; ft
        s_mul_i32 s30, s68, 3641
        s_lshr_b32 s30, s30, 16                   ; fb
        s_mul_i32 s31, s30, 18
        s_sub_u32 s31, s68, s31                   ; t
        s_and_b32 s62, s30, 3
        s_mul_i32 s62, s62, 9
        s_lshr_b32 s62, s62, 1                    ; rot
        s_cmp_lt_u32 s31, {PST[1]}
        s_cselect_b32 s63, {PARTS[0]}, {PARTS[1]}
        s_cselect_b32 s64, 0, {17*PST[1]}
        s_cmp_lt_u32 s31, {PST[2]}
        s_cselect_b32 s63, s63, {PARTS[2]}
        s_cselect_b32 s64, s64, {17*PST[2]}
        s_add_u32 s64, s64, s31
        s_mul_i32 s65, s30, 324
        s_add_u32 s64, s64, s65
        s_lshl_b32 s64, s64, 10
        s_cmp_lt_u32 s68, 288
        s_cselect_b32 s64, s64, 0x70000000
        s_lshl_b32 s63, s63, 10
        s_sub_u32 s65, 18, s62
        s_mul_i32 s65, s65, s63
        s_add_u32 s65, s65, s64
        s_mul_i32 s66, s63, 18
        s_add_u32 s66, s66, s64
        """)
        for kk in range(18):
            A("s_cmp_eq_u32 s65, s66")
            A("s_cselect_b32 s65, s64, s65")
            A(f"buffer_load_dwordx4 {vr(72+72*it+4*kk,4,'a')}, v15, s[36:39], s65 offen")
            A("s_add_u32 s65, s65, s63")
    if E('WPF', 0):
        wblock_prefetch_setup(A, 24, 70, 30)
        A("buffer_load_dword v33, v30, s[36:39], s70 offen")
        A("buffer_load_dword v34, v31, s[36:39], s70 offen")
    gtile_loads(0)
    for kk in range(18):
        A(f"buffer_load_dwordx2 {vr(4*kk,2,'a')}, v6, s[40:43], 0 offen offset:{64*kk}")
        A(f"buffer_load_dwordx2 {vr(4*kk+2,2,'a')}, v6, s[40:43], 0 offen offset:{64*kk+32}")
    gtile_loads(1)
    for n in range(23):
        A(f"buffer_load_dwordx4 {vr(160+4*n,4)}, v15, s[32:35], s28 offen offset:{1024*(n%4)}")
        if n % 4 == 3: A("s_add_u32 s28, s28, 4096")
    A("v_lshlrev_b32 v29, 6, v5")
    for it in range(2):
        A(f"s_waitcnt vmcnt({23 + 18 if it == 0 else 23 + 4})")
        for kk in range(18):
            A(f"v_mfma_f32_16x16x32_bf16 v[20:23], {vr(72+72*it+4*kk,4,'a')}, {vr(4*kk,4,'a')}, {'0' if kk == 0 else 'v[20:23]'}")
        for r in range(4):
            A(f"v_mov_b32_dpp v{24+r}, v{20+r} row_shl:1 row_mask:0xf bank_mask:0xf")
        for r in range(4):
            g1, g2, o = 20 + r, 24 + r, 64 + 16*it + 4*r
            A(f"""
            v_cvt_pk_bf16_f32 v{o}, v{g1}, v{g1}
            v_cvt_pk_bf16_f32 v28, v{g2}, v{g2}
            v_and_b32 v{o+3}, s6, v{o}
            v_and_b32 v28, s6, v28
            v_sub_f32 v{o+3}, v{g1}, v{o+3}
            v_sub_f32 v28, v{g2}, v28
            v_cvt_pk_bf16_f32 v{o+1}, v{o+3}, v{g2}
            v_cvt_pk_bf16_f32 v{o+2}, v{g2}, v28
            v_mov_b32 v{o+3}, 0
            """)
        A(f"""
        s_add_u32 s67, s29, {232*it}
        s_lshl_b32 s67, s67, 8
        v_cmp_eq_u32 vcc, 0, v4
        s_and_saveexec_b64 s[48:49], vcc
        """)
        for r in range(4):
            A(f"buffer_store_dwordx4 {vr(64+16*it+4*r,4)}, v29, s[44:47], s67 offen offset:{16*r} sc1")
        A("s_mov_b64 exec, s[48:49]")
    P.stamp()
    w1_prefetch(A, 24, 76, 80)
    A(f"""
    s_waitcnt vmcnt(18)
    s_barrier
    """)
    P.stamp()
    A(f"""
    v_mov_b32 v20, 1
    v_mov_b32 v21, 0
    s_lshl_b32 s67, s26, 2
    s_add_u32 s67, s67, {FL_S}
    buffer_store_dword v20, v21, s[52:55], s67 offen sc1
    """)
    if PROF:
        P.stamp()
        P.rt()
        P.slot = 3
        P.flush(14, 24, 52, 8)
        A("s_mov_b64 exec, -1")
    for T in range(9): A(f"v_mov_b32 v{ffn.PKV[T]}, 0x7ffffff0")
    A.label("ffn_start")
    ffn.gen_ffn_body(A)
    return dict(name=name, vgpr=512, sgpr=102, accum=256, grid=256, block=256, lds=KBF_LDS)
```

```python
from common import *
E = lambda k, d: int(os.environ.get(k, str(d)))
KA_NLN, KA_NMOD, KA_NPK = 192, 54, 54
KA_M0, KA_L0, KA_P0 = 144, 200, 392
KA_GRID = KA_P0 + KA_NPK
KA_LDS = 36864

def gen_ka(A, name="ka_kernel"):
    A.raw(kernel_header(name))
    P = Prof(A, 70, 0)
    A(f"""
    s_load_dwordx16 s[4:19], s[0:1], 0
    s_load_dwordx4 s[20:23], s[0:1], {KA_C}
    s_load_dwordx2 s[24:25], s[0:1], {KA_WS}
    """)
    P.rt(); P.stamp()
    if E('SPF', 1):
        A(f"""
        s_cmp_ge_u32 s2, {E('SPFN', 16)}
        s_cbranch_scc1 ka_nspf
        s_getpc_b64 s[44:45]
        v_lshlrev_b32 v5, 7, v0
        v_cmp_gt_u32 vcc, kbf_kernel-ka_kernel, v5
        s_and_saveexec_b64 s[46:47], vcc
        s_cbranch_execz ka_spf2
        global_load_dword v120, v5, s[44:45]
        ka_spf2:
        s_mov_b64 exec, s[46:47]
        ka_nspf:
        """)
    A(f"""
    v_and_b32 v1, 63, v0              ; lane
    v_lshrrev_b32 v2, 6, v0           ; wave
    v_lshrrev_b32 v3, 3, v1           ; r
    v_and_b32 v4, 7, v1               ; c
    v_readfirstlane_b32 s26, v2
    s_mov_b32 s31, 0x20000
    """)
    if E('LNF', 1):
        A(f"""
        s_add_u32 s27, s2, {KA_L0}
        s_sub_u32 s28, s2, {192 - KA_M0}
        s_cmp_lt_u32 s2, 192
        s_cselect_b32 s27, s27, s28
        s_sub_u32 s28, s2, 248
        s_cmp_lt_u32 s2, 248
        s_cselect_b32 s27, s27, s28
        s_cmp_lt_u32 s2, {KA_P0}
        s_cselect_b32 s2, s27, s2
        """)
    A(f"""
    s_cmp_ge_u32 s2, {KA_M0}
    s_cbranch_scc1 ka_h1
    s_and_b32 s32, s2, 7
    s_lshr_b32 s33, s2, 3
    v_mul_u32_u24 v5, 9216, v3
    v_lshl_add_u32 v5, v4, 4, v5
    s_lshl_b32 s34, s33, 2
    s_add_u32 s34, s34, s26
    s_mul_i32 s34, s34, {8*9216}
    s_mul_i32 s35, s32, 1152
    s_add_u32 s34, s34, s35
    s_mul_i32 m0, s26, 9216
    s_mov_b32 s30, {D*F*2}
    s_waitcnt lgkmcnt(0)
    s_mov_b32 s28, s16
    s_and_b32 s29, s17, 0xffff
    """)
    for n in range(9):
        A(f"buffer_load_dwordx4 v5, s[28:31], s34 offen lds")
        if n < 8:
            A("s_add_u32 m0, m0, 1024")
            A("s_add_u32 s34, s34, 128")
    A(f"""
    s_branch ka_wpack
    ka_h1:
    s_cmp_ge_u32 s2, {KA_L0}
    s_cbranch_scc1 ka_h2
    s_cmp_ge_u32 s2, {KA_M0 + KA_NMOD}
    s_cbranch_scc1 ka_done
    s_sub_u32 s32, s2, {KA_M0}                 ; m
    v_mul_u32_u24 v5, 144, v2
    v_add_u32 v5, v5, v3                       ; 144w + r
    v_mul_u32_u24 v6, 6912, v5
    v_lshl_add_u32 v6, v4, 4, v6
    v_lshlrev_b32 v7, 1, v0
    s_lshl_b32 s33, s32, 7
    s_mov_b32 s30, {576*6912}
    s_mov_b32 s38, 1152
    s_mov_b32 s39, 0x20000
    s_waitcnt lgkmcnt(0)
    s_mov_b32 s28, s22
    s_and_b32 s29, s23, 0xffff
    s_mov_b32 s36, s20
    s_and_b32 s37, s21, 0xffff
    """)
    for k in range(3):
        A(f"buffer_load_ushort v{8+k}, v7, s[36:39], 0 offen offset:{512*k}")
    W = 32
    for i in range(18):
        A(f"buffer_load_dwordx4 {vr(W+4*i,4)}, v6, s[28:31], s33 offen")
        if i < 17: A(f"s_add_u32 s33, s33, {8*6912}")
    A(f"""
    s_branch ka_mod
    ka_h2:
    s_cmp_ge_u32 s2, {KA_P0}
    s_cbranch_scc1 ka_pack
    s_sub_u32 s27, s2, {KA_L0}
    s_and_b32 s32, s27, 7
    s_lshr_b32 s33, s27, 3
    s_mul_i32 s34, s33, 43
    s_lshr_b32 s34, s34, 8            ; idx/6
    s_lshl_b32 s32, s32, 2
    s_add_u32 s32, s32, s34           ; s2v
    s_mul_i32 s34, s34, 6
    s_sub_u32 s33, s33, s34           ; cg
    v_lshl_add_u32 v5, v2, 4, v3      ; s1 = 16w + r
    v_mul_u32_u24 v6, {32*1152}, v5
    v_lshl_add_u32 v6, v4, 4, v6
    s_mul_i32 s34, s32, 1152
    s_add_u32 s35, s34, {8*32*1152}
    s_mov_b32 s30, {SZ_ACT}
    s_waitcnt lgkmcnt(0)
    s_mov_b32 s28, s4
    s_and_b32 s29, s5, 0xffff
    """)
    P.stamp()
    X0, X1, OWN = 32, 68, 112
    for p, X in enumerate((X0, X1)):
        for i in range(9):
            A(f"buffer_load_dwordx4 {vr(X+4*i,4)}, v6, s[28:31], s{34+p} offen offset:{128*i}")
    A(f"""
    s_mul_i32 s36, s33, 192
    s_add_u32 s34, s34, s36
    s_add_u32 s35, s35, s36
    """)
    for p in range(2):
        for i in range(2):
            A(f"buffer_load_dwordx4 {vr(OWN+8*p+4*i,4)}, v6, s[28:31], s{34+p} offen offset:{128*i}")
    A(f"""
    v_and_b32 v18, 15, v1
    v_lshrrev_b32 v19, 4, v1          ; g
    v_lshl_add_u32 v20, v2, 4, v18    ; j
    v_cmp_lt_u32 vcc, 32, v20         ; j > 32 -> imag
    v_subrev_u32 v21, 32, v20
    v_mov_b32 v22, s6
    v_mov_b32 v23, s7
    v_mov_b32 v24, s8
    v_mov_b32 v25, s9
    v_cndmask_b32 v21, v20, v21, vcc
    v_cndmask_b32 v22, v22, v24, vcc
    v_cndmask_b32 v23, v23, v25, vcc
    v_lshlrev_b32 v21, 17, v21
    v_lshl_add_u32 v21, v19, 4, v21
    v_add_co_u32 v22, vcc, v22, v21
    v_addc_co_u32 v23, vcc, 0, v23, vcc
    global_load_dwordx4 v[104:107], v[22:23], off
    global_load_dwordx4 v[108:111], v[22:23], off offset:64
    """)
    srd(A, 40, 24, SZ_ACT, WS_Z)
    A(f"""
    s_mov_b32 s37, 0x3f803f80
    s_mov_b32 s38, 0xffff0000
    v_mul_u32_u24 v8, 192, v5
    v_lshl_add_u32 v8, v4, 4, v8
    v_bfe_u32 v9, v1, 2, 2            ; r'
    v_lshl_add_u32 v9, v19, 3, v9
    v_mul_u32_u24 v9, 192, v9
    v_and_b32 v10, 1, v1
    v_lshl_add_u32 v9, v10, 5, v9
    v_bfe_u32 v10, v1, 1, 1
    v_lshl_add_u32 v9, v10, 3, v9
    v_lshlrev_b32 v11, 5, v20
    v_add_u32 v11, s32, v11
    v_mul_u32_u24 v11, 1152, v11
    s_mul_i32 s39, s33, 12
    s_and_b32 s44, s32, 6
    v_add_u32 v12, s39, v19
    v_add_u32 v13, 4, v12
    v_add_u32 v14, 8, v12
    v_xor_b32 v12, s44, v12
    v_xor_b32 v13, s44, v13
    v_xor_b32 v14, s44, v14
    v_lshl_add_u32 v12, v12, 4, v11
    v_lshl_add_u32 v13, v13, 4, v11
    v_lshl_add_u32 v14, v14, 4, v11
    """)
    for r in range(4): A(f"v_mov_b32 v{24+r}, 0")
    for p, X in enumerate((X0, X1)):
        for i in range(9):
            if i % 3 == 0: A(f"s_waitcnt vmcnt({6 + 17 - (9*p + i + 2)})")
            for k in range(4):
                A(f"v_dot2_f32_bf16 v{24+2*p}, v{X+4*i+k}, s37, v{24+2*p}")
                A(f"v_dot2_f32_bf16 v{25+2*p}, v{X+4*i+k}, v{X+4*i+k}, v{25+2*p}")
    P.stamp()
    for mode in ("quad_perm:[1,0,3,2]", "quad_perm:[2,3,0,1]", "row_half_mirror"):
        for r in range(4):
            A(f"v_add_f32_dpp v{24+r}, v{24+r}, v{24+r} {mode} row_mask:0xf bank_mask:0xf")
    inv, eps = f2h(1.0/576), f2h(1e-5)
    for p in range(2):
        s_, q_ = 24+2*p, 25+2*p
        rs, nb = 28+2*p, 16+2*p
        A(f"""
        v_mul_f32 v{s_}, {inv}, v{s_}
        v_mul_f32 v{q_}, {inv}, v{q_}
        v_fma_f32 v{q_}, -v{s_}, v{s_}, v{q_}
        v_max_f32 v{q_}, 0, v{q_}
        v_add_f32 v{q_}, {eps}, v{q_}
        v_rsq_f32 v{rs}, v{q_}
        v_mul_f32 v{nb}, -v{s_}, v{rs}
        """)
    A("s_waitcnt vmcnt(2)")
    for p in range(2):
        rs, nb = 28+2*p, 16+2*p
        for k in range(8):
            src = OWN+8*p+k
            t = 32 + 2*(k & 3)
            A(f"v_lshlrev_b32 v{t}, 16, v{src}")
            A(f"v_and_b32 v{t+1}, s38, v{src}")
            A(f"v_pk_fma_f32 v[{t}:{t+1}], v[{t}:{t+1}], v[{rs}:{rs+1}], v[{nb}:{nb+1}] op_sel_hi:[1,0,0]")
            A(f"v_cvt_pk_bf16_f32 v{src}, v{t}, v{t+1}")
    A(f"""
    ds_write_b128 v8, {vr(OWN,4)}
    ds_write_b128 v8, {vr(OWN+8,4)} offset:{8*192}
    v_cmp_gt_u32 vcc, 4, v4
    s_and_saveexec_b64 s[46:47], vcc
    ds_write_b128 v8, {vr(OWN+4,4)} offset:128
    ds_write_b128 v8, {vr(OWN+12,4)} offset:{8*192+128}
    s_mov_b64 exec, s[46:47]
    s_waitcnt lgkmcnt(0)
    s_barrier
    """)
    P.stamp()
    if PROF: A("s_waitcnt lgkmcnt(0)")
    AF, ACC = 32, 80
    for ks in range(2):
        for T in range(6):
            for h in range(2):
                off = (32*ks + 4*h) * 192 + 64*(T >> 1) + 16*(T & 1)
                A(f"ds_read_b64_tr_b16 {vr(AF+4*(6*ks+T)+2*h,2)}, v9 offset:{off}")
    A("s_waitcnt vmcnt(0)")
    for ks in range(2):
        for T in range(6):
            idx = 6*ks+T
            if idx % 2 == 0: A(f"s_waitcnt lgkmcnt({min(15, 2*(10-idx))})")
            c = "0" if ks == 0 else vr(ACC+4*T,4)
            A(f"v_mfma_f32_16x16x32_bf16 {vr(ACC+4*T,4)}, {vr(AF+4*idx,4)}, {vr(104+4*ks,4)}, {c}")
    for b in range(3):
        a0 = ACC + 8*b
        o = 112 + 4*b
        for k in range(4):
            A(f"v_cvt_pk_bf16_f32 v{o+k}, v{a0+2*k}, v{a0+2*k+1}")
        A(f"buffer_store_dwordx4 {vr(o,4)}, v{12+b}, s[40:43], 0 offen")
    if PROF:
        A("s_waitcnt vmcnt(0)")
        P.stamp(); P.rt()
    P.flush(24, 26, 44, 8)
    A("ka_done:\ns_endpgm")
    P.n = 2

    A.label("ka_wpack")
    P.slot = 4
    P.stamp()
    A(f"""
    v_lshlrev_b32 v20, 4, v1
    s_lshl_b32 s46, s33, 2
    s_add_u32 s46, s46, s26
    s_lshl_b32 s46, s46, 10
    s_cmp_ge_u32 s46, code_end-kbf_kernel
    s_cbranch_scc1 ka_nopf
    s_getpc_b64 s[44:45]
    ka_pc:
    s_add_u32 s44, s44, kbf_kernel-ka_pc
    s_addc_u32 s45, s45, 0
    v_add_u32 v100, s46, v20
    global_load_dwordx4 v[112:115], v100, s[44:45]
    s_waitcnt vmcnt(1)
    s_branch ka_pf
    ka_nopf:
    s_waitcnt vmcnt(0)
    ka_pf:
    """)
    tail_start = len(A.items)
    A(f"""
    v_lshrrev_b32 v21, 5, v1
    v_mul_u32_u24 v21, 9216, v21
    v_bfe_u32 v22, v1, 2, 3
    v_lshl_add_u32 v21, v22, 7, v21
    v_and_b32 v22, 3, v1
    v_lshl_add_u32 v21, v22, 3, v21
    s_mul_i32 s36, s26, 288
    """)
    for T in range(9):
        A(f"""
        s_add_u32 s37, s36, {32*T}
        s_lshr_b32 s38, s37, 7
        s_lshl_b32 s38, s38, 10
        s_and_b32 s37, s37, 127
        s_add_u32 s37, s37, s38
        v_add_u32 v{8+T}, s37, v21
        """)
    A(f"""
    s_lshl_b32 s48, s32, 1
    s_lshr_b32 s49, s26, 1
    s_add_u32 s48, s48, s49                    ; fb
    s_and_b32 s49, s48, 3
    s_mul_i32 s49, s49, 9
    s_lshr_b32 s49, s49, 1
    s_sub_u32 s33, s33, s49
    s_cselect_b32 s49, 18, 0
    s_add_u32 s33, s33, s49
    s_mul_i32 s48, s48, {36*9216}
    s_and_b32 s50, s26, 1
    s_mul_i32 s50, s50, 9                      ; t0
    s_mul_i32 s51, s33, {PARTS[0]}
    s_mul_i32 s52, s33, {PARTS[1]}
    s_add_u32 s52, s52, {17*PST[1]}
    s_mul_i32 s53, s33, {PARTS[2]}
    s_add_u32 s53, s53, {17*PST[2]}
    """)
    srd(A, 40, 24, 2*SZ_WP, WS_W1P)
    setup = A.items[tail_start:]; del A.items[tail_start:]
    idx = max(i for i, it in enumerate(A.items) if isinstance(it, str) and it == "ka_wpack:")
    A.items[idx+1:idx+1] = setup
    A("s_barrier")
    P.stamp()
    if PROF: A("s_waitcnt lgkmcnt(0)")
    for T in range(9):
        A(f"ds_read_b64_tr_b16 {vr(32+4*T,2)}, v{8+T}")
        A(f"ds_read_b64_tr_b16 {vr(34+4*T,2)}, v{8+T} offset:{2*9216}")
    for T in range(9):
        A(f"""
        s_add_u32 s36, s50, {T}
        s_cmp_lt_u32 s36, {PST[1]}
        s_cselect_b32 s37, s51, s52
        s_cmp_lt_u32 s36, {PST[2]}
        s_cselect_b32 s37, s37, s53
        s_add_u32 s36, s36, s37
        s_lshl_b32 s36, s36, 10
        s_add_u32 s36, s36, s48
        s_waitcnt lgkmcnt({min(15, 16-2*T)})
        buffer_store_dwordx4 {vr(32+4*T,4)}, v20, s[40:43], s36 offen
        """)
    P.stamp()
    if PROF:
        A("s_waitcnt vmcnt(0)")
        P.stamp(); P.rt()
        P.flush(24, 26, 44, 8)
    A("s_endpgm")
    P.n = 2

    A.label("ka_mod")
    P.slot = 5
    P.stamp()
    srd(A, 40, 24, 0x8000, WS_MOD)
    A("s_waitcnt vmcnt(18)")
    A("v_lshlrev_b32 v7, 2, v0")
    for k in range(3):
        A(f"""
        v_lshlrev_b32 v{8+k}, 16, v{8+k}
        v_mul_f32 v11, 0x3fb8aa3b, v{8+k}
        v_exp_f32 v11, -v11
        v_add_f32 v11, 1.0, v11
        v_rcp_f32 v11, v11
        v_mul_f32 v11, v11, v{8+k}
        v_cvt_pk_bf16_f32 v11, v11, v11
        v_lshlrev_b32 v11, 16, v11
        ds_write_b32 v7, v11 offset:{1024*k}
        """)
    A("v_lshlrev_b32 v5, 2, v5\ns_waitcnt lgkmcnt(0)\ns_barrier")
    SV = 104
    for i in range(18):
        A(f"ds_read_b32 v{SV+i}, v5 offset:{32*i}")
    for k in range(8): A(f"v_mov_b32 v{16+k}, 0")
    A("s_mov_b32 s34, 0xffff0000")
    A("s_waitcnt lgkmcnt(0)")
    for i in range(18):
        if i % 2 == 0: A(f"s_waitcnt vmcnt({16-i})")
        for k in range(4):
            A(f"v_lshlrev_b32 v12, 16, v{W+4*i+k}")
            A(f"v_and_b32 v13, s34, v{W+4*i+k}")
            A(f"v_fmac_f32 v{16+2*k}, v12, v{SV+i}")
            A(f"v_fmac_f32 v{17+2*k}, v13, v{SV+i}")
    P.stamp()
    for k in range(8):
        A(f"v_add_f32_dpp v{16+k}, v{16+k}, v{16+k} row_ror:8 row_mask:0xf bank_mask:0xf")
    for sw in ("v_permlane16_swap_b32", "v_permlane32_swap_b32"):
        for k in range(8): A(f"v_mov_b32 v{24+k}, v{16+k}")
        for k in range(8): A(f"{sw} v{16+k}, v{24+k}")
        for k in range(8): A(f"v_add_f32 v{16+k}, v{16+k}, v{24+k}")
    A(f"""
    v_lshlrev_b32 v12, 8, v2
    v_lshl_add_u32 v12, v4, 5, v12
    ds_write_b128 v12, v[16:19] offset:3072
    ds_write_b128 v12, v[20:23] offset:3088
    s_waitcnt lgkmcnt(0)
    s_barrier
    s_cmp_lg_u32 s26, 0
    s_cbranch_scc1 ka_done2
    """)
    for i in range(4):
        A(f"ds_read_b32 v{W+i}, v7 offset:{3072+256*i}")
    A(f"""
    s_mul_i32 s35, s32, 57
    s_lshr_b32 s35, s35, 9                     ; chunk = m/9
    s_waitcnt lgkmcnt(0)
    v_add_f32 v{W}, v{W}, v{W+1}
    v_add_f32 v{W+2}, v{W+2}, v{W+3}
    v_add_f32 v{W}, v{W}, v{W+2}
    v_cvt_pk_bf16_f32 v{W}, v{W}, v{W}
    v_lshlrev_b32 v{W}, 16, v{W}
    s_cmp_eq_u32 s35, 1
    s_cbranch_scc1 ka_mod_plus1
    s_cmp_eq_u32 s35, 4
    s_cbranch_scc0 ka_mod_store
    ka_mod_plus1:
    v_add_f32 v{W}, 1.0, v{W}
    v_cvt_pk_bf16_f32 v{W}, v{W}, v{W}
    v_lshlrev_b32 v{W}, 16, v{W}
    ka_mod_store:
    s_lshl_b32 s33, s32, 8
    buffer_store_dword v{W}, v7, s[40:43], s33 offen
    s_sub_u32 s36, s35, 3
    s_cmp_gt_u32 s36, 1
    s_cbranch_scc1 ka_done2
    s_mul_i32 s37, s35, 9
    s_sub_u32 s37, s32, s37                    ; m % 9
    s_lshl_b32 s37, s37, 7
    s_xor_b32 s36, s36, 1
    s_mul_i32 s36, s36, 1152
    s_add_u32 s37, s37, s36
    s_add_u32 s40, s24, {WS_CSB}
    s_addc_u32 s41, s25, 0
    s_and_b32 s41, s41, 0xffff
    v_lshlrev_b32 v7, 1, v0
    buffer_store_short_d16_hi v{W}, v7, s[40:43], s37 offen
    ka_done2:
    """)
    if PROF:
        A("s_waitcnt vmcnt(0)")
        P.stamp(); P.rt()
        P.flush(24, 26, 44, 8)
    A("s_endpgm")

    A.label("ka_pack")
    A(f"""
    s_cmp_ge_u32 s2, {KA_GRID}
    s_cbranch_scc1 ka_done3
    s_sub_u32 s32, s2, {KA_P0}
    s_lshl_b32 s33, s32, 2
    s_add_u32 s33, s33, s26                    ; u
    s_mul_i32 s34, s33, 171
    s_lshr_b32 s34, s34, 9                     ; u/3
    s_mul_i32 s35, s34, 3
    s_sub_u32 s35, s33, s35                    ; u%3
    s_cmp_ge_u32 s34, 36
    s_cselect_b32 s36, 36, 0
    s_sub_u32 s36, s34, s36                    ; eps
    v_and_b32 v3, 15, v1
    v_lshrrev_b32 v4, 4, v1
    v_lshlrev_b32 v6, 18, v3
    v_lshl_add_u32 v6, v4, 3, v6
    v_mul_u32_u24 v3, 1152, v3
    v_lshl_add_u32 v3, v4, 4, v3
    s_mul_i32 s36, s36, {16*1152}
    s_mul_i32 s37, s35, 384
    s_add_u32 s36, s36, s37
    s_mov_b32 s30, {D*D*2}
    s_waitcnt lgkmcnt(0)
    s_cmp_ge_u32 s34, 36
    s_cselect_b32 s28, s12, s10
    s_cselect_b32 s29, s13, s11
    s_and_b32 s29, s29, 0xffff
    """)
    for k in range(6):
        A(f"buffer_load_dwordx4 {vr(8+4*k,4)}, v3, s[28:31], s36 offen offset:{64*k}")
    A(f"""
    s_bitcmp1_b32 s33, 1
    s_cselect_b32 s40, s8, s6
    s_cselect_b32 s41, s9, s7
    s_and_b32 s41, s41, 0xffff
    s_cmp_lt_u32 s33, 132
    s_cselect_b32 s42, {S*S*2}, 0
    s_mov_b32 s43, 0x20000
    s_lshr_b32 s44, s33, 2
    s_and_b32 s45, s33, 1
    s_lshl_b32 s45, s45, 10
    s_add_u32 s44, s44, s45
    s_lshl_b32 s44, s44, 12
    buffer_load_dwordx2 v[36:37], v6, s[40:43], s44 offen
    buffer_load_dwordx2 v[38:39], v6, s[40:43], s44 offen offset:32
    s_mul_i32 s38, s33, 6144
    s_add_u32 s39, s38, 4096
    v_lshlrev_b32 v5, 4, v1
    """)
    srd(A, 48, 24, SZ_F2P, WS_F2P)
    srd(A, 52, 24, SZ_WDP, WS_WDP)
    srd(A, 56, 24, SZ_FLB, WS_FLB)
    A(f"""
    v_mov_b32 v32, 0
    v_mov_b32 v33, 0
    v_mov_b32 v34, 0
    v_mov_b32 v35, 0
    s_lshl_b32 s46, s33, 10
    buffer_store_dwordx4 v[32:35], v5, s[56:59], s46 offen
    s_waitcnt vmcnt(3)
    """)
    for k in range(6):
        so = "s38" if k < 4 else "s39"
        A(f"buffer_store_dwordx4 {vr(8+4*k,4)}, v5, s[52:55], {so} offen offset:{1024*(k%4)}")
    A("s_waitcnt vmcnt(7)")
    A("buffer_store_dwordx4 v[36:39], v5, s[48:51], s46 offen")
    A("ka_done3:\ns_endpgm")
    return dict(name=name, vgpr=128, sgpr=100, accum=128, grid=KA_GRID, block=256, lds=KA_LDS)
```

```python
from common import *
E = lambda k, d: int(os.environ.get(k, str(d)))
KA_NLN, KA_NMOD, KA_NPK = 96, 54, 54
KA_M0, KA_L0, KA_P0 = 144, 200, 296
KA_GRID = KA_P0 + KA_NPK
KA_LDS = 36864

def gen_ka(A, name="ka_kernel"):
    A.raw(kernel_header(name))
    P = Prof(A, 70, 0)
    A(f"""
    s_load_dwordx16 s[4:19], s[0:1], 0
    s_load_dwordx4 s[20:23], s[0:1], {KA_C}
    s_load_dwordx2 s[24:25], s[0:1], {KA_WS}
    """)
    P.rt(); P.stamp()
    if E('SPF', 1):
        A(f"""
        s_cmp_ge_u32 s2, {E('SPFN', 16)}
        s_cbranch_scc1 ka_nspf
        s_getpc_b64 s[44:45]
        v_lshlrev_b32 v5, 7, v0
        v_cmp_gt_u32 vcc, kbf_kernel-ka_kernel, v5
        s_and_saveexec_b64 s[46:47], vcc
        s_cbranch_execz ka_spf2
        global_load_dword v126, v5, s[44:45]
        ka_spf2:
        s_mov_b64 exec, s[46:47]
        ka_nspf:
        """)
    A(f"""
    v_and_b32 v1, 63, v0              ; lane
    v_lshrrev_b32 v2, 6, v0           ; wave
    v_lshrrev_b32 v3, 3, v1           ; r
    v_and_b32 v4, 7, v1               ; c
    v_readfirstlane_b32 s26, v2
    s_mov_b32 s31, 0x20000
    """)
    if E('LNF', 1):
        A(f"""
        s_add_u32 s27, s2, {KA_L0}
        s_add_u32 s28, s2, {KA_M0 - KA_NLN}
        s_cmp_lt_u32 s2, {KA_NLN}
        s_cselect_b32 s27, s27, s28
        s_sub_u32 s28, s2, {KA_NLN + 56}
        s_cmp_lt_u32 s2, {KA_NLN + 56}
        s_cselect_b32 s27, s27, s28
        s_cmp_lt_u32 s2, {KA_P0}
        s_cselect_b32 s2, s27, s2
        """)
    A(f"""
    s_cmp_ge_u32 s2, {KA_M0}
    s_cbranch_scc1 ka_h1
    s_and_b32 s32, s2, 7
    s_lshr_b32 s33, s2, 3
    v_mul_u32_u24 v5, 9216, v3
    v_lshl_add_u32 v5, v4, 4, v5
    s_lshl_b32 s34, s33, 2
    s_add_u32 s34, s34, s26
    s_mul_i32 s34, s34, {8*9216}
    s_mul_i32 s35, s32, 1152
    s_add_u32 s34, s34, s35
    s_mul_i32 m0, s26, 9216
    s_mov_b32 s30, {D*F*2}
    s_waitcnt lgkmcnt(0)
    s_mov_b32 s28, s16
    s_and_b32 s29, s17, 0xffff
    """)
    for n in range(9):
        A(f"buffer_load_dwordx4 v5, s[28:31], s34 offen lds")
        if n < 8:
            A("s_add_u32 m0, m0, 1024")
            A("s_add_u32 s34, s34, 128")
    A(f"""
    s_branch ka_wpack
    ka_h1:
    s_cmp_ge_u32 s2, {KA_L0}
    s_cbranch_scc1 ka_h2
    s_cmp_ge_u32 s2, {KA_M0 + KA_NMOD}
    s_cbranch_scc1 ka_done
    s_sub_u32 s32, s2, {KA_M0}                 ; m
    v_mul_u32_u24 v5, 144, v2
    v_add_u32 v5, v5, v3                       ; 144w + r
    v_mul_u32_u24 v6, 6912, v5
    v_lshl_add_u32 v6, v4, 4, v6
    v_lshlrev_b32 v7, 1, v0
    s_lshl_b32 s33, s32, 7
    s_mov_b32 s30, {576*6912}
    s_mov_b32 s38, 1152
    s_mov_b32 s39, 0x20000
    s_waitcnt lgkmcnt(0)
    s_mov_b32 s28, s22
    s_and_b32 s29, s23, 0xffff
    s_mov_b32 s36, s20
    s_and_b32 s37, s21, 0xffff
    """)
    for k in range(3):
        A(f"buffer_load_ushort v{8+k}, v7, s[36:39], 0 offen offset:{512*k}")
    W = 32
    for i in range(18):
        A(f"buffer_load_dwordx4 {vr(W+4*i,4)}, v6, s[28:31], s33 offen")
        if i < 17: A(f"s_add_u32 s33, s33, {8*6912}")
    A(f"""
    s_branch ka_mod
    ka_h2:
    s_cmp_ge_u32 s2, {KA_P0}
    s_cbranch_scc1 ka_pack
    s_sub_u32 s27, s2, {KA_L0}
    s_and_b32 s32, s27, 7
    s_lshr_b32 s33, s27, 3
    s_mul_i32 s34, s33, 86
    s_lshr_b32 s34, s34, 8            ; idx/3
    s_lshl_b32 s32, s32, 2
    s_add_u32 s32, s32, s34           ; s2v
    s_mul_i32 s34, s34, 3
    s_sub_u32 s33, s33, s34           ; cg
    v_lshl_add_u32 v5, v2, 4, v3      ; s1 = 16w + r
    v_mul_u32_u24 v6, {32*1152}, v5
    v_lshl_add_u32 v6, v4, 4, v6
    v_add_u32 v7, {8*32*1152}, v6
    s_mul_i32 s45, s32, 1152
    s_mul_i32 s34, s33, 384
    s_add_u32 s35, s34, 384
    s_cmp_eq_u32 s33, 2
    s_cselect_b32 s35, 0, s35
    s_sub_u32 s36, s34, 384
    s_cmp_eq_u32 s33, 0
    s_cselect_b32 s36, 768, s36
    s_add_u32 s34, s34, s45
    s_add_u32 s35, s35, s45
    s_add_u32 s36, s36, s45
    s_mov_b32 s30, {SZ_ACT}
    s_waitcnt lgkmcnt(0)
    s_mov_b32 s28, s4
    s_and_b32 s29, s5, 0xffff
    """)
    P.stamp()
    X0, X1 = 32, 68
    for p, X in enumerate((X0, X1)):
        for i in range(9):
            A(f"buffer_load_dwordx4 {vr(X+4*i,4)}, v{6+p}, s[28:31], s{34+i//3} offen offset:{128*(i%3)}")
    A(f"""
    v_and_b32 v18, 15, v1
    v_lshrrev_b32 v19, 4, v1          ; g
    v_lshl_add_u32 v20, v2, 4, v18    ; j
    v_cmp_lt_u32 vcc, 32, v20         ; j > 32 -> imag
    v_subrev_u32 v21, 32, v20
    v_mov_b32 v22, s6
    v_mov_b32 v23, s7
    v_mov_b32 v24, s8
    v_mov_b32 v25, s9
    v_cndmask_b32 v21, v20, v21, vcc
    v_cndmask_b32 v22, v22, v24, vcc
    v_cndmask_b32 v23, v23, v25, vcc
    v_lshlrev_b32 v21, 17, v21
    v_lshl_add_u32 v21, v19, 4, v21
    v_add_co_u32 v22, vcc, v22, v21
    v_addc_co_u32 v23, vcc, 0, v23, vcc
    global_load_dwordx4 v[104:107], v[22:23], off
    global_load_dwordx4 v[108:111], v[22:23], off offset:64
    """)
    srd(A, 40, 24, SZ_ACT, WS_Z)
    LP = 400
    A(f"""
    s_mov_b32 s37, 0x3f803f80
    s_mov_b32 s38, 0xffff0000
    v_mul_u32_u24 v8, {LP}, v5
    v_lshl_add_u32 v8, v4, 4, v8
    v_bfe_u32 v9, v1, 2, 2            ; r'
    v_lshl_add_u32 v9, v19, 3, v9
    v_mul_u32_u24 v9, {LP}, v9
    v_and_b32 v10, 1, v1
    v_lshl_add_u32 v9, v10, 5, v9
    v_bfe_u32 v10, v1, 1, 1
    v_lshl_add_u32 v9, v10, 3, v9
    v_lshlrev_b32 v11, 5, v20
    v_add_u32 v11, s32, v11
    v_mul_u32_u24 v11, 1152, v11
    s_mul_i32 s39, s33, 384
    s_and_b32 s44, s32, 6
    v_add_u32 v13, 4, v19
    v_xor_b32 v12, s44, v19
    v_xor_b32 v13, s44, v13
    v_lshl_add_u32 v12, v12, 4, v11
    v_lshl_add_u32 v13, v13, 4, v11
    """)
    for r in range(4): A(f"v_mov_b32 v{24+r}, 0")
    for p, X in enumerate((X0, X1)):
        for i in range(9):
            if i % 3 == 0: A(f"s_waitcnt vmcnt({2 + 17 - (9*p + i + 2)})")
            for k in range(4):
                A(f"v_dot2_f32_bf16 v{24+2*p}, v{X+4*i+k}, s37, v{24+2*p}")
                A(f"v_dot2_f32_bf16 v{25+2*p}, v{X+4*i+k}, v{X+4*i+k}, v{25+2*p}")
    P.stamp()
    for mode in ("quad_perm:[1,0,3,2]", "quad_perm:[2,3,0,1]", "row_half_mirror"):
        for r in range(4):
            A(f"v_add_f32_dpp v{24+r}, v{24+r}, v{24+r} {mode} row_mask:0xf bank_mask:0xf")
    inv, eps = f2h(1.0/576), f2h(1e-5)
    for p in range(2):
        s_, q_ = 24+2*p, 25+2*p
        rs, nb = 28+2*p, 16+2*p
        A(f"""
        v_mul_f32 v{s_}, {inv}, v{s_}
        v_mul_f32 v{q_}, {inv}, v{q_}
        v_fma_f32 v{q_}, -v{s_}, v{s_}, v{q_}
        v_max_f32 v{q_}, 0, v{q_}
        v_add_f32 v{q_}, {eps}, v{q_}
        v_rsq_f32 v{rs}, v{q_}
        v_mul_f32 v{nb}, -v{s_}, v{rs}
        """)
    for p, X in enumerate((X0, X1)):
        rs, nb = 28+2*p, 16+2*p
        for k in range(12):
            src = X+k
            t = 112 + 2*(k & 3)
            A(f"v_lshlrev_b32 v{t}, 16, v{src}")
            A(f"v_and_b32 v{t+1}, s38, v{src}")
            A(f"v_pk_fma_f32 v[{t}:{t+1}], v[{t}:{t+1}], v[{rs}:{rs+1}], v[{nb}:{nb+1}] op_sel_hi:[1,0,0]")
            A(f"v_cvt_pk_bf16_f32 v{src}, v{t}, v{t+1}")
            if k % 4 == 3: A(f"ds_write_b128 v8, {vr(X+k-3,4)} offset:{8*LP*p + 128*(k//4)}")
    A("s_waitcnt lgkmcnt(0)\ns_barrier")
    P.stamp()
    if PROF: A("s_waitcnt lgkmcnt(0)")
    AF, ACC = 32, 80
    A("s_waitcnt vmcnt(0)")
    for hf in range(2):
        for ks in range(2):
            for T in range(6):
                for h in range(2):
                    off = (32*ks + 4*h) * LP + 192*hf + 64*(T >> 1) + 16*(T & 1)
                    A(f"ds_read_b64_tr_b16 {vr(AF+4*(6*ks+T)+2*h,2)}, v9 offset:{off}")
        for ks in range(2):
            for T in range(6):
                idx = 6*ks+T
                if idx % 2 == 0: A(f"s_waitcnt lgkmcnt({min(15, 2*(10-idx))})")
                c = "0" if ks == 0 else vr(ACC+4*T,4)
                A(f"v_mfma_f32_16x16x32_bf16 {vr(ACC+4*T,4)}, {vr(AF+4*idx,4)}, {vr(104+4*ks,4)}, {c}")
        for b in range(3):
            a0 = ACC + 8*b
            o = (112 if hf == 0 else 16) + 4*b
            bb = 3*hf + b
            for k in range(4):
                A(f"v_cvt_pk_bf16_f32 v{o+k}, v{a0+2*k}, v{a0+2*k+1}")
            A(f"buffer_store_dwordx4 {vr(o,4)}, v{12+(bb&1)}, s[40:43], s39 offen offset:{128*(bb>>1)}")
    if PROF:
        A("s_waitcnt vmcnt(0)")
        P.stamp(); P.rt()
    P.flush(24, 26, 44, 8)
    A("ka_done:\ns_endpgm")
    P.n = 2

    A.label("ka_wpack")
    P.slot = 4
    P.stamp()
    A(f"""
    v_lshlrev_b32 v20, 4, v1
    s_lshl_b32 s46, s33, 2
    s_add_u32 s46, s46, s26
    s_lshl_b32 s46, s46, 10
    s_cmp_ge_u32 s46, code_end-kbf_kernel
    s_cbranch_scc1 ka_nopf
    s_getpc_b64 s[44:45]
    ka_pc:
    s_add_u32 s44, s44, kbf_kernel-ka_pc
    s_addc_u32 s45, s45, 0
    v_add_u32 v100, s46, v20
    global_load_dwordx4 v[112:115], v100, s[44:45]
    s_waitcnt vmcnt(1)
    s_branch ka_pf
    ka_nopf:
    s_waitcnt vmcnt(0)
    ka_pf:
    """)
    tail_start = len(A.items)
    A(f"""
    v_lshrrev_b32 v21, 5, v1
    v_mul_u32_u24 v21, 9216, v21
    v_bfe_u32 v22, v1, 2, 3
    v_lshl_add_u32 v21, v22, 7, v21
    v_and_b32 v22, 3, v1
    v_lshl_add_u32 v21, v22, 3, v21
    s_mul_i32 s36, s26, 288
    """)
    for T in range(9):
        A(f"""
        s_add_u32 s37, s36, {32*T}
        s_lshr_b32 s38, s37, 7
        s_lshl_b32 s38, s38, 10
        s_and_b32 s37, s37, 127
        s_add_u32 s37, s37, s38
        v_add_u32 v{8+T}, s37, v21
        """)
    A(f"""
    s_lshl_b32 s48, s32, 1
    s_lshr_b32 s49, s26, 1
    s_add_u32 s48, s48, s49                    ; fb
    s_and_b32 s49, s48, 3
    s_mul_i32 s49, s49, 9
    s_lshr_b32 s49, s49, 1
    s_sub_u32 s33, s33, s49
    s_cselect_b32 s49, 18, 0
    s_add_u32 s33, s33, s49
    s_mul_i32 s48, s48, {36*9216}
    s_and_b32 s50, s26, 1
    s_mul_i32 s50, s50, 9                      ; t0
    s_mul_i32 s51, s33, {PARTS[0]}
    s_mul_i32 s52, s33, {PARTS[1]}
    s_add_u32 s52, s52, {17*PST[1]}
    s_mul_i32 s53, s33, {PARTS[2]}
    s_add_u32 s53, s53, {17*PST[2]}
    """)
    srd(A, 40, 24, 2*SZ_WP, WS_W1P)
    setup = A.items[tail_start:]; del A.items[tail_start:]
    idx = max(i for i, it in enumerate(A.items) if isinstance(it, str) and it == "ka_wpack:")
    A.items[idx+1:idx+1] = setup
    A("s_barrier")
    P.stamp()
    if PROF: A("s_waitcnt lgkmcnt(0)")
    for T in range(9):
        A(f"ds_read_b64_tr_b16 {vr(32+4*T,2)}, v{8+T}")
        A(f"ds_read_b64_tr_b16 {vr(34+4*T,2)}, v{8+T} offset:{2*9216}")
    for T in range(9):
        A(f"""
        s_add_u32 s36, s50, {T}
        s_cmp_lt_u32 s36, {PST[1]}
        s_cselect_b32 s37, s51, s52
        s_cmp_lt_u32 s36, {PST[2]}
        s_cselect_b32 s37, s37, s53
        s_add_u32 s36, s36, s37
        s_lshl_b32 s36, s36, 10
        s_add_u32 s36, s36, s48
        s_waitcnt lgkmcnt({min(15, 16-2*T)})
        buffer_store_dwordx4 {vr(32+4*T,4)}, v20, s[40:43], s36 offen
        """)
    P.stamp()
    if PROF:
        A("s_waitcnt vmcnt(0)")
        P.stamp(); P.rt()
        P.flush(24, 26, 44, 8)
    A("s_endpgm")
    P.n = 2

    A.label("ka_mod")
    P.slot = 5
    P.stamp()
    srd(A, 40, 24, 0x8000, WS_MOD)
    A("s_waitcnt vmcnt(18)")
    A("v_lshlrev_b32 v7, 2, v0")
    for k in range(3):
        A(f"""
        v_lshlrev_b32 v{8+k}, 16, v{8+k}
        v_mul_f32 v11, 0x3fb8aa3b, v{8+k}
        v_exp_f32 v11, -v11
        v_add_f32 v11, 1.0, v11
        v_rcp_f32 v11, v11
        v_mul_f32 v11, v11, v{8+k}
        v_cvt_pk_bf16_f32 v11, v11, v11
        v_lshlrev_b32 v11, 16, v11
        ds_write_b32 v7, v11 offset:{1024*k}
        """)
    A("v_lshlrev_b32 v5, 2, v5\ns_waitcnt lgkmcnt(0)\ns_barrier")
    SV = 104
    for i in range(18):
        A(f"ds_read_b32 v{SV+i}, v5 offset:{32*i}")
    for k in range(8): A(f"v_mov_b32 v{16+k}, 0")
    A("s_mov_b32 s34, 0xffff0000")
    A("s_waitcnt lgkmcnt(0)")
    for i in range(18):
        if i % 2 == 0: A(f"s_waitcnt vmcnt({16-i})")
        for k in range(4):
            A(f"v_lshlrev_b32 v12, 16, v{W+4*i+k}")
            A(f"v_and_b32 v13, s34, v{W+4*i+k}")
            A(f"v_fmac_f32 v{16+2*k}, v12, v{SV+i}")
            A(f"v_fmac_f32 v{17+2*k}, v13, v{SV+i}")
    P.stamp()
    for k in range(8):
        A(f"v_add_f32_dpp v{16+k}, v{16+k}, v{16+k} row_ror:8 row_mask:0xf bank_mask:0xf")
    for sw in ("v_permlane16_swap_b32", "v_permlane32_swap_b32"):
        for k in range(8): A(f"v_mov_b32 v{24+k}, v{16+k}")
        for k in range(8): A(f"{sw} v{16+k}, v{24+k}")
        for k in range(8): A(f"v_add_f32 v{16+k}, v{16+k}, v{24+k}")
    A(f"""
    v_lshlrev_b32 v12, 8, v2
    v_lshl_add_u32 v12, v4, 5, v12
    ds_write_b128 v12, v[16:19] offset:3072
    ds_write_b128 v12, v[20:23] offset:3088
    s_waitcnt lgkmcnt(0)
    s_barrier
    s_cmp_lg_u32 s26, 0
    s_cbranch_scc1 ka_done2
    """)
    for i in range(4):
        A(f"ds_read_b32 v{W+i}, v7 offset:{3072+256*i}")
    A(f"""
    s_mul_i32 s35, s32, 57
    s_lshr_b32 s35, s35, 9                     ; chunk = m/9
    s_waitcnt lgkmcnt(0)
    v_add_f32 v{W}, v{W}, v{W+1}
    v_add_f32 v{W+2}, v{W+2}, v{W+3}
    v_add_f32 v{W}, v{W}, v{W+2}
    v_cvt_pk_bf16_f32 v{W}, v{W}, v{W}
    v_lshlrev_b32 v{W}, 16, v{W}
    s_cmp_eq_u32 s35, 1
    s_cbranch_scc1 ka_mod_plus1
    s_cmp_eq_u32 s35, 4
    s_cbranch_scc0 ka_mod_store
    ka_mod_plus1:
    v_add_f32 v{W}, 1.0, v{W}
    v_cvt_pk_bf16_f32 v{W}, v{W}, v{W}
    v_lshlrev_b32 v{W}, 16, v{W}
    ka_mod_store:
    s_lshl_b32 s33, s32, 8
    buffer_store_dword v{W}, v7, s[40:43], s33 offen
    s_sub_u32 s36, s35, 3
    s_cmp_gt_u32 s36, 1
    s_cbranch_scc1 ka_done2
    s_mul_i32 s37, s35, 9
    s_sub_u32 s37, s32, s37                    ; m % 9
    s_lshl_b32 s37, s37, 7
    s_xor_b32 s36, s36, 1
    s_mul_i32 s36, s36, 1152
    s_add_u32 s37, s37, s36
    s_add_u32 s40, s24, {WS_CSB}
    s_addc_u32 s41, s25, 0
    s_and_b32 s41, s41, 0xffff
    v_lshlrev_b32 v7, 1, v0
    buffer_store_short_d16_hi v{W}, v7, s[40:43], s37 offen
    ka_done2:
    """)
    if PROF:
        A("s_waitcnt vmcnt(0)")
        P.stamp(); P.rt()
        P.flush(24, 26, 44, 8)
    A("s_endpgm")

    A.label("ka_pack")
    A(f"""
    s_cmp_ge_u32 s2, {KA_GRID}
    s_cbranch_scc1 ka_done3
    s_sub_u32 s32, s2, {KA_P0}
    s_lshl_b32 s33, s32, 2
    s_add_u32 s33, s33, s26                    ; u
    s_mul_i32 s34, s33, 171
    s_lshr_b32 s34, s34, 9                     ; u/3
    s_mul_i32 s35, s34, 3
    s_sub_u32 s35, s33, s35                    ; u%3
    s_cmp_ge_u32 s34, 36
    s_cselect_b32 s36, 36, 0
    s_sub_u32 s36, s34, s36                    ; eps
    v_and_b32 v3, 15, v1
    v_lshrrev_b32 v4, 4, v1
    v_lshlrev_b32 v6, 18, v3
    v_lshl_add_u32 v6, v4, 3, v6
    v_mul_u32_u24 v3, 1152, v3
    v_lshl_add_u32 v3, v4, 4, v3
    s_mul_i32 s36, s36, {16*1152}
    s_mul_i32 s37, s35, 384
    s_add_u32 s36, s36, s37
    s_mov_b32 s30, {D*D*2}
    s_waitcnt lgkmcnt(0)
    s_cmp_ge_u32 s34, 36
    s_cselect_b32 s28, s12, s10
    s_cselect_b32 s29, s13, s11
    s_and_b32 s29, s29, 0xffff
    """)
    for k in range(6):
        A(f"buffer_load_dwordx4 {vr(8+4*k,4)}, v3, s[28:31], s36 offen offset:{64*k}")
    A(f"""
    s_bitcmp1_b32 s33, 1
    s_cselect_b32 s40, s8, s6
    s_cselect_b32 s41, s9, s7
    s_and_b32 s41, s41, 0xffff
    s_cmp_lt_u32 s33, 132
    s_cselect_b32 s42, {S*S*2}, 0
    s_mov_b32 s43, 0x20000
    s_lshr_b32 s44, s33, 2
    s_and_b32 s45, s33, 1
    s_lshl_b32 s45, s45, 10
    s_add_u32 s44, s44, s45
    s_lshl_b32 s44, s44, 12
    buffer_load_dwordx2 v[36:37], v6, s[40:43], s44 offen
    buffer_load_dwordx2 v[38:39], v6, s[40:43], s44 offen offset:32
    s_mul_i32 s38, s33, 6144
    s_add_u32 s39, s38, 4096
    v_lshlrev_b32 v5, 4, v1
    """)
    srd(A, 48, 24, SZ_F2P, WS_F2P)
    srd(A, 52, 24, SZ_WDP, WS_WDP)
    srd(A, 56, 24, SZ_FLB, WS_FLB)
    A(f"""
    v_mov_b32 v32, 0
    v_mov_b32 v33, 0
    v_mov_b32 v34, 0
    v_mov_b32 v35, 0
    s_lshl_b32 s46, s33, 10
    buffer_store_dwordx4 v[32:35], v5, s[56:59], s46 offen
    s_waitcnt vmcnt(3)
    """)
    for k in range(6):
        so = "s38" if k < 4 else "s39"
        A(f"buffer_store_dwordx4 {vr(8+4*k,4)}, v5, s[52:55], {so} offen offset:{1024*(k%4)}")
    A("s_waitcnt vmcnt(7)")
    A("buffer_store_dwordx4 v[36:39], v5, s[48:51], s46 offen")
    TS = E('TLBS', 0)
    if TS:
        srd(A, 60, 24, WS_FLB + SZ_FLB)
        A(f"""
        s_lshr_b32 s47, s32, 3
        s_lshl_b32 s47, s47, 8
        v_add_u32 v40, s47, v0
        v_lshlrev_b32 v40, {TS}, v40
        buffer_load_dword v41, v40, s[60:63], 0 offen
        """)
    A("ka_done3:\ns_endpgm")
    return dict(name=name, vgpr=128, sgpr=100, accum=128, grid=KA_GRID, block=256, lds=KA_LDS)
```
